```python
import torch

def _softmax(x, axis=-1):
    return torch.softmax(x, dim=axis)

def _gelu(x):
    return torch.nn.functional.gelu(x, approximate='tanh')

def _silu(x):
    return torch.nn.functional.silu(x)

def _sigmoid(x):
    return torch.sigmoid(x)

def _layernorm(x, axis=-1, eps=1e-05):
    m = x.mean(dim=axis, keepdim=True)
    v = x.var(dim=axis, keepdim=True, unbiased=False)
    return (x - m) / torch.sqrt(v + eps)

def _scatter_add(tgt, idx, src, axis=0):
    return tgt.clone().index_add_(axis, idx, src)

def _segment_sum(src, seg, n):
    out = torch.zeros((n,) + src.shape[1:], dtype=src.dtype)
    return out.index_add_(0, seg, src)

def _pad(x, pw):
    flat = tuple((v for pair in reversed(pw) for v in pair))
    return torch.nn.functional.pad(x, flat)
kernel_name = 'concat_heads__grouped_kv_mqa__memory_aug_recurrent_mem_tr__prompt'

def setup_inputs():

    _w = lambda a: (lambda t: t.to(torch.bfloat16) if t.is_floating_point() else t)(torch.as_tensor(a))

    def _A_setup():
        B, S, D, H = (1, 2048, 1024, 32)
        Dh = D // H
        return {'x': _w((lambda *s: torch.randn(*s, dtype=torch.bfloat16) * 0.05)(B, S, D)), 'wq': _w((lambda *s: torch.randn(*s, dtype=torch.bfloat16) * 3.2)(D, H * Dh)), 'wk': _w((lambda *s: torch.randn(*s, dtype=torch.bfloat16) * 3.2)(D, Dh)), 'wv': _w((lambda *s: torch.randn(*s, dtype=torch.bfloat16) * 0.1)(D, Dh)), 'wo': _w((lambda *s: torch.randn(*s, dtype=torch.bfloat16) * 0.1)(H * Dh, D))}
    _A_in = _A_setup()

    def _B_setup():
        B, S, Dm = (1, 2048, 1024)
        H, Dh = (32, 128)
        M, seg = (8, 32)
        seg = min(seg, S)
        S = S // seg * seg
        return {'x': _w((lambda *s: torch.randn(*s, dtype=torch.bfloat16) * 0.05)(B, S, Dm)), 'mem0': _w((lambda *s: torch.randn(*s, dtype=torch.bfloat16) * 1.6)(B, M, Dm)), 'Wq': _w((lambda *s: torch.randn(*s, dtype=torch.bfloat16) * 0.8)(Dm, H, Dh) * Dm ** (-0.5)), 'Wk': _w((lambda *s: torch.randn(*s, dtype=torch.bfloat16) * 0.8)(Dm, H, Dh) * Dm ** (-0.5)), 'Wv': _w((lambda *s: torch.randn(*s, dtype=torch.bfloat16) * 1.6)(Dm, H, Dh) * Dm ** (-0.5)), 'Wo': _w((lambda *s: torch.randn(*s, dtype=torch.bfloat16) * 1.6)(H, Dh, Dm) * (H * Dh) ** (-0.5)), 'seg_len': seg}
    _B_in = _B_setup()
    return {'A_x': _A_in['x'], 'A_wq': _A_in['wq'], 'A_wk': _A_in['wk'], 'A_wv': _A_in['wv'], 'A_wo': _A_in['wo'], 'B_x': _B_in['x'], 'B_mem0': _B_in['mem0'], 'B_Wq': _B_in['Wq'], 'B_Wk': _B_in['Wk'], 'B_Wv': _B_in['Wv'], 'B_Wo': _B_in['Wo'], 'B_seg_len': _B_in['seg_len']}

def reference(A_x, A_wq, A_wk, A_wv, A_wo, B_x, B_mem0, B_Wq, B_Wk, B_Wv, B_Wo, B_seg_len):

    def _A_ref(x, wq, wk, wv, wo):
        B, S, D = x.shape
        H = 32
        Dh = D // H
        q = (lambda x, *d: x.permute(*d))((x @ wq).reshape(B, S, H, Dh), 0, 2, 1, 3)
        k = x @ wk
        v = x @ wv
        scores = torch.einsum('bhqd,bkd->bhqk', q, k) * Dh ** (-0.5)
        p = _softmax(scores, axis=-1)
        o = torch.einsum('bhqk,bkd->bhqd', p, v)
        return (lambda x, *d: x.permute(*d))(o, 0, 2, 1, 3).reshape(B, S, H * Dh) @ wo

    def _B_ref(x, mem0, Wq, Wk, Wv, Wo, seg_len):
        B, S, Dm = x.shape
        H, Dh = (Wq.shape[1], Wq.shape[2])
        M = mem0.shape[1]
        scale = Dh ** (-0.5)
        n_seg = S // seg_len
        L = M + seg_len
        idx = torch.arange(L)
        mask = (idx[:, None] < M) | (idx[:, None] >= idx[None, :])
        mem = mem0
        outs = []
        for s in range(n_seg):
            xs = x[:, s * seg_len:(s + 1) * seg_len, :].clone()
            h = torch.concatenate([mem, xs], axis=1)
            q = torch.einsum('btd,dhe->bhte', h, Wq)
            k = torch.einsum('btd,dhe->bhte', h, Wk)
            v = torch.einsum('btd,dhe->bhte', h, Wv)
            scores = torch.einsum('bhqe,bhke->bhqk', q, k) * scale
            scores = torch.where(mask[None, None], scores, -1000000000.0)
            p = _softmax(scores, axis=-1)
            o = torch.einsum('bhqk,bhke->bhqe', p, v)
            o = torch.einsum('bhte,hed->btd', o, Wo)
            mem = o[:, :M, :].clone()
            outs.append(o[:, M:, :])
        return torch.concatenate(outs, axis=1)
    a = _A_ref(A_x, A_wq, A_wk, A_wv, A_wo)
    b = _B_ref(B_x, B_mem0, B_Wq, B_Wk, B_Wv, B_Wo, B_seg_len)
    return torch.concatenate([a, b], axis=-1)
```

```python
import common
from common import *
import math

ACC_STEP = 20480
BR_SLOT = 8 * 24576
R1 = 0
R2 = 18432
SPIN_MAX = 400000
ACK_B = 1
KVSTEP = 262144
NOKV = 0
LATE_V = 1
RANK_A = 1
PACE_A = 2
DBG_ARRIVE = 0
DBG_XCC = 4
DBG_PROG = 64
DBG_FAIL = 252

sStep, sSpin, sMode = 64, 65, 66
sACC, sACCN, sB, sBO, sK, sV, sKVM = 68, 70, 72, 74, 76, 78, 60
sSelE, sSelO, sC, sG, sM, sW = 62, 63, 59, 56, 57, 58

TRACE = False
WS_TRACE = WS_DIAG + (1 << 20)
def tr(e, i):
    if TRACE: e(f"s_memrealtime s[{86+2*i}:{87+2*i}]")
def tr_out(e):
    if not TRACE: return
    e(f"""s_waitcnt lgkmcnt(0)
s_lshl_b32 s48, s{S_WG}, 3
s_add_u32 s48, s48, s{S_WAVE}
s_lshl_b32 s48, s48, 6
s_add_u32 s48, s48, s{sStep}
s_lshl_b32 s48, s48, 5
s_add_u32 s48, s48, {WS_TRACE}
v_lshlrev_b32 v13, 2, v0
v_add_u32 v13, s48, v13""")
    for i in range(8): e(f"v_writelane_b32 v12, s{86+2*i}, {i}")
    e(f"s_mov_b64 exec, 0xff\nglobal_store_dword v13, v12, s[{P_WS}:{P_WS+1}]\ns_mov_b64 exec, -1")

def reduce4(e, alo, ahi, st, t=12):
    e(f"""ds_read2st64_b32 v[{t}:{t+1}], v{alo} offset0:0 offset1:{st}
ds_read2st64_b32 v[{t+2}:{t+3}], v{ahi} offset0:0 offset1:{st}
ds_read2st64_b32 v[{t+4}:{t+5}], v{alo} offset0:{2*st} offset1:{3*st}
ds_read2st64_b32 v[{t+6}:{t+7}], v{ahi} offset0:{2*st} offset1:{3*st}
s_waitcnt lgkmcnt(2)
v_add_f32 v{t}, v{t}, v{t+1}
v_add_f32 v{t+2}, v{t+2}, v{t+3}
s_waitcnt lgkmcnt(0)
v_add_f32 v{t+4}, v{t+4}, v{t+5}
v_add_f32 v{t+6}, v{t+6}, v{t+7}
v_add_f32 v{t}, v{t}, v{t+4}
v_add_f32 v{t+2}, v{t+2}, v{t+6}
v_cvt_pk_bf16_f32 v{t}, v{t}, v{t+2}""")

def publish_B(e, tail):
    ls, lb = e.label("Lslow"), e.label("Lback")
    e(f"""v_min_u32 v12, -2, v12
s_cmp_lg_u32 s{sMode}, 0
s_cbranch_scc1 {ls}
global_store_dword v6, v12, s[{sB}:{sB+1}]
global_store_dword v6, v11, s[{sBO}:{sBO+1}]
{lb}:""")
    tail.append(f"""{ls}:
global_store_dword v6, v12, s[{sB}:{sB+1}] sc1
global_store_dword v6, v11, s[{sBO}:{sBO+1}] sc1
s_branch {lb}""")

def advance(e):
    e(f"""s_add_u32 s{sStep}, s{sStep}, 1
s_mov_b64 s[{sACC}:{sACC+1}], s[{sACCN}:{sACCN+1}]
s_add_u32 s{sACCN}, s{sACCN}, {ACC_STEP}
s_addc_u32 s{sACCN+1}, s{sACCN+1}, 0
s_mov_b64 s[50:51], s[{sB}:{sB+1}]
s_mov_b64 s[{sB}:{sB+1}], s[{sBO}:{sBO+1}]
s_mov_b64 s[{sBO}:{sBO+1}], s[50:51]""")

def chain(e, L_done, kv_wait=None):
    tail = []
    Lfail = e.label("Lcfail")
    e(f"""s_and_b32 s{sG}, s{S_WG}, 7
s_lshr_b32 s{sM}, s{S_WG}, 3
s_and_b32 s{sW}, s{S_WAVE}, 3
s_mov_b32 s{sStep}, 0
s_mov_b32 s{sSpin}, 0
s_mov_b32 s{sSelE}, 0x05040100
s_mov_b32 s{sSelO}, 0x07060100
s_mov_b32 s{sC}, {hex(f32bits(128 ** -0.5 * math.log2(math.e)))}
s_add_u32 s{sACC}, s{P_WS}, {WS_ACC}
s_addc_u32 s{sACC+1}, s{P_WS+1}, 0
s_add_u32 s{sACCN}, s{sACC}, {ACC_STEP}
s_addc_u32 s{sACCN+1}, s{sACC+1}, 0
s_mul_i32 s48, s{sG}, 24576
s_add_u32 s48, s48, {WS_BR}
s_add_u32 s{sB}, s{P_WS}, s48
s_addc_u32 s{sB+1}, s{P_WS+1}, 0
s_add_u32 s{sBO}, s{sB}, {BR_SLOT}
s_addc_u32 s{sBO+1}, s{sB+1}, 0
s_add_u32 s{sK}, s{P_WS}, {WS_KB}
s_addc_u32 s{sK+1}, s{P_WS+1}, 0
s_add_u32 s{sV}, s{P_WS}, {WS_VB}
s_addc_u32 s{sV+1}, s{P_WS+1}, 0
s_add_u32 s{sKVM}, s{P_WS}, {WS_KVM}
s_addc_u32 s{sKVM+1}, s{P_WS+1}, 0
v_mov_b32 v11, -1""")
    e("""v_and_b32 v12, 3, v0
v_bfe_u32 v13, v0, 2, 3
v_lshrrev_b32 v14, 5, v0""")
    e("""v_mov_b32 v2, 0x4444
v_mov_b32 v15, 0xeeee
v_and_b32 v16, 8, v0
v_cmp_ne_u32 vcc, 0, v16
v_cndmask_b32 v2, v2, v15, vcc""")
    e(f"""s_lshl_b32 s48, s{S_WAVE}, 4
v_lshlrev_b32 v15, 2, v12
v_lshlrev_b32 v16, 1, v14
v_add3_u32 v15, v15, v16, s48
v_add_u32 v16, 1, v15
v_lshlrev_b32 v17, 5, v12
v_lshl_add_u32 v17, v14, 1, v17
v_add_u32 v17, 13, v17
v_add_u32 v18, 16, v17
s_cmp_eq_u32 s{S_WAVE}, 4
s_cselect_b64 s[48:49], -1, 0
v_cndmask_b32 v15, v15, v17, s[48:49]
v_cndmask_b32 v16, v16, v18, s[48:49]""")
    e("""v_cmp_le_u32 s[50:51], 2, v12
s_and_b64 s[50:51], s[50:51], s[48:49]
v_cmp_eq_u32 s[52:53], 2, v12
s_and_b64 s[52:53], s[52:53], s[48:49]
v_cmp_eq_u32 s[54:55], 3, v12""")
    for col, dst in ((15, 7), (16, 8)):
        e(f"""v_lshrrev_b32 v17, 2, v{col}
v_mul_u32_u24 v17, 160, v17
v_and_b32 v18, 3, v{col}
v_lshlrev_b32 v18, 5, v18
v_add_u32 v17, v17, v18
v_lshl_add_u32 v17, v13, 2, v17
v_add_u32 v{dst}, {R2}, v17""")
    e(f"""v_mov_b32 v17, {R2+128}
v_mov_b32 v18, {R2+132}
v_cndmask_b32 v7, v7, v18, s[50:51]
v_cndmask_b32 v8, v8, v18, s[52:53]
v_cndmask_b32 v8, v8, v17, s[54:55]""")
    e(f"""s_mul_i32 s67, s{sM}, 1280
s_lshl_b32 s48, s{S_WAVE}, 8
s_add_u32 s67, s67, s48
v_lshlrev_b32 v9, 2, v0
v_add_u32 v9, s67, v9""")
    Ln0 = e.label("Lnomem0")
    e(f"""s_cmp_lg_u32 s{sG}, 0
s_cbranch_scc1 {Ln0}
s_cmp_gt_u32 s{S_WAVE}, 4
s_cbranch_scc1 {Ln0}
s_lshl_b32 s48, s{sM}, 7
v_lshlrev_b32 v17, 11, v13
v_add_u32 v17, s48, v17
v_and_b32 v15, 63, v15
v_and_b32 v16, 63, v16
v_lshl_add_u32 v15, v15, 1, v17
v_lshl_add_u32 v16, v16, 1, v17
global_load_ushort v15, v15, s[{P_MEM0}:{P_MEM0+1}]
global_load_ushort v16, v16, s[{P_MEM0}:{P_MEM0+1}]
v_mov_b32 v17, 0x4100
s_waitcnt vmcnt(0)
v_cndmask_b32 v15, v15, 0, s[50:51]
v_cndmask_b32 v16, v16, 0, s[52:53]
v_cndmask_b32 v16, v16, v17, s[54:55]
v_lshl_or_b32 v15, v16, 16, v15
global_store_dword v9, v15, s[{sACC}:{sACC+1}] sc1
{Ln0}:""")
    Lz = e.label("Lz")
    e(f"""s_mul_i32 s48, s{S_WG}, 10240
s_lshl_b32 s49, s{S_WAVE}, 10
s_add_u32 s48, s48, s49
v_lshlrev_b32 v15, 4, v0
v_add_u32 v15, s48, v15
v_mov_b32 v16, 0
v_mov_b32 v17, 0
v_mov_b32 v18, 0
v_mov_b32 v19, 0
global_store_dwordx4 v15, v[16:19], s[{sACCN}:{sACCN+1}] sc1
s_cmp_gt_u32 s{S_WAVE}, 1
s_cbranch_scc1 {Lz}
v_add_u32 v15, 8192, v15
global_store_dwordx4 v15, v[16:19], s[{sACCN}:{sACCN+1}] sc1
{Lz}:""")
    LS2i, Lji = e.label("LS2i"), e.label("Lji")
    e(f"""s_lshr_b32 s48, s{sM}, 2
s_mul_i32 s48, s48, 6144
s_and_b32 s49, s{sM}, 3
s_cmp_ge_u32 s{S_WAVE}, 4
s_cbranch_scc1 {LS2i}""")
    e(f"""s_and_b32 s50, s{S_WAVE}, 1
s_lshl_b32 s51, s50, 3
v_lshl_add_u32 v15, v12, 1, v14
v_add_u32 v15, s51, v15
v_mul_u32_u24 v15, 96, v15
v_lshl_add_u32 v15, v13, 2, v15
v_add_u32 v4, {R1 + 2*1536}, v15
v_add_u32 v5, 32, v4
s_lshl_b32 s49, s49, 9
s_lshl_b32 s50, s50, 8
s_add_u32 s48, s48, s49
s_add_u32 s48, s48, s50
s_add_u32 s48, s48, 4096
s_branch {Lji}
{LS2i}:""")
    e(f"""s_lshl_b32 s51, s{sW}, 2
v_add_u32 v15, s51, v12
v_mul_u32_u24 v15, 96, v15
v_lshl_add_u32 v15, v13, 2, v15
v_xor_b32 v16, 1, v14
v_mul_u32_u24 v16, 1536, v16
v_add3_u32 v4, v15, v16, {R1}
v_add_u32 v5, 32, v4
s_lshl_b32 s49, s49, 10
s_lshl_b32 s50, s{sW}, 8
s_add_u32 s48, s48, s49
s_add_u32 s48, s48, s50
{Lji}:
v_lshlrev_b32 v6, 2, v0
v_add_u32 v6, s48, v6""")
    e(f"""global_store_dword v6, v11, s[{sB}:{sB+1}] sc1
global_store_dword v6, v11, s[{sBO}:{sBO+1}] sc1
s_waitcnt vmcnt(0)
s_barrier""")
    La = e.label("La")
    e(f"""s_cmp_lg_u32 s{S_WAVE}, 0
s_cbranch_scc1 {La}
s_getreg_b32 s48, hwreg(HW_REG_XCC_ID)
s_and_b32 s48, s48, 15
s_lshl_b32 s48, 1, s48
s_lshl_b32 s49, s{sG}, 2
s_mov_b64 exec, 1
v_mov_b32 v15, s49
v_mov_b32 v16, s48
global_atomic_or v15, v16, s[{P_DBG}:{P_DBG+1}] offset:{DBG_XCC}
s_waitcnt vmcnt(0)
v_mov_b32 v15, 0
v_mov_b32 v16, 1
global_atomic_add v15, v16, s[{P_DBG}:{P_DBG+1}] offset:{DBG_ARRIVE}
s_mov_b64 exec, -1
{La}:""")
    LS2 = e.label("LS2")
    e(f"s_cmp_ge_u32 s{S_WAVE}, 4\ns_cbranch_scc1 {LS2}")

    def wait_start():
        Lw = e.label("Lws")
        e(f"""s_lshl_b32 s49, s{sG}, 2
v_mov_b32 v12, 0
v_mov_b32 v13, s49
{Lw}:
s_sleep 4
global_load_dword v14, v12, s[{P_DBG}:{P_DBG+1}] offset:{DBG_ARRIVE} sc1
s_add_u32 s{sSpin}, s{sSpin}, 1
s_cmp_gt_u32 s{sSpin}, {SPIN_MAX}
s_cbranch_scc1 {Lfail}
s_waitcnt vmcnt(0)
v_readfirstlane_b32 s48, v14
s_cmp_lt_u32 s48, 128
s_cbranch_scc1 {Lw}
global_load_dword v14, v13, s[{P_DBG}:{P_DBG+1}] offset:{DBG_XCC} sc1
s_waitcnt vmcnt(0)
v_readfirstlane_b32 s48, v14
s_bcnt1_i32_b32 s48, s48
s_sub_u32 s{sMode}, s48, 1""")

    W1 = 64; G = 20; AC = 40
    e(f"""s_lshl_b32 s48, s{sG}, 2
s_lshr_b32 s49, s{sM}, 2
s_add_u32 s48, s48, s49
s_lshl_b32 s48, s48, 8
s_and_b32 s49, s{sM}, 3
s_lshl_b32 s49, s49, 6
s_add_u32 s48, s48, s49
s_lshl_b32 s49, s{sW}, 21
s_add_u32 s52, s48, s49
v_lshrrev_b32 v12, 2, v0
v_lshlrev_b32 v12, 13, v12
v_and_b32 v13, 3, v0
v_lshl_add_u32 v12, v13, 4, v12
s_lshl_b32 s53, s{sW}, 15""")
    e(f"""v_lshrrev_b32 v13, 5, v0
v_lshlrev_b32 v13, 6, v13
v_bfe_u32 v14, v0, 4, 1
v_lshl_add_u32 v13, v14, 3, v13
v_bfe_u32 v14, v0, 2, 2
v_add_u32 v13, v13, v14
v_lshlrev_b32 v13, 6, v13
v_and_b32 v14, 3, v0
v_lshl_add_u32 v13, v14, 3, v13
v_add_u32 v13, s53, v13""")
    def w1_dma(ptr, half):
        make_srd(e, SRD_W, ptr, 52, 0, 8388608)
        for x in range(16):
            e(f"""s_add_u32 m0, s53, {half*16384 + x*1024}
s_mov_b32 s54, {x*16*8192}
buffer_load_dwordx4 v12, s[{SRD_W}:{SRD_W+3}], s54 offen lds""")
    def w1_read(mat, half):
        for ch in range(2):
            for i in range(4):
                r = W1 + ((2 * mat + ch) * 4 + i) * 8
                for q in range(2):
                    for h in range(2):
                        e(f"ds_read_b64_tr_b16 v[{r+4*q+2*h}:{r+4*q+2*h+1}], v13 offset:{half*16384 + (128*q + 16*i + 4*h)*64 + 32*ch}")
    w1_dma(P_BWQ, 0); w1_dma(P_BWK, 1)
    e("s_waitcnt vmcnt(16)")
    w1_read(0, 0)
    e("s_waitcnt lgkmcnt(0)")
    w1_dma(P_BWV, 0)
    e("s_waitcnt vmcnt(16)")
    w1_read(1, 1)
    e("s_waitcnt vmcnt(0)")
    w1_read(2, 0)
    e(f"""s_lshl_b32 s48, s{sW}, 2
v_lshrrev_b32 v1, 4, v0
v_add_u32 v1, s48, v1
v_mul_u32_u24 v1, 1280, v1
v_and_b32 v14, 15, v0
v_lshl_add_u32 v1, v14, 4, v1
v_lshrrev_b32 v15, 5, v0
v_lshl_add_u32 v14, v15, 4, v14
v_lshrrev_b32 v15, 1, v14
v_mul_u32_u24 v15, 96, v15
v_and_b32 v14, 1, v14
v_lshl_add_u32 v15, v14, 5, v15
v_bfe_u32 v14, v0, 4, 1
v_lshl_add_u32 v15, v14, 4, v15
s_mul_i32 s48, s{sW}, 4608
s_add_u32 s48, s48, {R1}
v_add_u32 v3, s48, v15
s_waitcnt lgkmcnt(0)""")
    wait_start()
    e("s_barrier")
    e("s_barrier")
    e("s_setprio 3\ns_mov_b32 s67, 0x41000000")
    stamp(e, 1, True)
    L1, LpA, L1x = e.label("L1"), e.label("LpA"), e.label("L1x")
    e(f"{L1}:")
    tr(e, 7)
    e(f"{LpA}:")
    tr(e, 0)
    e(f"global_load_dwordx4 v[{G+16}:{G+19}], v1, s[{sACC}:{sACC+1}] offset:1024 sc1")
    for i in range(4):
        e(f"global_load_dwordx4 v[{G+4*i}:{G+4*i+3}], v1, s[{sACC}:{sACC+1}] offset:{256*i} sc1")
    e(f"s_add_u32 s{sSpin}, s{sSpin}, 1\ns_cmp_gt_u32 s{sSpin}, {SPIN_MAX}\ns_cbranch_scc1 {Lfail}")
    for r in range(24): e(f"v_mov_b32 v{AC+r}, 0")
    for i in range(4):
        e(f"s_waitcnt vmcnt({3-i})")
        d3 = G + 4 * i + 3
        if i == 3: tr(e, 1)
        e(f"v_min_u32 v10, v{d3}, v{G+19 if i == 0 else 10}")
        e(f"v_perm_b32 v{d3}, v{G+16+i//2}, v{d3}, s{sSelO if i & 1 else sSelE}")
        if i == 3:
            e(f"v_cmp_gt_u32 vcc, s67, v10")
        for c in range(6):
            w = W1 + (c * 4 + i) * 8
            e(f"v_smfmac_f32_16x16x64_bf16 v[{AC+4*c}:{AC+4*c+3}], v[{G+4*i}:{G+4*i+3}], v[{w}:{w+7}], v2")
            if i == 3 and c == 0:
                e(f"s_cbranch_vccnz {LpA}_retry")
    tail.append(f"{LpA}_retry:\ns_nop 7\ns_branch {LpA}")
    for p in range(3):
        a, b = AC + 8 * p, AC + 8 * p + 4
        for r in range(4): e(f"v_permlane32_swap_b32 v{a+r}, v{b+r}")
        for r in range(4): e(f"v_add_f32 v{a+r}, v{a+r}, v{b+r}")
        e(f"ds_write_b128 v3, v[{a}:{a+3}] offset:{p*1536}")
    tr(e, 2)
    e("s_waitcnt lgkmcnt(0)\ns_barrier")
    tr(e, 3)
    Lnp = e.label("Lnp")
    e(f"s_cmp_gt_u32 s{S_WAVE}, 1\ns_cbranch_scc1 {Lnp}_o")
    reduce4(e, 4, 5, 18)
    publish_B(e, tail)
    e(f"{Lnp}:")
    tail.append(f"""{Lnp}_o:
s_lshl_b32 s48, s{S_WG}, 3
s_add_u32 s48, s48, s{S_WAVE}
s_cmp_lg_u32 s48, 2
s_cbranch_scc1 {Lnp}
v_mov_b32 v12, 0
v_mov_b32 v13, s{sStep}
s_mov_b64 exec, 1
global_store_dword v12, v13, s[{P_DBG}:{P_DBG+1}] offset:{DBG_PROG} sc1
s_mov_b64 exec, -1
s_branch {Lnp}""")
    e(f"s_cmp_eq_u32 s{sStep}, 63\ns_cbranch_scc1 {L1x}")
    tr_out(e)
    e("s_waitcnt vmcnt(0)\ns_barrier")
    tr(e, 4)
    reduce4(e, 7, 8, 10)
    if RANK_A: e(f"global_atomic_pk_add_bf16 v13, v9, v12, s[{sACCN}:{sACCN+1}] sc0")
    else: e(f"global_atomic_pk_add_bf16 v9, v12, s[{sACCN}:{sACCN+1}]")
    tr(e, 5)
    advance(e)
    e("s_waitcnt vmcnt(0)")
    tr(e, 6)
    if PACE_A: e(f"s_sleep {PACE_A}")
    if RANK_A:
        Lr = e.label("Lrank")
        e(f"""v_and_b32 v13, 0xffff0000, v13
v_cvt_u32_f32 v13, v13
v_readlane_b32 s48, v13, 3
{Lr}:
s_cmp_ge_u32 s48, 7
s_cbranch_scc1 {L1}
s_add_u32 s48, s48, 1
s_sleep {RANK_A}
s_branch {Lr}""")
    e(f"s_branch {L1}")
    e(f"{L1x}:\ns_setprio 0\ns_branch {L_done}")

    e(f"{LS2}:")
    T, VV, S0, S1_, SM, PX, PM, YM, O, LS, YX, KX, VX, WO = 28, 44, 52, 56, 60, 64, 68, 72, 88, 104, 108, 124, 156, 188
    ON16, ON32 = 22, 24
    e(f"""s_lshl_b32 s48, s{sG}, 2
s_add_u32 s48, s48, s{sW}
s_lshl_b32 s55, s48, 13
s_lshl_b32 s48, s48, 18
s_lshl_b32 s49, s{sM}, 7
s_add_u32 s52, s48, s49
v_lshrrev_b32 v12, 3, v0
v_lshlrev_b32 v12, 11, v12
v_and_b32 v13, 7, v0
v_lshl_add_u32 v12, v13, 4, v12
s_lshl_b32 s53, s{sW}, 13
s_add_u32 s53, s53, 131072
v_lshrrev_b32 v13, 4, v0
v_lshlrev_b32 v13, 3, v13
v_bfe_u32 v14, v0, 2, 2
v_add_u32 v13, v13, v14
v_lshlrev_b32 v13, 7, v13
v_and_b32 v14, 3, v0
v_lshl_add_u32 v13, v14, 3, v13
v_add_u32 v13, s53, v13""")
    make_srd(e, SRD_W, P_BWO, 52, 0, 8388608)
    for rnd in range(2):
        for x in range(8):
            e(f"""s_add_u32 m0, s53, {x*1024}
s_mov_b32 s54, {(rnd*64 + x*8)*2048}
buffer_load_dwordx4 v12, s[{SRD_W}:{SRD_W+3}], s54 offen lds""")
        e("s_waitcnt vmcnt(0)")
        for ct in range(4):
            for jj in range(2):
                r = WO + (ct * 4 + rnd * 2 + jj) * 4
                for h in range(2):
                    e(f"ds_read_b64_tr_b16 v[{r+2*h}:{r+2*h+1}], v13 offset:{(32*jj + 4*h)*128 + 32*ct}")
        e("s_waitcnt lgkmcnt(0)")
    e(f"""s_mul_i32 s48, s{sW}, 6144
v_lshlrev_b32 v14, 4, v0
v_add_u32 v1, s48, v14
v_add_u32 v20, s55, v14
s_lshr_b32 s55, s55, 1
v_and_b32 v15, 15, v0
v_lshrrev_b32 v16, 2, v15
v_mul_u32_u24 v16, 160, v16
v_and_b32 v15, 3, v15
v_lshl_add_u32 v16, v15, 5, v16
v_bfe_u32 v15, v0, 4, 1
v_lshl_add_u32 v16, v15, 4, v16
s_mul_i32 s48, s{sW}, 2560
s_add_u32 s48, s48, {R2}
v_add_u32 v3, s48, v16
v_mov_b32 v{ON32}, 0x3f803f80
v_mov_b32 v{ON32+1}, 0x3f803f80
v_mov_b32 v{ON32+2}, 0x3f803f80
v_mov_b32 v{ON32+3}, 0x3f803f80
v_cmp_gt_u32 vcc, 32, v0
v_cndmask_b32 v{ON16}, 0, v{ON32}, vcc
v_cndmask_b32 v{ON16+1}, 0, v{ON32}, vcc""")
    e(f"""v_lshrrev_b32 v15, 4, v0
v_lshlrev_b32 v15, 7, v15
v_and_b32 v16, 7, v0
v_lshl_add_u32 v15, v16, 4, v15
s_cmp_lt_u32 s{sM}, 4
s_cselect_b64 vcc, -1, 0
v_cndmask_b32 v21, v14, v15, vcc
v_add_u32 v21, s55, v21""")
    wait_start()
    e("s_barrier")
    e(f"""s_mul_i32 s48, s{sW}, 2560
s_add_u32 s48, s48, {R2+128}
v_mov_b32 v12, s48
v_mov_b32 v14, 0x3e800000
v_mov_b32 v15, 0
ds_write_b64 v12, v[14:15]
s_waitcnt lgkmcnt(0)
s_barrier
s_setprio 2""")
    def kv_loads(reg, base):
        if NOKV: return ["s_nop 0"] * 8
        return [f"global_load_dwordx4 v[{reg+4*x}:{reg+4*x+3}], v{20 if x < 4 else 19}, s[{base}:{base+1}] offset:{(x%4)*1024} sc1" for x in range(8)]
    def yx():
        for ct in range(4):
            for tt in range(2):
                a = YM + (ct * 2 + tt) * 4
                for ks in range(4):
                    c = "0" if ks == 0 else f"v[{a}:{a+3}]"
                    e(f"v_mfma_f32_16x16x32_bf16 v[{a}:{a+3}], v[{VX+(tt*4+ks)*4}:{VX+(tt*4+ks)*4+3}], v[{WO+(ct*4+ks)*4}:{WO+(ct*4+ks)*4+3}], {c}")
        for ct in range(4):
            for x in range(4):
                a = YM + ct * 8 + 2 * x
                e(f"v_cvt_pk_bf16_f32 v{YX+ct*4+x}, v{a}, v{a+1}")
        for r in range(16): e(f"v_mov_b32 v{YM+r}, 0")
    if kv_wait: kv_wait(e, Lfail, first=True)
    e("v_add_u32 v19, 4096, v20")
    for l in kv_loads(VX, sV): e(l)
    for l in kv_loads(KX, sK): e(l)
    e("s_waitcnt vmcnt(8)")
    yx()
    L2, LpB, L2x = e.label("L2"), e.label("LpB"), e.label("L2x")
    e(f"{L2}:\ns_barrier")
    tr(e, 0)
    reduce4(e, 4, 5, 18)
    publish_B(e, tail)
    tr(e, 1)
    e(f"""s_add_u32 s{sV}, s{sV}, {KVSTEP}
s_addc_u32 s{sV+1}, s{sV+1}, 0
s_add_u32 s{sK}, s{sK}, {KVSTEP}
s_addc_u32 s{sK+1}, s{sK+1}, 0
v_add_u32 v18, 4096, v1
v_add_u32 v19, 4096, v20""")
    if ACK_B: e("s_waitcnt vmcnt(0)")
    tr(e, 2)
    e(f"{LpB}:")
    tr(e, 7)
    pieces = [(T + 4 * ks, 1, 1024 * ks) for ks in range(4)] + [(VV + 4 * u, 18, 1024 * u) for u in range(2)]
    ldB = [f"global_load_dwordx4 v[{r}:{r+3}], v{a}, s[{sB}:{sB+1}] offset:{o} sc1" for r, a, o in pieces]
    if LATE_V:
        for l in ldB[:4]: e(l)
        e("s_waitcnt vmcnt(3)")
        for l in ldB[4:]: e(l)
    else:
        for l in ldB: e(l)
    for i in range(5):
        e(f"{LpB}_c{i}:")
        t = pieces[i][0]
        if i < 4:
            e(f"s_waitcnt vmcnt({5-i})\nv_max3_u32 v10, v{t}, v{t+1}, v{t+2}\nv_max_u32 v10, v10, v{t+3}")
        else:
            e(f"s_waitcnt vmcnt(0)\nv_max3_u32 v10, v{t}, v{t+1}, v{t+2}\nv_max3_u32 v10, v{t+3}, v{t+4}, v10\nv_max3_u32 v10, v{t+5}, v{t+6}, v10\nv_max_u32 v10, v10, v{t+7}")
        e(f"v_cmp_eq_u32 vcc, -1, v10\ns_cbranch_vccnz {LpB}_r{i}")
        tail.append(f"{LpB}_r{i}:\n" + "\n".join(ldB[i:]) + f"\ns_add_u32 s{sSpin}, s{sSpin}, 1\ns_cmp_gt_u32 s{sSpin}, {SPIN_MAX}\ns_cbranch_scc1 {Lfail}\ns_branch {LpB}_c{i}")
        if i < 4:
            for (a, kreg) in ((S0, KX + i * 4), (S1_, KX + (4 + i) * 4), (SM, t)):
                c = "0" if i == 0 else f"v[{a}:{a+3}]"
                e(f"v_mfma_f32_16x16x32_bf16 v[{a}:{a+3}], v[{kreg}:{kreg+3}], v[{t}:{t+3}], {c}")
    e(f"s_cmp_eq_u32 s{sStep}, 63\ns_cbranch_scc1 {L2x}")
    tr(e, 3)
    ym = []
    for u in range(2):
        for ct in range(4):
            ym.append(f"v_smfmac_f32_16x16x64_bf16 v[{YM+4*ct}:{YM+4*ct+3}], v[{VV+4*u}:{VV+4*u+3}], v[{WO+(ct*4+2*u)*4}:{WO+(ct*4+2*u)*4+7}], v2")
    vl = kv_loads(VX, sV)
    sm = []
    sm.append(f"v_max3_f32 v12, v{S0}, v{S0+1}, v{S0+2}")
    sm.append(f"v_max3_f32 v13, v{S0+3}, v{S1_}, v{S1_+1}")
    sm.append(f"v_max3_f32 v12, v{S1_+2}, v{S1_+3}, v12")
    sm.append(f"v_max_f32 v12, v12, v13\ns_mov_b32 exec_hi, 0")
    sm.append(f"v_max3_f32 v12, v{SM}, v{SM+1}, v12")
    sm.append(f"v_max3_f32 v12, v{SM+2}, v{SM+3}, v12\ns_mov_b32 exec_hi, -1")
    sm.append("v_mov_b32 v13, v12")
    sm.append("v_permlane16_swap_b32 v12, v13")
    sm.append("v_max_f32 v12, v12, v13")
    sm.append("v_mov_b32 v13, v12")
    sm.append("v_permlane32_swap_b32 v12, v13")
    sm.append("v_max_f32 v12, v12, v13")
    sm.append(f"v_mul_f32 v12, s{sC}, v12")
    e(ym[0]); e(sm[0]); e(sm[1]); e(ym[1]); e(sm[2]); e(sm[3]); e(sm[4]); e(sm[5]); e(sm[6]); e(ym[2]); e(vl[0]); e(sm[7]); e(sm[8]); e(sm[9]); e(ym[3]); e(vl[1]); e(sm[10]); e(sm[11]); e(sm[12])
    regs = [S0 + i for i in range(12)]
    for i, r in enumerate(regs):
        e(f"v_fma_f32 v{r}, v{r}, s{sC}, -v12")
        if i >= 1: e(f"v_exp_f32 v{regs[i-1]}, v{regs[i-1]}")
        if i in (0, 2, 4, 6): e(ym[4 + i // 2])
        if i in (1, 5, 9): e(vl[2 + i // 4])
    e(f"v_exp_f32 v{regs[-1]}, v{regs[-1]}")
    for x in range(4): e(f"v_cvt_pk_bf16_f32 v{PX+x}, v{S0+2*x}, v{S0+2*x+1}")
    e(f"v_cvt_pk_bf16_f32 v{PM}, v{SM}, v{SM+1}\nv_cvt_pk_bf16_f32 v{PM+1}, v{SM+2}, v{SM+3}")
    e(f"v_mfma_f32_16x16x32_bf16 v[{LS}:{LS+3}], v[{PX}:{PX+3}], v[{ON32}:{ON32+3}], 0")
    e(f"v_mov_b32 v{PM+2}, v{PM}\nv_mov_b32 v{PM+3}, v{PM+1}")
    e(f"v_mfma_f32_16x16x32_bf16 v[{O}:{O+3}], v[{PX}:{PX+3}], v[{YX}:{YX+3}], 0")
    e(f"v_permlane32_swap_b32 v{PM}, v{PM+2}\nv_permlane32_swap_b32 v{PM+1}, v{PM+3}")
    e(f"v_mfma_f32_16x16x32_bf16 v[{O+4}:{O+7}], v[{PX}:{PX+3}], v[{YX+4}:{YX+7}], 0")
    for ct in range(2):
        e(f"v_cvt_pk_bf16_f32 v{YM+4*ct}, v{YM+4*ct}, v{YM+4*ct+1}\nv_cvt_pk_bf16_f32 v{YM+4*ct+1}, v{YM+4*ct+2}, v{YM+4*ct+3}")
    e(f"v_mfma_f32_16x16x16_bf16 v[{LS}:{LS+3}], v[{PM}:{PM+1}], v[{ON16}:{ON16+1}], v[{LS}:{LS+3}]")
    e(f"v_mfma_f32_16x16x32_bf16 v[{O+8}:{O+11}], v[{PX}:{PX+3}], v[{YX+8}:{YX+11}], 0")
    for ct in range(2, 4):
        e(f"v_cvt_pk_bf16_f32 v{YM+4*ct}, v{YM+4*ct}, v{YM+4*ct+1}\nv_cvt_pk_bf16_f32 v{YM+4*ct+1}, v{YM+4*ct+2}, v{YM+4*ct+3}")
    e(f"v_mfma_f32_16x16x32_bf16 v[{O+12}:{O+15}], v[{PX}:{PX+3}], v[{YX+12}:{YX+15}], 0")
    for ct in range(4):
        e(f"v_mfma_f32_16x16x16_bf16 v[{O+4*ct}:{O+4*ct+3}], v[{PM}:{PM+1}], v[{YM+4*ct}:{YM+4*ct+1}], v[{O+4*ct}:{O+4*ct+3}]")
        if ct < 3: e(vl[5 + ct])
    for r in range(4): e(f"v_rcp_f32 v{LS+r}, v{LS+r}")
    e("s_mov_b32 exec_lo, 0")
    for ct in range(4):
        for r in range(4): e(f"v_mul_f32 v{O+4*ct+r}, v{O+4*ct+r}, v{LS+r}")
        e(f"ds_write_b128 v3, v[{O+4*ct}:{O+4*ct+3}] offset:{ct*640}")
    tr(e, 4)
    e("s_mov_b64 exec, -1\ns_waitcnt lgkmcnt(0)\ns_barrier")
    tr(e, 5)
    Lna = e.label("Lna")
    e(f"s_cmp_lg_u32 s{S_WAVE}, 4\ns_cbranch_scc1 {Lna}")
    reduce4(e, 7, 8, 10)
    e(f"global_atomic_pk_add_bf16 v9, v12, s[{sACCN}:{sACCN+1}]\nv_add_u32 v19, 4096, v20\n{Lna}:")
    for l in kv_loads(KX, sK): e(l)
    def persist():
        Lp = e.label("Lp")
        e(f"s_cmp_gt_u32 s{sM}, 5\ns_cbranch_scc1 {Lp}")
        for mm in range(6):
            Ln = e.label("Lpn")
            e(f"s_cmp_lg_u32 s{sM}, {mm}\ns_cbranch_scc1 {Ln}")
            if mm < 4:
                e(f"s_mov_b32 exec_lo, 0x00ff00ff\ns_mov_b32 exec_hi, 0x00ff00ff\nglobal_store_dwordx4 v21, v[{T+4*mm}:{T+4*mm+3}], s[{sKVM}:{sKVM+1}] offset:{512*mm} sc1\ns_mov_b64 exec, -1")
            else:
                e(f"global_store_dwordx4 v21, v[{VV+4*(mm-4)}:{VV+4*(mm-4)+3}], s[{sKVM}:{sKVM+1}] offset:{2048+1024*(mm-4)} sc1")
            e(f"{Ln}:")
        e(f"{Lp}:\ns_add_u32 s{sKVM}, s{sKVM}, 131072\ns_addc_u32 s{sKVM+1}, s{sKVM+1}, 0")
    e("s_waitcnt vmcnt(8)")
    persist()
    yx()
    tr(e, 6)
    tr_out(e)
    advance(e)
    if kv_wait: kv_wait(e, Lfail, first=False)
    e(f"s_branch {L2}")
    e(f"{L2x}:\ns_setprio 0")
    persist()
    e(f"s_branch {L_done}")
    for t in tail: e(t)
    e(f"""{Lfail}:
s_mov_b64 exec, -1
v_mov_b32 v12, 0
v_mov_b32 v13, 1
global_store_dword v12, v13, s[{P_DBG}:{P_DBG+1}] offset:{DBG_FAIL}
s_endpgm""")

import struct
def f32bits(x): return struct.unpack("<I", struct.pack("<f", x))[0]
```

```python
from emit import Emit, fix_hazards

P_AX, P_AWQ, P_AWK, P_AWV, P_AWO, P_BX, P_MEM0, P_BWQ, P_BWK, P_BWV, P_BWO, P_SEG, P_OUT, P_DBG, P_WS = [4 + 2 * i for i in range(15)]
S_WAVE = 34
S_WG = 35
SRD_X, SRD_W, SRD_O = 36, 40, 44

MB = 1 << 20
WS_QB = 0
WS_KB = 16 * MB
WS_VB = 32 * MB
WS_OB = 48 * MB
WS_OA = 64 * MB
WS_KA = 68 * MB
WS_VA = WS_KA + 131072
WS_KVM = 69 * MB
WS_ACC = 77 * MB
WS_BR = 79 * MB
WS_DIAG = 80 * MB
WS_OP = 96 * MB
WS_SIZE = 268435456

def kernel_begin(e, name):
    e(f""".globl {name}
.p2align 8
.type {name},@function
{name}:""")

def load_args(e):
    e("""s_load_dwordx16 s[4:19], s[0:1], 0
s_load_dwordx8 s[20:27], s[0:1], 64
s_load_dwordx4 s[28:31], s[0:1], 96
s_load_dwordx2 s[32:33], s[0:1], 112
v_lshrrev_b32 v1, 6, v0
s_mov_b32 s35, s2
v_readfirstlane_b32 s34, v1
v_and_b32 v0, 63, v0
s_waitcnt lgkmcnt(0)""")

def descriptor(name, vgpr=256, sgpr=102):
    return f""".p2align 6
.amdhsa_kernel {name}
  .amdhsa_next_free_vgpr {vgpr}
  .amdhsa_next_free_sgpr {sgpr}
  .amdhsa_accum_offset {vgpr}
  .amdhsa_group_segment_fixed_size 0
  .amdhsa_kernarg_size 120
  .amdhsa_user_sgpr_count 2
  .amdhsa_user_sgpr_kernarg_segment_ptr 1
  .amdhsa_system_sgpr_workgroup_id_x 1
.end_amdhsa_kernel
"""

def make_srd(e, srd, ptr, off_sreg=None, off_imm=0, size=None):
    if off_imm:
        e(f"s_add_u32 s{srd}, s{ptr}, {off_imm}\ns_addc_u32 s{srd+1}, s{ptr+1}, 0")
    else:
        e(f"s_mov_b32 s{srd}, s{ptr}\ns_mov_b32 s{srd+1}, s{ptr+1}")
    e(f"s_mov_b32 s{srd+2}, {size - off_imm}")
    if off_sreg is not None:
        e(f"s_add_u32 s{srd}, s{srd}, s{off_sreg}\ns_addc_u32 s{srd+1}, s{srd+1}, 0\ns_sub_u32 s{srd+2}, s{srd+2}, s{off_sreg}")
    e(f"s_and_b32 s{srd+1}, s{srd+1}, 0xffff\ns_mov_b32 s{srd+3}, 0x20000")

DIAG = False
def sreg(i): return 80 + i if i < 12 else {12: 91, 13: 91, 14: 100, 15: 101}[i]
def stamp(e, i, real=False):
    if not DIAG: return
    e(f"{'s_memrealtime' if real else 's_memtime'} s[98:99]\ns_waitcnt lgkmcnt(0)\ns_mov_b32 s{sreg(i)}, s98")
def stamps_out(e, n, base=0):
    if not DIAG: return
    e(f"""s_lshl_b32 s96, s{S_WG}, 3
s_add_u32 s96, s96, s{S_WAVE}
s_lshl_b32 s96, s96, 6
s_add_u32 s96, s96, {WS_DIAG + base}
s_add_u32 s98, s{P_WS}, s96
s_addc_u32 s99, s{P_WS+1}, 0
v_mov_b32 v1, 0""")
    for i in range(n):
        e(f"v_mov_b32 v2, s{sreg(i)}\nglobal_store_dword v1, v2, s[98:99] offset:{4*i}")
```

```python
import re

class Emit:
    def __init__(self):
        self.lines = []
        self.nlab = 0
    def __call__(self, s):
        for ln in s.split("\n"):
            ln = ln.strip()
            if ln:
                self.lines.append(ln)
    def label(self, base="L"):
        self.nlab += 1
        return f"{base}_{self.nlab}"
    def text(self):
        return "\n".join(self.lines) + "\n"

_REG = re.compile(r"^(-?)(?:abs\()?\|?([vas])(?:(\d+)|\[(\d+):(\d+)\])\|?\)?$")
def regs_of(tok):
    tok = tok.strip()
    if tok == "vcc": return {("s", 106), ("s", 107)}
    if tok == "vcc_lo": return {("s", 106)}
    if tok == "vcc_hi": return {("s", 107)}
    if tok == "exec": return {("s", 126), ("s", 127)}
    if tok == "m0": return {("s", 124)}
    m = _REG.match(tok)
    if not m: return set()
    k = m.group(2)
    if m.group(3) is not None: return {(k, int(m.group(3)))}
    return {(k, i) for i in range(int(m.group(4)), int(m.group(5)) + 1)}

TRANS = ("v_exp_f32", "v_log_f32", "v_rcp_f32", "v_rsq_f32", "v_sqrt_f32", "v_sin_f32", "v_cos_f32", "v_rcp_iflag_f32")

def split_ops(rest):
    ops = []; cur = ""; d = 0
    for ch in rest:
        if ch in "[(": d += 1
        if ch in "])": d -= 1
        if ch == "," and d == 0:
            ops.append(cur.strip()); cur = ""
        else: cur += ch
    if cur.strip(): ops.append(cur.strip())
    mods = []
    if ops:
        parts = ops[-1].split()
        ops[-1] = parts[0]; mods = parts[1:]
    return ops, mods

class Ins:
    __slots__ = ("op", "kind", "wr", "rd", "passes", "srcc", "srcab", "states", "stdata", "lds", "dpp", "text")

def mfma_passes(op):
    if "32x32x16" in op or "32x32x8" in op or "smfmac_f32_32x32x32" in op: return 8
    if "16x16x32" in op or "16x16x16" in op or "smfmac_f32_16x16x64" in op: return 4
    if "4x4x4" in op: return 2
    raise ValueError(op)

def parse(ln):
    i = Ins(); i.text = ln
    code = ln.split(";")[0].strip()
    i.states = 1; i.wr = set(); i.rd = set(); i.passes = 0; i.srcc = set(); i.srcab = set(); i.stdata = set(); i.lds = False; i.dpp = False
    if not code or code.endswith(":") or code.startswith("."):
        i.op = None; i.kind = "label" if code.endswith(":") else "dir"; i.states = 0
        return i
    parts = code.split(None, 1)
    op = parts[0]; rest = parts[1] if len(parts) > 1 else ""
    for suf in ("_e32", "_e64", "_dpp", "_sdwa"):
        if op.endswith(suf):
            if suf == "_dpp": i.dpp = True
            op = op[:-len(suf)]
    i.op = op
    ops, mods = split_ops(rest)
    if any(m.startswith(("row_", "quad_perm", "wave_")) for m in mods): i.dpp = True
    R = [regs_of(o) for o in ops]
    if op == "s_nop":
        i.kind = "salu"; i.states = int(ops[0], 0) + 1; return i
    if op.startswith("v_mfma") or op.startswith("v_smfmac"):
        i.kind = "mfma"; i.passes = mfma_passes(op)
        i.wr = set(R[0])
        if op.startswith("v_smfmac"):
            i.srcc = set(R[0]); i.srcab = R[1] | R[2] | R[3]
        else:
            i.srcc = set(R[3]); i.srcab = R[1] | R[2]
        i.rd = i.srcc | i.srcab
        return i
    if op.startswith("v_"):
        i.kind = "valu"
        if op.startswith("v_cmpx"):
            i.wr = R[0] | regs_of("exec"); i.rd = set().union(*R[1:])
        elif op.startswith("v_permlane") and "swap" in op:
            i.wr = R[0] | R[1]; i.rd = R[0] | R[1]
        elif op in ("v_add_co_u32", "v_sub_co_u32", "v_addc_co_u32", "v_subb_co_u32", "v_subrev_co_u32", "v_div_scale_f32", "v_mad_u64_u32"):
            i.wr = R[0] | R[1]; i.rd = set().union(*R[2:])
        elif op == "v_nop":
            pass
        else:
            i.wr = set(R[0]); i.rd = set().union(*R[1:]) if len(R) > 1 else set()
            if op in ("v_fmac_f32", "v_dot2c_f32_bf16", "v_writelane_b32") or i.dpp: i.rd |= R[0]
            if op == "v_cndmask_b32" and len(R) == 3: i.rd |= regs_of("vcc")
        return i
    if op.startswith(("buffer_", "global_", "flat_", "scratch_")):
        i.kind = "vmem"
        if op in ("buffer_inv", "buffer_wbl2"): return i
        islds = ("lds" in mods) or ("_lds_" in op)
        i.lds = islds
        if "load" in op and not islds:
            i.wr = set(R[0]); i.rd = set().union(*R[1:])
        elif islds:
            i.rd = set().union(*R) | regs_of("m0")
        elif "atomic" in op:
            ret = "sc0" in mods
            if op.startswith("global_") and ret:
                i.wr = set(R[0]); i.rd = set().union(*R[1:])
            else:
                i.rd = set().union(*R)
                if ret: i.wr = set(R[0])
        else:
            i.rd = set().union(*R)
            data = R[0] if op.startswith("buffer_") else R[1]
            if "x3" in op or "x4" in op: i.stdata = set(data)
        return i
    if op.startswith("ds_"):
        i.kind = "ds"
        if "read" in op or "permute" in op or "swizzle" in op or "_rtn" in op:
            i.wr = set(R[0]); i.rd = set().union(*R[1:])
        else:
            i.rd = set().union(*R)
        return i
    if op.startswith("s_"):
        i.kind = "salu"
        if op.startswith(("s_load", "s_buffer_load", "s_memtime", "s_memrealtime")):
            i.kind = "smem"; i.wr = set(R[0]); i.rd = set().union(*R[1:]) if len(R) > 1 else set()
        elif op.startswith(("s_cmp", "s_bitcmp", "s_cbranch", "s_branch", "s_waitcnt", "s_barrier", "s_endpgm", "s_sleep", "s_setprio", "s_setpc")):
            i.rd = set().union(*R) if R else set()
        else:
            i.wr = set(R[0]) if R else set(); i.rd = set().union(*R[1:]) if len(R) > 1 else set()
            if "saveexec" in op: i.wr |= regs_of("exec")
        return i
    raise ValueError("unknown instruction: " + ln)

D2AB = {2: 5, 4: 8, 8: 12, 16: 20}
D2C_OV = {2: 4, 4: 6, 8: 10, 16: 18}
C_WAR = {2: 1, 4: 3, 8: 7, 16: 15}
def isv(r): return r[0] in "va"
def need(p, c):
    n = 0
    if p.kind == "valu":
        vw = {r for r in p.wr if isv(r)}; sw = {r for r in p.wr if r[0] == "s"}
        if c.kind == "mfma" and vw & c.rd: n = max(n, 2)
        if c.kind == "valu":
            if c.op.startswith("v_permlane") and vw & c.rd: n = max(n, 2)
            if c.dpp and vw & c.rd: n = max(n, 2)
            if c.op in ("v_readlane_b32", "v_readfirstlane_b32") and vw & c.rd: n = max(n, 1)
            if p.op in TRANS and vw & c.rd and c.op not in TRANS: n = max(n, 1)
            if p.op in TRANS and vw & c.rd: n = max(n, 1)
            if sw & c.rd:
                n = max(n, 4 if c.op in ("v_readlane_b32", "v_writelane_b32") else 2)
            if ("s", 126) in sw:
                if c.dpp: n = max(n, 5)
                if c.op in ("v_readlane_b32", "v_readfirstlane_b32", "v_writelane_b32") or c.op.startswith("v_permlane"): n = max(n, 4)
        if c.kind == "mfma" and ("s", 126) in sw: n = max(n, 4)
        if c.kind == "vmem" and sw & c.rd: n = max(n, 5)
        if c.kind in ("salu",) and sw & c.rd: n = max(n, 1)
    if p.kind == "salu":
        if ("s", 124) in p.wr and c.kind == "vmem" and c.lds: n = max(n, 1)
    if p.kind == "vmem" and p.stdata:
        if c.kind in ("valu", "mfma") and p.stdata & c.wr: n = max(n, 2)
        elif p.stdata & c.wr: n = max(n, 1)
    if p.kind == "mfma":
        if c.kind == "mfma":
            if p.wr & c.srcab: n = max(n, D2AB[p.passes])
            if p.wr & c.srcc:
                if p.wr == c.srcc and p.op == c.op: n = max(n, 2 if p.passes == 2 else 0)
                else: n = max(n, D2C_OV[p.passes])
            elif p.wr & c.wr: n = max(n, D2C_OV[p.passes])
        elif c.kind in ("valu", "vmem", "ds"):
            if p.wr & (c.rd | c.wr): n = max(n, D2AB[p.passes])
            if c.kind == "valu" and p.srcc & c.wr: n = max(n, C_WAR[p.passes])
    return n

def fix_hazards(lines, window=24, verbose=False):
    ins = [parse(l) for l in lines]
    out = []
    added = 0
    def required(hist, c):
        req = 0; dist = 0
        for p in reversed(hist):
            if p.op is None: continue
            if dist >= window: break
            r = need(p, c) - dist
            if r > req: req = r
            dist += p.states
        return req
    for c in ins:
        if c.op is not None:
            hist = []
            for p in reversed(out):
                if p.op in ("s_branch", "s_endpgm", "s_setpc_b64"): break
                hist.append(p)
                if len(hist) > 64: break
            hist.reverse()
            r = required(hist, c)
            while r > 0:
                k = min(r, 16)
                out.append(parse(f"s_nop {k-1}")); added += 1; r -= k
        out.append(c)
    labels = {p.text.split(";")[0].strip()[:-1]: i for i, p in enumerate(out) if p.kind == "label"}
    problems = []
    for i, b in enumerate(out):
        if b.op and (b.op.startswith("s_cbranch") or b.op == "s_branch"):
            tgt = b.text.split(";")[0].split()[1]
            if tgt not in labels: continue
            hist = [p for p in out[max(0, i - 64):i + 1]]
            j = labels[tgt]; dist = 0
            while j < len(out) and dist < window:
                c = out[j]
                if c.op is not None:
                    r = required(hist, c)
                    if r > 0: problems.append((b.text, c.text, r))
                    hist = hist + [c]
                    dist += c.states
                    if c.op in ("s_branch", "s_endpgm"): break
                j += 1
    if problems:
        for p in problems: print("HAZARD across branch:", p)
        raise SystemExit("fix branch-edge hazards by hand")
    if verbose: print("inserted", added, "s_nop")
    return [p.text for p in out]
```

```python
from common import *

class Gemm:
    def __init__(self, BM, BN, WM, WN, K, NST, xmode, xstride, wstride, acc0=128, swap=False, ld=""):
        assert WM * WN == 8
        self.BM, self.BN, self.WM, self.WN, self.K, self.NST = BM, BN, WM, WN, K, NST
        self.xmode, self.xstride, self.wstride = xmode, xstride, wstride
        self.TM, self.TN = BM // WM // 32, BN // WN // 32
        self.nX, self.nW = BM // 64, BN // 64
        assert self.nX >= 1 and self.nW >= 1
        self.XS, self.WS = BM * 128, BN * 128
        self.WBASE = NST * self.XS
        self.lds = NST * (self.XS + self.WS)
        self.acc0 = acc0
        self.ld = ld
        r = 2
        self.vX = list(range(r, r + self.nX)); r += self.nX
        self.vW = list(range(r, r + self.nW)); r += self.nW
        self.nxa = 4 if xmode == "rm" else 1
        self.aX = list(range(r, r + self.nxa)); r += self.nxa
        self.aW = list(range(r, r + self.TN)); r += self.TN
        r = (r + 3) // 4 * 4
        self.tmp = r; r += 4
        self.fX = [[r + 4 * (p * self.TM + i) for i in range(self.TM)] for p in range(2)]; r += 8 * self.TM
        self.fW = [[r + 4 * (p * self.TN + i) for i in range(self.TN)] for p in range(2)]; r += 8 * self.TN
        self.vend = r
        assert r <= acc0
        self.sXo, self.sWo, self.sCnt, self.sMX, self.sMW = 64, 65, 66, 67, 68
    def acc(self, nt, mt): return self.acc0 + 16 * (nt * self.TM + mt)

    def setup(self, e):
        t0, t1, t2, t3 = self.tmp, self.tmp + 1, self.tmp + 2, self.tmp + 3
        BM, BN = self.BM, self.BN
        lg = self.WN.bit_length() - 1
        e(f"s_lshr_b32 s48, s{S_WAVE}, {lg}\ns_and_b32 s49, s{S_WAVE}, {self.WN-1}")
        if self.xmode == "rm":
            for j in range(self.nX):
                e(f"""s_mul_i32 s50, s{S_WAVE}, {BM//8}
s_add_u32 s50, s50, {8*j}
v_lshrrev_b32 v{t0}, 3, v0
v_add_u32 v{t0}, s50, v{t0}
v_lshrrev_b32 v{t1}, 1, v{t0}
v_xor_b32 v{t1}, v{t1}, v0
v_and_b32 v{t1}, 7, v{t1}
v_lshlrev_b32 v{t1}, 4, v{t1}
s_mov_b32 s51, {self.xstride}
v_mul_lo_u32 v{t0}, v{t0}, s51
v_add_u32 v{t0}, v{t0}, v{t1}
v_subrev_u32 v{self.vX[j]}, {1024*j}, v{t0}""")
        else:
            for j in range(self.nX):
                e(f"""s_mul_i32 s50, s{S_WAVE}, {self.nX}
s_add_u32 s50, s50, {j}
s_lshr_b32 s51, s50, 2
s_and_b32 s50, s50, 3
s_mul_i32 s51, s51, {self.xstride}
s_lshl_b32 s50, s50, 10
s_add_u32 s50, s50, s51
s_sub_u32 s50, s50, {1024*j}
v_lshlrev_b32 v{t0}, 4, v0
v_add_u32 v{self.vX[j]}, s50, v{t0}""")
        rpi = 512 // BN
        lpr = 64 // rpi
        lgl = lpr.bit_length() - 1
        for j in range(self.nW):
            e(f"""s_mul_i32 s50, s{S_WAVE}, 8
s_add_u32 s50, s50, {rpi*j}
v_lshrrev_b32 v{t0}, {lgl}, v0
v_add_u32 v{t0}, s50, v{t0}""")
            if BN >= 128:
                e(f"v_and_b32 v{t1}, 3, v{t0}\nv_lshlrev_b32 v{t1}, 2, v{t1}")
            else:
                e(f"v_and_b32 v{t1}, 2, v{t0}\nv_lshlrev_b32 v{t1}, 1, v{t1}")
            e(f"""v_and_b32 v{t2}, {lpr-1}, v0
v_xor_b32 v{t1}, v{t1}, v{t2}
v_lshlrev_b32 v{t1}, 4, v{t1}
s_mov_b32 s51, {self.wstride}
v_mul_lo_u32 v{t0}, v{t0}, s51
v_add_u32 v{t0}, v{t0}, v{t1}
v_subrev_u32 v{self.vW[j]}, {1024*j}, v{t0}""")
        e(f"s_mul_i32 s{self.sMX}, s{S_WAVE}, {1024*self.nX}\ns_mul_i32 s{self.sMW}, s{S_WAVE}, {1024*self.nW}\ns_add_u32 s{self.sMW}, s{self.sMW}, {self.WBASE}")
        if self.xmode == "rm":
            e(f"""v_and_b32 v{t0}, 31, v0
v_lshrrev_b32 v{t1}, 1, v{t0}
v_and_b32 v{t1}, 7, v{t1}
v_lshrrev_b32 v{t2}, 5, v0
v_xor_b32 v{t1}, v{t1}, v{t2}
v_lshlrev_b32 v{t1}, 4, v{t1}
v_lshlrev_b32 v{t0}, 7, v{t0}
s_mul_i32 s50, s48, {self.TM*4096}
v_add_u32 v{t0}, s50, v{t0}""")
            for ks in range(4):
                e(f"v_xor_b32 v{t2}, {ks*32}, v{t1}\nv_add_u32 v{self.aX[ks]}, v{t0}, v{t2}")
        else:
            e(f"s_mul_i32 s50, s48, {self.TM*4096}\nv_lshlrev_b32 v{t0}, 4, v0\nv_add_u32 v{self.aX[0]}, s50, v{t0}")
        P = 2 * BN
        himul = 8 if self.xmode == "rm" else 4
        e(f"""v_bfe_u32 v{t0}, v0, 2, 2
v_lshrrev_b32 v{t1}, 5, v0
v_mul_u32_u24 v{t1}, {himul}, v{t1}
v_add_u32 v{t1}, v{t1}, v{t0}
v_mul_u32_u24 v{t1}, {P}, v{t1}
v_and_b32 v{t2}, 3, v0
v_lshlrev_b32 v{t2}, 3, v{t2}
v_add_u32 v{t1}, v{t1}, v{t2}
v_bfe_u32 v{t2}, v0, 4, 1
v_lshlrev_b32 v{t2}, 5, v{t2}
v_add_u32 v{t1}, v{t1}, v{t2}
v_add_u32 v{t1}, {self.WBASE}, v{t1}""")
        if BN < 128:
            e(f"v_lshrrev_b32 v{t0}, 1, v{t0}")
        for nt in range(self.TN):
            e(f"""s_mul_i32 s50, s49, {self.TN}
s_add_u32 s50, s50, {nt}
v_xor_b32 v{t2}, s50, v{t0}
v_lshlrev_b32 v{t2}, 6, v{t2}
v_add_u32 v{self.aW[nt]}, v{t1}, v{t2}""")

    def dma_list(self, buf):
        L = []
        for j in range(self.nX):
            pre = f"s_add_u32 m0, s{self.sMX}, {buf*self.XS}\n" if j == 0 else ""
            L.append(pre + f"buffer_load_dwordx4 v{self.vX[j]}, s[{SRD_X}:{SRD_X+3}], s{self.sXo} offen offset:{1024*j} {self.ld} lds")
        for j in range(self.nW):
            pre = f"s_add_u32 m0, s{self.sMW}, {buf*self.WS}\n" if j == 0 else ""
            L.append(pre + f"buffer_load_dwordx4 v{self.vW[j]}, s[{SRD_W}:{SRD_W+3}], s{self.sWo} offen offset:{1024*j} lds")
        xadv = 128 if self.xmode == "rm" else 4096
        L[self.nX - 1] += f"\ns_add_u32 s{self.sXo}, s{self.sXo}, {xadv}"
        L[-1] += f"\ns_add_u32 s{self.sWo}, s{self.sWo}, {64*self.wstride}"
        return L

    def read_list(self, buf, ks, p):
        L = []
        P = 2 * self.BN
        hstep = 4 if self.xmode == "rm" else 8
        order = []
        for nt in range(self.TN):
            f = self.fW[p][nt]
            for h in range(2):
                order.append((nt * 2 + h * 0.1, f"ds_read_b64_tr_b16 v[{f+2*h}:{f+2*h+1}], v{self.aW[nt]} offset:{buf*self.WS + (16*ks + hstep*h)*P}"))
        for mt in range(self.TM):
            f = self.fX[p][mt]
            if self.xmode == "rm":
                order.append((mt * 0.4 + 0.2, f"ds_read_b128 v[{f}:{f+3}], v{self.aX[ks]} offset:{buf*self.XS + mt*4096}"))
            else:
                order.append((mt * 0.4 + 0.2, f"ds_read_b128 v[{f}:{f+3}], v{self.aX[0]} offset:{buf*self.XS + mt*4096 + ks*1024}"))
        order.sort(key=lambda x: x[0])
        return [o[1] for o in order]

    def mfma_list(self, p, first=False, swap=False):
        L = []
        for nt in range(self.TN):
            for mt in range(self.TM):
                a = self.acc(nt, mt); w = self.fW[p][nt]; x = self.fX[p][mt]
                c = "0" if first else f"v[{a}:{a+15}]"
                if swap: w, x = x, w
                L.append(f"v_mfma_f32_32x32x16_bf16 v[{a}:{a+15}], v[{w}:{w+3}], v[{x}:{x+3}], {c}")
        return L

    @staticmethod
    def weave(e, mf, fill):
        n = len(mf)
        per = -(-len(fill) // n) if fill else 0
        fi = 0
        for m in mf:
            e(m)
            for _ in range(per):
                if fi < len(fill): e(fill[fi]); fi += 1
        assert fi == len(fill)

    def prologue(self, e):
        e(f"s_mov_b32 s{self.sXo}, 0\ns_mov_b32 s{self.sWo}, 0")
        for b in range(self.NST):
            for g in self.dma_list(b): e(g)

    def stage(self, e, buf, dma, last, first=False, pend=None, left=None, swap=False):
        nper = self.nX + self.nW
        for ks in range(3):
            e("s_waitcnt lgkmcnt(0)")
            fill = self.read_list(buf, ks + 1, (ks + 1) & 1)
            if ks == 0 and pend:
                f2 = []
                k = max(1, len(fill) // len(pend))
                pi = 0
                for i, x in enumerate(fill):
                    f2.append(x)
                    if (i + 1) % k == 0 and pi < len(pend): f2.append(pend[pi]); pi += 1
                f2 += pend[pi:]
                fill = f2
            self.weave(e, self.mfma_list(ks & 1, first and ks == 0, swap), fill)
        if last:
            e("s_waitcnt lgkmcnt(0)")
            self.weave(e, self.mfma_list(1, False, swap), [])
            return None
        e(f"s_waitcnt vmcnt({left*nper}) lgkmcnt(0)\ns_barrier")
        nb = (buf + 1) % self.NST
        fill = self.read_list(nb, 0, 0)
        rest = None
        if dma:
            d = self.dma_list(buf)
            h = self.nX if self.split_dma else len(d)
            now, rest = d[:h], d[h:]
            f2 = []
            k = max(1, len(fill) // len(now)); pi = 0
            for i, x in enumerate(fill):
                f2.append(x)
                if (i + 1) % k == 0 and pi < len(now): f2.append(now[pi]); pi += 1
            f2 += now[pi:]
            fill = f2
        self.weave(e, self.mfma_list(1, False, swap), fill)
        return rest
    split_dma = True

    def run(self, e, swap=False, pro=True):
        NS = self.K // 64; NST = self.NST; nper = self.nX + self.nW
        if pro: self.prologue(e)
        e(f"s_waitcnt vmcnt({(NST-1)*nper})\ns_barrier")
        stamp(e, 2)
        for r in self.read_list(0, 0, 0): e(r)
        rounds = NS // NST
        assert rounds >= 2 and NS % NST == 0
        pend = None
        for b in range(NST):
            pend = self.stage(e, b, True, False, first=(b == 0), pend=pend, left=NST - 2, swap=swap)
        nloop = rounds - 2
        if nloop > 0:
            L = e.label("Lg")
            e(f"s_mov_b32 s{self.sCnt}, {nloop}\n{L}:")
            p = pend
            for b in range(NST):
                p = self.stage(e, b, True, False, pend=p, left=NST - 2, swap=swap)
            e(f"s_sub_u32 s{self.sCnt}, s{self.sCnt}, 1\ns_cmp_lg_u32 s{self.sCnt}, 0\ns_cbranch_scc1 {L}")
        for b in range(NST):
            left = max(0, NST - 2 - b)
            pend = self.stage(e, b, False, b == NST - 1, pend=pend, left=left, swap=swap)
```

```python
import common
from common import *
from gemm import Gemm

def pack_tile(e, a, dst, swap=True):
    for i in range(8):
        e(f"v_cvt_pk_bf16_f32 v{dst+i}, v{a+2*i}, v{a+2*i+1}")
    if swap:
        for j in range(2):
            e(f"v_permlane32_swap_b32 v{dst+4*j}, v{dst+4*j+2}\nv_permlane32_swap_b32 v{dst+4*j+1}, v{dst+4*j+3}")

def qkv_epilogue(e, g, st=""):
    t0, t1 = g.tmp, g.tmp + 1
    e(f"""v_bfe_u32 v{t0}, v0, 4, 1
v_lshlrev_b32 v{t0}, 12, v{t0}
v_and_b32 v{t1}, 15, v0
v_lshlrev_b32 v{t1}, 4, v{t1}
v_add_u32 v{t0}, v{t0}, v{t1}
v_lshrrev_b32 v{t1}, 5, v0
v_lshlrev_b32 v{t1}, 8, v{t1}
v_add_u32 v{t0}, v{t0}, v{t1}""")
    e(f"""s_mul_i32 s50, s49, {g.TN}
s_lshr_b32 s51, s50, 2
s_lshl_b32 s51, s51, 13
s_and_b32 s50, s50, 3
s_lshl_b32 s50, s50, 10
s_add_u32 s50, s50, s51
s_mul_i32 s51, s48, {g.TM*262144}
s_add_u32 s50, s50, s51""")
    k = 0
    for mt in range(g.TM):
        for nt in range(g.TN):
            d = g.fX[0][0] + 8 * (k % 4); k += 1
            pack_tile(e, g.acc(nt, mt), d)
            for j in range(2):
                e(f"buffer_store_dwordx4 v[{d+4*j}:{d+4*j+3}], v{t0}, s[{SRD_O}:{SRD_O+3}], s50 offen offset:{nt*1024+j*512} {st}")
        if mt != g.TM - 1: e("s_add_u32 s50, s50, 262144")

G256 = Gemm(256, 256, 2, 4, 1024, 2, "rm", 2048, 8192)

def job_qkv_tile(e, s_m, s_n, st=""):
    g = G256
    e(f"s_lshl_b32 s52, s{s_m}, 19")
    make_srd(e, SRD_X, P_BX, 52, 0, 4194304)
    e(f"""s_lshr_b32 s53, s{s_n}, 4
s_and_b32 s54, s{s_n}, 15
s_cmp_eq_u32 s53, 1
s_cselect_b32 s56, s{P_BWK}, s{P_BWQ}
s_cselect_b32 s57, s{P_BWK+1}, s{P_BWQ+1}
s_cmp_eq_u32 s53, 2
s_cselect_b32 s56, s{P_BWV}, s56
s_cselect_b32 s57, s{P_BWV+1}, s57
s_lshl_b32 s52, s54, 9""")
    make_srd(e, SRD_W, 56, 52, 0, 8388608)
    e(f"""s_lshl_b32 s52, s53, 24
s_lshl_b32 s55, s{s_m}, 21
s_add_u32 s52, s52, s55
s_lshl_b32 s55, s54, 14
s_add_u32 s52, s52, s55""")
    make_srd(e, SRD_O, P_WS, 52, WS_QB, WS_SIZE)
    g.setup(e)
    stamp(e, 1)
    g.run(e)
    stamp(e, 3)
    qkv_epilogue(e, g, st)
    stamp(e, 4)
    if common.DIAG: e("s_waitcnt vmcnt(0)")
    stamp(e, 5)

import math, struct
def f32bits(x): return struct.unpack("<I", struct.pack("<f", x))[0]

def job_a_kv(e, s_t, st=""):
    X, WF, AK, AV = 16, 48, 64, 80
    e(f"s_lshl_b32 s52, s{s_t}, 16")
    make_srd(e, SRD_X, P_AX, 52, 0, 4194304)
    e(f"s_lshl_b32 s52, s{S_WAVE}, 13")
    make_srd(e, SRD_W, P_AWK, 52, 0, 65536)
    make_srd(e, SRD_O, P_AWV, 52, 0, 65536)
    e(f"""v_lshlrev_b32 v2, 4, v0
s_lshl_b32 s53, s{S_WAVE}, 14
s_mov_b32 m0, s53
s_mov_b32 s54, 4096""")
    for x in range(4): e(f"buffer_load_dwordx4 v2, s[{SRD_W}:{SRD_W+3}], 0 offen offset:{x*1024} lds")
    e("s_add_u32 m0, s53, 4096")
    for x in range(4): e(f"buffer_load_dwordx4 v2, s[{SRD_W}:{SRD_W+3}], s54 offen offset:{x*1024} lds")
    e("s_add_u32 m0, s53, 8192")
    for x in range(4): e(f"buffer_load_dwordx4 v2, s[{SRD_O}:{SRD_O+3}], 0 offen offset:{x*1024} lds")
    e("s_add_u32 m0, s53, 12288")
    for x in range(4): e(f"buffer_load_dwordx4 v2, s[{SRD_O}:{SRD_O+3}], s54 offen offset:{x*1024} lds")
    e(f"""v_and_b32 v3, 31, v0
v_lshlrev_b32 v3, 11, v3
v_lshrrev_b32 v4, 5, v0
v_lshl_add_u32 v3, v4, 4, v3
s_lshl_b32 s55, s{S_WAVE}, 8""")
    for ks in range(8): e(f"buffer_load_dwordx4 v[{X+4*ks}:{X+4*ks+3}], v3, s[{SRD_X}:{SRD_X+3}], s55 offen offset:{32*ks}")
    e(f"""v_bfe_u32 v5, v0, 2, 2
v_lshl_add_u32 v5, v4, 3, v5
v_lshlrev_b32 v5, 6, v5
v_bfe_u32 v6, v0, 4, 1
v_lshl_add_u32 v5, v6, 5, v5
v_and_b32 v6, 3, v0
v_lshl_add_u32 v5, v6, 3, v5
v_add_u32 v5, s53, v5
s_waitcnt vmcnt(0)""")
    for ks in range(8):
        p = WF + 8 * (ks & 1)
        for m in range(2):
            for h in range(2):
                e(f"ds_read_b64_tr_b16 v[{p+4*m+2*h}:{p+4*m+2*h+1}], v5 offset:{m*8192 + (16*ks + 4*h)*64}")
        e("s_waitcnt lgkmcnt(0)")
        c1 = "0" if ks == 0 else f"v[{AK}:{AK+15}]"; c2 = "0" if ks == 0 else f"v[{AV}:{AV+15}]"
        e(f"v_mfma_f32_32x32x16_bf16 v[{AK}:{AK+15}], v[{p}:{p+3}], v[{X+4*ks}:{X+4*ks+3}], {c1}")
        e(f"v_mfma_f32_32x32x16_bf16 v[{AV}:{AV+15}], v[{X+4*ks}:{X+4*ks+3}], v[{p+4}:{p+7}], {c2}")
    e(f"v_add_u32 v6, s53, v2")
    for q in range(8): e(f"ds_write_b128 v6, v[{AK+4*q}:{AK+4*q+3}] offset:{q*1024}")
    Ls = e.label("Lakv")
    e(f"""s_waitcnt lgkmcnt(0)
s_barrier
s_cmp_gt_u32 s{S_WAVE}, 3
s_cbranch_scc1 {Ls}
s_lshl_b32 s53, s{S_WAVE}, 11
v_add_u32 v6, s53, v2
v_add_u32 v7, 65536, v6""")
    for w in range(8):
        for q in range(2):
            e(f"ds_read_b128 v[{16+8*w+4*q}:{16+8*w+4*q+3}], v{6 if w < 4 else 7} offset:{(w%4)*16384 + q*1024}")
    e("s_waitcnt lgkmcnt(0)")
    for w in range(1, 8):
        for r in range(8): e(f"v_add_f32 v{16+r}, v{16+r}, v{16+8*w+r}")
    for r in range(4): e(f"v_cvt_pk_bf16_f32 v{16+r}, v{16+2*r}, v{17+2*r}")
    e(f"""s_lshr_b32 s52, s{S_WAVE}, 1
s_lshl_b32 s52, s52, 17
s_and_b32 s53, s{S_WAVE}, 1
s_lshl_b32 s53, s53, 10
s_add_u32 s52, s52, s53
s_lshl_b32 s53, s{s_t}, 11
s_add_u32 s52, s52, s53""")
    make_srd(e, SRD_O, P_WS, 52, WS_KA, WS_SIZE)
    e(f"buffer_store_dwordx4 v[16:19], v2, s[{SRD_O}:{SRD_O+3}], 0 offen {st}\n{Ls}:")

GQA = Gemm(128, 128, 2, 4, 1024, 4, "rm", 2048, 2048, acc0=128)
def job_a_attn(e, s_m, s_n, st="", ld="", before_kv=None):
    g = GQA
    e(f"s_lshl_b32 s52, s{s_m}, 18")
    make_srd(e, SRD_X, P_AX, 52, 0, 4194304)
    e(f"s_lshl_b32 s52, s{s_n}, 8")
    make_srd(e, SRD_W, P_AWQ, 52, 0, 2097152)
    g.setup(e)
    g.run(e)
    Q = [8, 16]; P = [24, 32]; KF = [40, 48]; VF = [56, 64]; ONE = 72
    S = [80, 96]; NM = [112, 160]; O = [176, 192]; L = [208, 224]
    e(f"s_mov_b32 s50, {hex(f32bits(32 ** -0.5 * math.log2(math.e)))}")
    e("s_barrier")
    if before_kv: before_kv(e)
    make_srd(e, SRD_X, P_WS, None, WS_KA, WS_KA + 262144)
    e(f"""v_lshlrev_b32 v2, 4, v0
s_lshl_b32 s53, s{S_WAVE}, 12""")
    for c in range(4):
        e(f"s_add_u32 s54, s53, {c*32768}\ns_mov_b32 m0, s54")
        for x in range(4): e(f"buffer_load_dwordx4 v2, s[{SRD_X}:{SRD_X+3}], s54 offen offset:{x*1024} {ld} lds")
    e(f"s_lshl_b32 s55, s{S_WAVE}, 11\ns_add_u32 s56, s55, 131072")
    def vdma(buf):
        return [f"s_add_u32 m0, s55, {131072 + buf*16384}\nbuffer_load_dwordx4 v2, s[{SRD_X}:{SRD_X+3}], s56 offen {ld} lds",
                f"buffer_load_dwordx4 v2, s[{SRD_X}:{SRD_X+3}], s56 offen offset:1024 {ld} lds\ns_add_u32 s56, s56, 16384"]
    for x in vdma(0): e(x)
    for t in range(2):
        a = g.acc(0, t)
        for r in range(16): e(f"v_mul_f32 v{a+r}, s50, v{a+r}")
        pack_tile(e, a, Q[t], swap=False)
    for r in range(4): e(f"v_mov_b32 v{ONE+r}, 0x3f803f80")
    e("v_mov_b32 v4, 0xff800000\nv_mov_b32 v5, 0xff800000")
    e("v_mov_b32 v3, v2\ns_waitcnt vmcnt(2)\ns_barrier")
    def kread(set_, off): return [f"ds_read_b128 v[{KF[set_]+4*j}:{KF[set_]+4*j+3}], v3 offset:{off + 1024*j}" for j in range(2)]
    def qk(t, set_, dst, c):
        return [f"v_mfma_f32_32x32x16_bf16 v[{dst}:{dst+15}], v[{KF[set_]}:{KF[set_]+3}], v[{Q[t]}:{Q[t]+3}], {c}",
                f"v_mfma_f32_32x32x16_bf16 v[{dst}:{dst+15}], v[{KF[set_]+4}:{KF[set_]+7}], v[{Q[t]+4}:{Q[t]+7}], v[{dst}:{dst+15}]"]
    SB = [[S[0], S[1]], [O[0], O[1]]]
    def mx(t, src): return [f"v_max3_f32 v{4+t}, v{src+2*i}, v{src+2*i+1}, v{4+t}" for i in range(8)]
    for x in kread(0, 0): e(x)
    for t in range(2):
        for r in range(16): e(f"v_mov_b32 v{SB[1][t]+r}, 0xff800000")
    L1 = e.label("Lp1")
    e(f"s_mov_b32 s57, 8\n{L1}:")
    for kt in range(8):
        p = kt & 1
        e("s_waitcnt lgkmcnt(0)")
        mf = qk(0, p, SB[p][0], "0") + qk(1, p, SB[p][1], "0")
        if kt == 7: e("v_add_u32 v3, 16384, v3")
        fill = kread(p ^ 1, ((kt + 1) % 8) * 2048) + mx(0, SB[p ^ 1][0]) + mx(1, SB[p ^ 1][1])
        Gemm.weave(e, mf, fill)
    e(f"s_sub_u32 s57, s57, 1\ns_cmp_lg_u32 s57, 0\ns_cbranch_scc1 {L1}")
    e("s_nop 7\ns_nop 3")
    for x in mx(0, SB[1][0]) + mx(1, SB[1][1]): e(x)
    for t in range(2):
        e(f"v_mov_b32 v6, v{4+t}\nv_permlane32_swap_b32 v{4+t}, v6\nv_max_f32 v{4+t}, v{4+t}, v6")
        for r in range(16): e(f"v_mul_f32 v{NM[t]+r}, -1.0, v{4+t}")
        for r in range(16): e(f"v_mov_b32 v{O[t]+r}, 0\nv_mov_b32 v{L[t]+r}, 0")
    for r in range(8): e(f"v_mov_b32 v{P[1]+r}, 0\nv_mov_b32 v{VF[1]+r}, 0")
    e("s_waitcnt lgkmcnt(0)\nv_mov_b32 v3, v2\nv_add_u32 v7, 131072, v2")
    for x in kread(0, 0) + kread(1, 2048): e(x)
    e("s_waitcnt lgkmcnt(0)")
    for x in qk(0, 0, S[0], f"v[{NM[0]}:{NM[0]+15}]"): e(x)
    def pv(t, set_):
        r = []
        for j in range(2):
            r.append(f"v_mfma_f32_32x32x16_bf16 v[{O[t]}:{O[t]+15}], v[{VF[set_]+4*j}:{VF[set_]+4*j+3}], v[{P[t]+4*j}:{P[t]+4*j+3}], v[{O[t]}:{O[t]+15}]")
            r.append(f"v_mfma_f32_32x32x16_bf16 v[{L[t]}:{L[t]+15}], v[{ONE}:{ONE+3}], v[{P[t]+4*j}:{P[t]+4*j+3}], v[{L[t]}:{L[t]+15}]")
        return r
    def sm(t):
        r = []
        for i in range(8):
            r.append(f"v_exp_f32 v{S[t]+2*i}, v{S[t]+2*i}")
            r.append(f"v_exp_f32 v{S[t]+2*i+1}, v{S[t]+2*i+1}")
            if i >= 1: r.append(f"v_cvt_pk_bf16_f32 v{P[t]+i-1}, v{S[t]+2*i-2}, v{S[t]+2*i-1}")
        r.append(f"s_nop 0\nv_cvt_pk_bf16_f32 v{P[t]+7}, v{S[t]+14}, v{S[t]+15}")
        return r
    L2 = e.label("Lp2")
    e(f"s_mov_b32 s57, 4\n{L2}:")
    for ch in range(2):
        for k8 in range(8):
            p = k8 & 1
            extra = []
            if k8 == 0:
                e("s_waitcnt vmcnt(0) lgkmcnt(0)\ns_barrier")
                extra = vdma(ch ^ 1)
            vread = [f"ds_read_b128 v[{VF[p]+4*j}:{VF[p]+4*j+3}], v7 offset:{ch*16384 + k8*2048 + 1024*j}" for j in range(2)]
            f = sm(0)
            Gemm.weave(e, qk(1, p, S[1], f"v[{NM[1]}:{NM[1]+15}]") + pv(1, p ^ 1), vread + f[:10] + extra + f[10:])
            e("s_waitcnt lgkmcnt(0)")
            f = sm(1)
            kt2 = ch * 8 + k8 + 2
            if kt2 == 16: f = f[:9] + ["v_add_u32 v3, 32768, v3"] + f[9:]
            f = f[:10] + kread(p, (kt2 % 16) * 2048) + f[10:]
            Gemm.weave(e, qk(0, p ^ 1, S[0], f"v[{NM[0]}:{NM[0]+15}]") + pv(0, p), f)
    e(f"s_sub_u32 s57, s57, 1\ns_cmp_lg_u32 s57, 0\ns_cbranch_scc1 {L2}")
    for x in pv(1, 1): e(x)
    e(f"""s_lshl_b32 s52, s{s_m}, 2
s_lshl_b32 s53, s48, 1
s_add_u32 s52, s52, s53
s_lshl_b32 s52, s52, 16
s_lshl_b32 s53, s{s_n}, 2
s_add_u32 s53, s53, s49
s_lshl_b32 s53, s53, 11
s_add_u32 s52, s52, s53
s_mov_b32 s54, 65536""")
    make_srd(e, SRD_O, P_WS, 52, WS_OA, WS_SIZE)
    e("s_waitcnt vmcnt(0) lgkmcnt(0)")
    for t in range(2):
        e(f"v_rcp_f32 v4, v{L[t]}")
        for r in range(16): e(f"v_mul_f32 v{O[t]+r}, v{O[t]+r}, v4")
        pack_tile(e, O[t], P[t], swap=False)
        for j in range(2):
            e(f"buffer_store_dwordx4 v[{P[t]+4*j}:{P[t]+4*j+3}], v2, s[{SRD_O}:{SRD_O+3}], {'s54' if t else '0'} offen offset:{1024*j} {st}")

def out_epilogue(e, g):
    t0, t1 = g.tmp, g.tmp + 1
    e(f"""v_and_b32 v{t0}, 31, v0
v_lshlrev_b32 v{t0}, 12, v{t0}
v_lshrrev_b32 v{t1}, 5, v0
v_lshl_add_u32 v{t0}, v{t1}, 4, v{t0}
s_mul_i32 s50, s48, {g.TM*131072}
s_mul_i32 s51, s49, {g.TN*64}
s_add_u32 s50, s50, s51""")
    k = 0
    for mt in range(g.TM):
        for nt in range(g.TN):
            d = g.fX[0][0] + 8 * (k % 2); k += 1
            pack_tile(e, g.acc(nt, mt), d)
            for j in range(2):
                e(f"buffer_store_dwordx4 v[{d+4*j}:{d+4*j+3}], v{t0}, s[{SRD_O}:{SRD_O+3}], s50 offen offset:{nt*64+j*32}")
        if mt != g.TM - 1: e("s_add_u32 s50, s50, 131072")

def job_out(e, part, s_m, s_n, ld=""):
    K = 1024 if part == "A" else 4096
    g = Gemm(128, 128, 2, 4, K, 4, "frag", K * 64, 2048, ld=ld)
    e(f"s_mul_i32 s52, s{s_m}, {4*K*64}")
    make_srd(e, SRD_X, P_WS, 52, WS_OA if part == "A" else WS_OB, WS_SIZE)
    e(f"s_lshl_b32 s52, s{s_n}, 8")
    make_srd(e, SRD_W, P_AWO if part == "A" else P_BWO, 52, 0, K * 2048)
    e(f"s_lshl_b32 s53, s{s_m}, 19\ns_add_u32 s52, s52, s53")
    make_srd(e, SRD_O, P_OUT, 52, 0 if part == "A" else 2048, 8388608)
    g.setup(e)
    g.run(e)
    out_epilogue(e, g)

def b_attn_setup(e):
    e(f"""v_bfe_u32 v2, v0, 4, 1
v_lshlrev_b32 v2, 12, v2
v_and_b32 v3, 15, v0
v_lshl_add_u32 v2, v3, 4, v2
v_lshrrev_b32 v4, 5, v0
v_lshl_add_u32 v2, v4, 8, v2
v_and_b32 v3, 7, v0
v_lshlrev_b32 v3, 4, v3
v_lshl_add_u32 v3, v4, 7, v3
v_lshlrev_b32 v5, 4, v0
s_mul_i32 s58, s{S_WAVE}, 10240""")
    e("""v_bfe_u32 v6, v0, 2, 2
v_lshl_add_u32 v6, v4, 2, v6
v_lshlrev_b32 v6, 4, v6
v_bfe_u32 v7, v0, 4, 1
v_lshlrev_b32 v7, 1, v7
v_bfe_u32 v8, v0, 1, 1
v_add_u32 v7, v7, v8
v_and_b32 v8, 1, v0
v_lshl_add_u32 v6, v8, 3, v6
v_lshl_add_u32 v9, v7, 7, v6
v_lshl_add_u32 v6, v7, 8, v6
v_add_u32 v6, s58, v6
s_add_u32 s59, s58, 8192
v_add_u32 v9, s59, v9""")
    e("""v_lshrrev_b32 v7, 4, v0
v_lshlrev_b32 v7, 8, v7
v_and_b32 v8, 7, v0
v_lshl_add_u32 v7, v8, 4, v7
v_bfe_u32 v8, v0, 3, 1
v_lshl_add_u32 v7, v8, 2, v7
v_add_u32 v7, s59, v7
v_and_b32 v8, 31, v0
v_lshlrev_b32 v10, 2, v4
v_sub_u32 v8, v8, v10
v_mov_b32 v10, 0xff800000""")
    e(f"s_mov_b32 s57, {hex(f32bits(128 ** -0.5 * math.log2(math.e)))}")
    make_srd(e, SRD_X, P_WS, None, 0, WS_SIZE)

def b_attn_unit(e, s_u, ld="", st=""):
    Q, K, KM, VM, SX, SM, P, VT, O = 16, 48, 80, 112, 120, 136, 152, 164, 176
    X = f"s[{SRD_X}:{SRD_X+3}]"
    e(f"""s_lshl_b32 s50, s{s_u}, 13
s_add_u32 s51, s50, {WS_KB}
s_add_u32 s52, s50, {WS_VB}
s_add_u32 s53, s52, 4096
s_lshl_b32 s54, s{s_u}, 12
s_add_u32 s54, s54, {WS_KVM}
s_add_u32 s55, s50, {WS_OB}
s_add_u32 s56, s55, 4096""")
    for ks in range(8):
        e(f"buffer_load_dwordx4 v[{Q+4*ks}:{Q+4*ks+3}], v2, {X}, s50 offen offset:{(ks//2)*1024 + (ks%2)*512} {ld}")
        e(f"buffer_load_dwordx4 v[{K+4*ks}:{K+4*ks+3}], v2, {X}, s51 offen offset:{(ks//2)*1024 + (ks%2)*512} {ld}")
        e(f"buffer_load_dwordx4 v[{KM+4*ks}:{KM+4*ks+3}], v3, {X}, s54 offen offset:{ks*256} {ld}")
    for u in range(2): e(f"buffer_load_dwordx4 v[{VM+4*u}:{VM+4*u+3}], v5, {X}, s54 offen offset:{2048+1024*u} {ld}")
    e("s_mov_b32 m0, s58")
    for x in range(4): e(f"buffer_load_dwordx4 v5, {X}, s52 offen offset:{x*1024} {ld} lds")
    e("s_add_u32 m0, s58, 4096")
    for x in range(4): e(f"buffer_load_dwordx4 v5, {X}, s53 offen offset:{x*1024} {ld} lds")
    for ks in range(8):
        e(f"s_waitcnt vmcnt({10 + 3*(7-ks)})")
        e(f"v_mfma_f32_32x32x16_bf16 v[{SX}:{SX+15}], v[{K+4*ks}:{K+4*ks+3}], v[{Q+4*ks}:{Q+4*ks+3}], {'0' if ks == 0 else f'v[{SX}:{SX+15}]'}")
        e(f"v_mfma_f32_32x32x16_bf16 v[{SM}:{SM+15}], v[{KM+4*ks}:{KM+4*ks+3}], v[{Q+4*ks}:{Q+4*ks+3}], {'0' if ks == 0 else f'v[{SM}:{SM+15}]'}")
    e("s_waitcnt vmcnt(8)")
    for u in range(2):
        for q in range(4):
            e(f"ds_write_b32 v7, v{VM+4*u+q} offset:{(8*u + q//2)*128 + (q%2)*8}")
    for r in range(16):
        e(f"v_cmp_le_i32 vcc, {8*(r//4) + r%4}, v8\nv_cndmask_b32 v{SX+r}, v10, v{SX+r}, vcc")
    e(f"v_max3_f32 v11, v{SM}, v{SM+1}, v{SM+2}\nv_max_f32 v11, v11, v{SM+3}")
    for i in range(8): e(f"v_max3_f32 v11, v{SX+2*i}, v{SX+2*i+1}, v11")
    e("v_mov_b32 v12, v11\nv_permlane32_swap_b32 v11, v12\nv_max_f32 v11, v11, v12\nv_mul_f32 v11, s57, v11")
    regs = [SX + i for i in range(20)]
    for r in regs: e(f"v_fma_f32 v{r}, v{r}, s57, -v11")
    for r in regs: e(f"v_exp_f32 v{r}, v{r}")
    e(f"v_add_f32 v11, v{regs[0]}, v{regs[1]}\nv_add_f32 v12, v{regs[2]}, v{regs[3]}")
    for i in range(4, 20, 2): e(f"v_add_f32 v11, v11, v{regs[i]}\nv_add_f32 v12, v12, v{regs[i+1]}")
    e("v_add_f32 v11, v11, v12\nv_mov_b32 v12, v11\nv_permlane32_swap_b32 v11, v12\nv_add_f32 v11, v11, v12\nv_rcp_f32 v11, v11")
    for r in regs: e(f"v_mul_f32 v{r}, v{r}, v11")
    for i in range(10): e(f"v_cvt_pk_bf16_f32 v{P+i}, v{regs[2*i]}, v{regs[2*i+1]}")
    e("s_waitcnt vmcnt(0) lgkmcnt(0)")
    for et in range(4):
        vt = Q + 12 * et
        for j in range(2):
            for h in range(2):
                e(f"ds_read_b64_tr_b16 v[{vt+4*j+2*h}:{vt+4*j+2*h+1}], v6 offset:{j*4096 + et*1024 + h*128}")
        e(f"ds_read_b64_tr_b16 v[{vt+8}:{vt+9}], v9 offset:{et*512}")
    for et in range(4):
        vt = Q + 12 * et; o = O + 16 * et
        e(f"s_waitcnt lgkmcnt({5*(3-et)})")
        e(f"v_mfma_f32_32x32x16_bf16 v[{o}:{o+15}], v[{vt}:{vt+3}], v[{P}:{P+3}], 0")
        e(f"v_mfma_f32_32x32x16_bf16 v[{o}:{o+15}], v[{vt+4}:{vt+7}], v[{P+4}:{P+7}], v[{o}:{o+15}]")
        e(f"v_mfma_f32_32x32x8_bf16 v[{o}:{o+15}], v[{vt+8}:{vt+9}], v[{P+8}:{P+9}], v[{o}:{o+15}]")
    for et in range(4):
        d = KM + 8 * et
        pack_tile(e, O + 16 * et, d, swap=False)
        for j in range(2):
            e(f"buffer_store_dwordx4 v[{d+4*j}:{d+4*j+3}], v5, {X}, s{55 + et//2} offen offset:{(et%2)*2048 + j*1024} {st}")
```

```python
import sys
sys.path.insert(0, "gen")
import build
NAME = build.NAME
ref = open(f"cdna_kernels/{NAME}.s.ref").read().split("\n")
hdr = [l for l in ref if l.startswith(";") and "@launch" not in l and "Override launch" not in l and "grid=ceil" not in l]
txt = getattr(build, sys.argv[1])()
if txt.count("@launch") == 1:
    txt = txt.replace(f"@launch kernel={NAME}_kernel ", "@launch ")
dst = sys.argv[2] if len(sys.argv) > 2 else f"cdna_kernels/{NAME}.s"
open(dst, "w").write("\n".join(hdr) + "\n" + txt)
print("written", dst, len(txt))
```

```python
import common
from common import *
import math

SPREAD = 1
def acc_step(): return 256 if SPREAD else 20480
def acc_piece(): return 65 * 256 if SPREAD else 256
KLATE = 12
DELAY_B = -1
CANARY = 1
CGAP = 2
CTHR = 8
FIX_A = -1
WS_CAN = WS_ACC + 0x180000
BR_SLOT = 8 * 24576
R1 = 0
R2 = 18432
SPIN_MAX = 400000
ACK_B = 1
KVSTEP = 262144
NOKV = 0
LATE_V = 1
RANK_A = 2
PACE_A = 0
DBG_ARRIVE = 0
DBG_XCC = 4
DBG_PROG = 64
DBG_FAIL = 252 - 172

sStep, sSpin, sMode = 64, 65, 66
sACC, sACCN, sB, sBO, sK, sV, sKVM = 68, 70, 72, 74, 76, 78, 60
sSelE, sSelO, sC, sG, sM, sW = 62, 63, 59, 56, 57, 58

TRACE = False
WS_TRACE = WS_DIAG + (1 << 20)
def tr(e, i):
    if TRACE: e(f"s_memrealtime s[{86+2*i}:{87+2*i}]")
def tr_out(e):
    if not TRACE: return
    e(f"""s_waitcnt lgkmcnt(0)
s_lshl_b32 s48, s{S_WG}, 3
s_add_u32 s48, s48, s{S_WAVE}
s_lshl_b32 s48, s48, 6
s_add_u32 s48, s48, s{sStep}
s_lshl_b32 s48, s48, 5
s_add_u32 s48, s48, {WS_TRACE}
v_lshlrev_b32 v13, 2, v0
v_add_u32 v13, s48, v13""")
    for i in range(8): e(f"v_writelane_b32 v12, s{86+2*i}, {i}")
    e(f"s_mov_b64 exec, 0xff\nglobal_store_dword v13, v12, s[{P_WS}:{P_WS+1}]\ns_mov_b64 exec, -1")

def reduce4(e, alo, ahi, st, t=12):
    e(f"""ds_read2st64_b32 v[{t}:{t+1}], v{alo} offset0:0 offset1:{st}
ds_read2st64_b32 v[{t+2}:{t+3}], v{ahi} offset0:0 offset1:{st}
ds_read2st64_b32 v[{t+4}:{t+5}], v{alo} offset0:{2*st} offset1:{3*st}
ds_read2st64_b32 v[{t+6}:{t+7}], v{ahi} offset0:{2*st} offset1:{3*st}
s_waitcnt lgkmcnt(2)
v_add_f32 v{t}, v{t}, v{t+1}
v_add_f32 v{t+2}, v{t+2}, v{t+3}
s_waitcnt lgkmcnt(0)
v_add_f32 v{t+4}, v{t+4}, v{t+5}
v_add_f32 v{t+6}, v{t+6}, v{t+7}
v_add_f32 v{t}, v{t}, v{t+4}
v_add_f32 v{t+2}, v{t+2}, v{t+6}
v_cvt_pk_bf16_f32 v{t}, v{t}, v{t+2}""")

def publish_B(e, tail):
    ls, lb = e.label("Lslow"), e.label("Lback")
    e(f"""v_min_u32 v12, -2, v12
s_cmp_lg_u32 s{sMode}, 0
s_cbranch_scc1 {ls}
global_store_dword v6, v12, s[{sB}:{sB+1}]
global_store_dword v6, v11, s[{sBO}:{sBO+1}]
{lb}:""")
    tail.append(f"""{ls}:
global_store_dword v6, v12, s[{sB}:{sB+1}] sc1
global_store_dword v6, v11, s[{sBO}:{sBO+1}] sc1
s_branch {lb}""")

def advance(e):
    e(f"""s_add_u32 s{sStep}, s{sStep}, 1
s_mov_b64 s[{sACC}:{sACC+1}], s[{sACCN}:{sACCN+1}]
s_add_u32 s{sACCN}, s{sACCN}, {acc_step()}
s_addc_u32 s{sACCN+1}, s{sACCN+1}, 0
s_mov_b64 s[50:51], s[{sB}:{sB+1}]
s_mov_b64 s[{sB}:{sB+1}], s[{sBO}:{sBO+1}]
s_mov_b64 s[{sBO}:{sBO+1}], s[50:51]""")

def chain(e, L_done, kv_wait=None, arrive_hook=None):
    tail = []
    Lfail = e.label("Lcfail")
    e(f"""s_and_b32 s{sG}, s{S_WG}, 7
s_lshr_b32 s{sM}, s{S_WG}, 3
s_and_b32 s{sW}, s{S_WAVE}, 3
s_mov_b32 s{sStep}, 0
s_mov_b32 s{sSpin}, 0
s_mov_b32 s{sSelE}, 0x05040100
s_mov_b32 s{sSelO}, 0x07060100
s_mov_b32 s{sC}, {hex(f32bits(128 ** -0.5 * math.log2(math.e)))}
s_add_u32 s{sACC}, s{P_WS}, {WS_ACC}
s_addc_u32 s{sACC+1}, s{P_WS+1}, 0
s_add_u32 s{sACCN}, s{sACC}, {acc_step()}
s_addc_u32 s{sACCN+1}, s{sACC+1}, 0
s_mul_i32 s48, s{sG}, 24576
s_add_u32 s48, s48, {WS_BR}
s_add_u32 s{sB}, s{P_WS}, s48
s_addc_u32 s{sB+1}, s{P_WS+1}, 0
s_add_u32 s{sBO}, s{sB}, {BR_SLOT}
s_addc_u32 s{sBO+1}, s{sB+1}, 0
s_add_u32 s{sK}, s{P_WS}, {WS_KB}
s_addc_u32 s{sK+1}, s{P_WS+1}, 0
s_add_u32 s{sV}, s{P_WS}, {WS_VB}
s_addc_u32 s{sV+1}, s{P_WS+1}, 0
s_add_u32 s{sKVM}, s{P_WS}, {WS_KVM}
s_addc_u32 s{sKVM+1}, s{P_WS+1}, 0
v_mov_b32 v11, -1""")
    e("""v_and_b32 v12, 3, v0
v_bfe_u32 v13, v0, 2, 3
v_lshrrev_b32 v14, 5, v0""")
    e("""v_mov_b32 v2, 0x4444
v_mov_b32 v15, 0xeeee
v_and_b32 v16, 8, v0
v_cmp_ne_u32 vcc, 0, v16
v_cndmask_b32 v2, v2, v15, vcc""")
    e(f"""s_lshl_b32 s48, s{S_WAVE}, 4
v_lshlrev_b32 v15, 2, v12
v_lshlrev_b32 v16, 1, v14
v_add3_u32 v15, v15, v16, s48
v_add_u32 v16, 1, v15
v_lshlrev_b32 v17, 5, v12
v_lshl_add_u32 v17, v14, 1, v17
v_add_u32 v17, 13, v17
v_add_u32 v18, 16, v17
s_cmp_eq_u32 s{S_WAVE}, 4
s_cselect_b64 s[48:49], -1, 0
v_cndmask_b32 v15, v15, v17, s[48:49]
v_cndmask_b32 v16, v16, v18, s[48:49]""")
    e("""v_cmp_le_u32 s[50:51], 2, v12
s_and_b64 s[50:51], s[50:51], s[48:49]
v_cmp_eq_u32 s[52:53], 2, v12
s_and_b64 s[52:53], s[52:53], s[48:49]
v_cmp_eq_u32 s[54:55], 3, v12""")
    for col, dst in ((15, 7), (16, 8)):
        e(f"""v_lshrrev_b32 v17, 2, v{col}
v_mul_u32_u24 v17, 160, v17
v_and_b32 v18, 3, v{col}
v_lshlrev_b32 v18, 5, v18
v_add_u32 v17, v17, v18
v_lshl_add_u32 v17, v13, 2, v17
v_add_u32 v{dst}, {R2}, v17""")
    e(f"""v_mov_b32 v17, {R2+128}
v_mov_b32 v18, {R2+132}
v_cndmask_b32 v7, v7, v18, s[50:51]
v_cndmask_b32 v8, v8, v18, s[52:53]
v_cndmask_b32 v8, v8, v17, s[54:55]""")
    e(f"""s_mul_i32 s67, s{sM}, 5
s_add_u32 s67, s67, s{S_WAVE}
s_mul_i32 s67, s67, {acc_piece()}
v_lshlrev_b32 v9, 2, v0
v_add_u32 v9, s67, v9""")
    Ln0 = e.label("Lnomem0")
    e(f"""s_cmp_lg_u32 s{sG}, 0
s_cbranch_scc1 {Ln0}
s_cmp_gt_u32 s{S_WAVE}, 4
s_cbranch_scc1 {Ln0}
s_lshl_b32 s48, s{sM}, 7
v_lshlrev_b32 v17, 11, v13
v_add_u32 v17, s48, v17
v_and_b32 v15, 63, v15
v_and_b32 v16, 63, v16
v_lshl_add_u32 v15, v15, 1, v17
v_lshl_add_u32 v16, v16, 1, v17
global_load_ushort v15, v15, s[{P_MEM0}:{P_MEM0+1}]
global_load_ushort v16, v16, s[{P_MEM0}:{P_MEM0+1}]
v_mov_b32 v17, 0x4100
s_waitcnt vmcnt(0)
v_cndmask_b32 v15, v15, 0, s[50:51]
v_cndmask_b32 v16, v16, 0, s[52:53]
v_cndmask_b32 v16, v16, v17, s[54:55]
v_lshl_or_b32 v15, v16, 16, v15
global_store_dword v9, v15, s[{sACC}:{sACC+1}] sc1
{Ln0}:""")
    Lz = e.label("Lz")
    e(f"""s_mul_i32 s48, s{S_WG}, 640
s_lshl_b32 s49, s{S_WAVE}, 6
s_add_u32 s48, s48, s49
v_mov_b64 v[16:17], 0
v_mov_b64 v[18:19], 0""")
    for rep in range(2):
        if rep: e(f"s_cmp_gt_u32 s{S_WAVE}, 1\ns_cbranch_scc1 {Lz}\ns_add_u32 s48, s48, 512")
        e("v_add_u32 v15, s48, v0")
        if SPREAD: e("v_lshrrev_b32 v20, 10, v15\nv_lshlrev_b32 v15, 4, v15\nv_lshl_add_u32 v15, v20, 8, v15")
        else: e("v_lshlrev_b32 v15, 4, v15")
        e(f"global_store_dwordx4 v15, v[16:19], s[{sACCN}:{sACCN+1}] sc1")
    e(f"{Lz}:")
    Lc0 = e.label("Lc0")
    e(f"""s_lshl_b32 s46, s{sM}, 2
s_add_u32 s46, s46, s{sW}
s_lshl_b32 s46, s46, 8
s_add_u32 s46, s46, {WS_CAN}
s_cmp_lg_u32 s{sG}, 0
s_cbranch_scc1 {Lc0}
v_lshlrev_b32 v15, 2, v0
v_add_u32 v15, s46, v15
global_store_dword v15, v16, s[{P_WS}:{P_WS+1}] sc1
{Lc0}:""")
    LS2i, Lji = e.label("LS2i"), e.label("Lji")
    e(f"""s_lshr_b32 s48, s{sM}, 2
s_mul_i32 s48, s48, 6144
s_and_b32 s49, s{sM}, 3
s_cmp_ge_u32 s{S_WAVE}, 4
s_cbranch_scc1 {LS2i}""")
    e(f"""s_and_b32 s50, s{S_WAVE}, 1
s_lshl_b32 s51, s50, 3
v_lshl_add_u32 v15, v12, 1, v14
v_add_u32 v15, s51, v15
v_mul_u32_u24 v15, 96, v15
v_lshl_add_u32 v15, v13, 2, v15
v_add_u32 v4, {R1 + 2*1536}, v15
v_add_u32 v5, 32, v4
s_lshl_b32 s49, s49, 9
s_lshl_b32 s50, s50, 8
s_add_u32 s48, s48, s49
s_add_u32 s48, s48, s50
s_add_u32 s48, s48, 4096
s_branch {Lji}
{LS2i}:""")
    e(f"""s_lshl_b32 s51, s{sW}, 2
v_add_u32 v15, s51, v12
v_mul_u32_u24 v15, 96, v15
v_lshl_add_u32 v15, v13, 2, v15
v_xor_b32 v16, 1, v14
v_mul_u32_u24 v16, 1536, v16
v_add3_u32 v4, v15, v16, {R1}
v_add_u32 v5, 32, v4
s_lshl_b32 s49, s49, 10
s_lshl_b32 s50, s{sW}, 8
s_add_u32 s48, s48, s49
s_add_u32 s48, s48, s50
{Lji}:
v_lshlrev_b32 v6, 2, v0
v_add_u32 v6, s48, v6""")
    e(f"""global_store_dword v6, v11, s[{sB}:{sB+1}] sc1
global_store_dword v6, v11, s[{sBO}:{sBO+1}] sc1
s_waitcnt vmcnt(0)
s_barrier""")
    if arrive_hook: arrive_hook(e)
    La = e.label("La")
    e(f"""s_cmp_lg_u32 s{S_WAVE}, 0
s_cbranch_scc1 {La}
s_getreg_b32 s48, hwreg(HW_REG_XCC_ID)
s_and_b32 s48, s48, 15
s_lshl_b32 s48, 1, s48
s_lshl_b32 s49, s{sG}, 2
s_mov_b64 exec, 1
v_mov_b32 v15, s49
v_mov_b32 v16, s48
global_atomic_or v15, v16, s[{P_DBG}:{P_DBG+1}] offset:{DBG_XCC}
s_waitcnt vmcnt(0)
v_mov_b32 v15, 0
v_mov_b32 v16, 1
global_atomic_add v15, v16, s[{P_DBG}:{P_DBG+1}] offset:{DBG_ARRIVE}
s_mov_b64 exec, -1
{La}:""")
    LS2 = e.label("LS2")
    e(f"s_cmp_ge_u32 s{S_WAVE}, 4\ns_cbranch_scc1 {LS2}")

    def wait_start():
        Lw = e.label("Lws")
        e(f"""s_lshl_b32 s49, s{sG}, 2
v_mov_b32 v12, 0
v_mov_b32 v13, s49
{Lw}:
s_sleep 4
global_load_dword v14, v12, s[{P_DBG}:{P_DBG+1}] offset:{DBG_ARRIVE} sc1
s_add_u32 s{sSpin}, s{sSpin}, 1
s_cmp_gt_u32 s{sSpin}, {SPIN_MAX}
s_cbranch_scc1 {Lfail}
s_waitcnt vmcnt(0)
v_readfirstlane_b32 s48, v14
s_cmp_lt_u32 s48, 128
s_cbranch_scc1 {Lw}
global_load_dword v14, v13, s[{P_DBG}:{P_DBG+1}] offset:{DBG_XCC} sc1
s_waitcnt vmcnt(0)
v_readfirstlane_b32 s48, v14
s_bcnt1_i32_b32 s48, s48
s_sub_u32 s{sMode}, s48, 1""")

    W1 = 64; G = 20; AC = 40
    e(f"""s_lshl_b32 s48, s{sG}, 2
s_lshr_b32 s49, s{sM}, 2
s_add_u32 s48, s48, s49
s_lshl_b32 s48, s48, 8
s_and_b32 s49, s{sM}, 3
s_lshl_b32 s49, s49, 6
s_add_u32 s48, s48, s49
s_lshl_b32 s49, s{sW}, 21
s_add_u32 s52, s48, s49
v_lshrrev_b32 v12, 2, v0
v_lshlrev_b32 v12, 13, v12
v_and_b32 v13, 3, v0
v_lshl_add_u32 v12, v13, 4, v12
s_lshl_b32 s53, s{sW}, 15""")
    e(f"""v_lshrrev_b32 v13, 5, v0
v_lshlrev_b32 v13, 6, v13
v_bfe_u32 v14, v0, 4, 1
v_lshl_add_u32 v13, v14, 3, v13
v_bfe_u32 v14, v0, 2, 2
v_add_u32 v13, v13, v14
v_lshlrev_b32 v13, 6, v13
v_and_b32 v14, 3, v0
v_lshl_add_u32 v13, v14, 3, v13
v_add_u32 v13, s53, v13""")
    def w1_dma(ptr, half):
        make_srd(e, SRD_W, ptr, 52, 0, 8388608)
        L = e.label("Lw1")
        e(f"""s_add_u32 m0, s53, {half*16384}
s_mov_b32 s54, 0
{L}:
buffer_load_dwordx4 v12, s[{SRD_W}:{SRD_W+3}], s54 offen lds
s_add_u32 s54, s54, {16*8192}
s_add_u32 m0, m0, 1024
s_cmp_lt_u32 s54, {256*8192}
s_cbranch_scc1 {L}""")
    def w1_read(mat, half):
        for ch in range(2):
            for i in range(4):
                r = W1 + ((2 * mat + ch) * 4 + i) * 8
                for q in range(2):
                    for h in range(2):
                        e(f"ds_read_b64_tr_b16 v[{r+4*q+2*h}:{r+4*q+2*h+1}], v13 offset:{half*16384 + (128*q + 16*i + 4*h)*64 + 32*ch}")
    w1_dma(P_BWQ, 0); w1_dma(P_BWK, 1)
    e("s_waitcnt vmcnt(16)")
    w1_read(0, 0)
    e("s_waitcnt lgkmcnt(0)")
    w1_dma(P_BWV, 0)
    e("s_waitcnt vmcnt(16)")
    w1_read(1, 1)
    e("s_waitcnt vmcnt(0)")
    w1_read(2, 0)
    e(f"""s_lshl_b32 s48, s{sW}, 2
v_lshrrev_b32 v1, 4, v0
v_add_u32 v1, s48, v1
v_mul_u32_u24 v1, {5*acc_piece()}, v1
v_and_b32 v14, 15, v0
v_lshl_add_u32 v1, v14, 4, v1
v_lshrrev_b32 v15, 5, v0
v_lshl_add_u32 v14, v15, 4, v14
v_lshrrev_b32 v15, 1, v14
v_mul_u32_u24 v15, 96, v15
v_and_b32 v14, 1, v14
v_lshl_add_u32 v15, v14, 5, v15
v_bfe_u32 v14, v0, 4, 1
v_lshl_add_u32 v15, v14, 4, v15
s_mul_i32 s48, s{sW}, 4608
s_add_u32 s48, s48, {R1}
v_add_u32 v3, s48, v15
s_waitcnt lgkmcnt(0)""")
    wait_start()
    e("s_barrier")
    e("s_barrier")
    e("s_setprio 3\ns_mov_b32 s67, 0x41000000")
    if common.DIAG: e("s_mov_b32 s85, 0")
    stamp(e, 1, True)
    L1, LpA, L1x = e.label("L1"), e.label("LpA"), e.label("L1x")
    def aaddr():
        for i in range(1, 5): e(f"v_add_u32 v{13+i}, {i*acc_piece()}, v1")
    aaddr()
    e(f"{L1}:")
    tr(e, 7)
    e(f"{LpA}:")
    tr(e, 0)
    e(f"global_load_dwordx4 v[{G+16}:{G+19}], v17, s[{sACC}:{sACC+1}] sc1")
    for i in range(4):
        e(f"global_load_dwordx4 v[{G+4*i}:{G+4*i+3}], v{13+i if i else 1}, s[{sACC}:{sACC+1}] sc1")
    e(f"s_add_u32 s{sSpin}, s{sSpin}, 1\ns_cmp_gt_u32 s{sSpin}, {SPIN_MAX}\ns_cbranch_scc1 {Lfail}")
    for r in range(0, 24, 2): e(f"v_mov_b64 v[{AC+r}:{AC+r+1}], 0")
    for i in range(4):
        e(f"s_waitcnt vmcnt({3-i})")
        d3 = G + 4 * i + 3
        if i == 3: tr(e, 1)
        e(f"v_min_u32 v10, v{d3}, v{G+19 if i == 0 else 10}")
        e(f"v_perm_b32 v{d3}, v{G+16+i//2}, v{d3}, s{sSelO if i & 1 else sSelE}")
        if i == 3:
            e(f"v_cmp_gt_u32 vcc, s67, v10")
        for c in range(6):
            w = W1 + (c * 4 + i) * 8
            e(f"v_smfmac_f32_16x16x64_bf16 v[{AC+4*c}:{AC+4*c+3}], v[{G+4*i}:{G+4*i+3}], v[{w}:{w+7}], v2")
            if i == 3 and c == 0:
                e(f"s_cbranch_vccnz {LpA}_retry")
    tail.append(f"{LpA}_retry:\ns_nop 7\n" + ("s_add_u32 s85, s85, 1\n" if common.DIAG else "") + f"s_branch {LpA}")
    for p in range(3):
        a, b = AC + 8 * p, AC + 8 * p + 4
        for r in range(4): e(f"v_permlane32_swap_b32 v{a+r}, v{b+r}")
        for r in range(4): e(f"v_add_f32 v{a+r}, v{a+r}, v{b+r}")
        e(f"ds_write_b128 v3, v[{a}:{a+3}] offset:{p*1536}")
    tr(e, 2)
    e("s_waitcnt lgkmcnt(0)\ns_barrier")
    tr(e, 3)
    Lnp = e.label("Lnp")
    e(f"s_cmp_gt_u32 s{S_WAVE}, 1\ns_cbranch_scc1 {Lnp}_o")
    reduce4(e, 4, 5, 18)
    publish_B(e, tail)
    e(f"{Lnp}:")
    tail.append(f"""{Lnp}_o:
s_lshl_b32 s48, s{S_WG}, 3
s_add_u32 s48, s48, s{S_WAVE}
s_cmp_lg_u32 s48, 2
s_cbranch_scc1 {Lnp}
v_mov_b32 v12, 0
v_mov_b32 v13, s{sStep}
s_mov_b64 exec, 1
global_store_dword v12, v13, s[{P_DBG}:{P_DBG+1}] offset:{DBG_PROG} sc1
s_mov_b64 exec, -1
s_branch {Lnp}""")
    e(f"s_cmp_eq_u32 s{sStep}, 63\ns_cbranch_scc1 {L1x}")
    tr_out(e)
    e(f"s_lshl_b32 s48, s{sStep}, 2\ns_add_u32 s48, s48, s46\nv_mov_b32 v20, s48\nv_mov_b32 v21, 1\nv_mov_b32 v22, 0")
    e("s_waitcnt vmcnt(0)\ns_barrier")
    tr(e, 4)
    reduce4(e, 7, 8, 10)
    rank = RANK_A and FIX_A < 0
    if rank and not CANARY: e(f"global_atomic_pk_add_bf16 v13, v9, v12, s[{sACCN}:{sACCN+1}] sc0")
    else: e(f"global_atomic_pk_add_bf16 v9, v12, s[{sACCN}:{sACCN+1}]")
    if CANARY:
        e(f"""s_mov_b64 exec, 1
global_atomic_add v13, v20, v21, s[{P_WS}:{P_WS+1}] sc0
s_mov_b64 exec, -1""")
    tr(e, 5)
    advance(e)
    aaddr()
    if rank and CANARY:
        Lc = e.label("Lcan")
        can = lambda r: f"global_atomic_add v{r}, v20, v22, s[{P_WS}:{P_WS+1}] sc0"
        regs = [13, 18, 19, 10][:CANARY]
        e("s_mov_b64 exec, 1")
        for r in regs[1:]:
            e(f"s_sleep {CGAP}\n{can(r)}")
        e(f"s_waitcnt vmcnt({CANARY-1})")
        tr(e, 6)
        e(f"v_readfirstlane_b32 s48, v13\ns_cmp_ge_u32 s48, {CTHR-1}\ns_cbranch_scc1 {Lc}_ok\n{Lc}:")
        for i in range(CANARY):
            nxt = regs[(i + 1) % CANARY]
            e(f"""{can(regs[i])}
s_waitcnt vmcnt({CANARY-1})
v_readfirstlane_b32 s48, v{nxt}
s_cmp_ge_u32 s48, {CTHR}
s_cbranch_scc1 {Lc}_ok""")
        e(f"""s_add_u32 s{sSpin}, s{sSpin}, 1
s_cmp_gt_u32 s{sSpin}, {SPIN_MAX}
s_cbranch_scc1 {Lfail}
s_branch {Lc}
{Lc}_ok:
s_mov_b64 exec, -1
s_branch {L1}""")
    else:
      if FIX_A >= 0:
        e(f"s_sleep {FIX_A}")
      else:
        e("s_waitcnt vmcnt(0)")
      tr(e, 6)
      if rank:
        Lr = e.label("Lrank")
        e(f"""v_and_b32 v13, 0xffff0000, v13
v_cvt_u32_f32 v13, v13
v_readlane_b32 s48, v13, 3
{Lr}:
s_cmp_ge_u32 s48, 7
s_cbranch_scc1 {L1}
s_add_u32 s48, s48, 1
s_sleep {RANK_A}
s_branch {Lr}""")
      e(f"s_branch {L1}")
    e(f"{L1x}:\ns_setprio 0\ns_branch {L_done}")

    e(f"{LS2}:")
    T, VV, S0, S1_, SM, PX, PM, YM, O, LS, YX, KX, VX, WO = 28, 44, 52, 56, 60, 64, 68, 72, 88, 104, 108, 124, 156, 188
    ON16, ON32 = 22, 24
    e(f"""s_lshl_b32 s48, s{sG}, 2
s_add_u32 s48, s48, s{sW}
s_lshl_b32 s55, s48, 13
s_lshl_b32 s48, s48, 18
s_lshl_b32 s49, s{sM}, 7
s_add_u32 s52, s48, s49
v_lshrrev_b32 v12, 3, v0
v_lshlrev_b32 v12, 11, v12
v_and_b32 v13, 7, v0
v_lshl_add_u32 v12, v13, 4, v12
s_lshl_b32 s53, s{sW}, 13
s_add_u32 s53, s53, 131072
v_lshrrev_b32 v13, 4, v0
v_lshlrev_b32 v13, 3, v13
v_bfe_u32 v14, v0, 2, 2
v_add_u32 v13, v13, v14
v_lshlrev_b32 v13, 7, v13
v_and_b32 v14, 3, v0
v_lshl_add_u32 v13, v14, 3, v13
v_add_u32 v13, s53, v13""")
    make_srd(e, SRD_W, P_BWO, 52, 0, 8388608)
    for rnd in range(2):
        L = e.label("Lwo")
        e(f"""s_mov_b32 m0, s53
s_mov_b32 s54, {rnd*64*2048}
{L}:
buffer_load_dwordx4 v12, s[{SRD_W}:{SRD_W+3}], s54 offen lds
s_add_u32 s54, s54, {8*2048}
s_add_u32 m0, m0, 1024
s_cmp_lt_u32 s54, {(rnd+1)*64*2048}
s_cbranch_scc1 {L}""")
        e("s_waitcnt vmcnt(0)")
        for ct in range(4):
            for jj in range(2):
                r = WO + (ct * 4 + rnd * 2 + jj) * 4
                for h in range(2):
                    e(f"ds_read_b64_tr_b16 v[{r+2*h}:{r+2*h+1}], v13 offset:{(32*jj + 4*h)*128 + 32*ct}")
        e("s_waitcnt lgkmcnt(0)")
    e(f"""s_mul_i32 s48, s{sW}, 6144
v_lshlrev_b32 v14, 4, v0
v_add_u32 v1, s48, v14
v_add_u32 v20, s55, v14
s_lshr_b32 s55, s55, 1
v_and_b32 v15, 15, v0
v_lshrrev_b32 v16, 2, v15
v_mul_u32_u24 v16, 160, v16
v_and_b32 v15, 3, v15
v_lshl_add_u32 v16, v15, 5, v16
v_bfe_u32 v15, v0, 4, 1
v_lshl_add_u32 v16, v15, 4, v16
s_mul_i32 s48, s{sW}, 2560
s_add_u32 s48, s48, {R2}
v_add_u32 v3, s48, v16
v_mov_b32 v{ON32}, 0x3f803f80
v_mov_b32 v{ON32+1}, 0x3f803f80
v_mov_b32 v{ON32+2}, 0x3f803f80
v_mov_b32 v{ON32+3}, 0x3f803f80
v_cmp_gt_u32 vcc, 32, v0
v_cndmask_b32 v{ON16}, 0, v{ON32}, vcc
v_cndmask_b32 v{ON16+1}, 0, v{ON32}, vcc""")
    e(f"""v_lshrrev_b32 v15, 4, v0
v_lshlrev_b32 v15, 7, v15
v_and_b32 v16, 7, v0
v_lshl_add_u32 v15, v16, 4, v15
s_cmp_lt_u32 s{sM}, 4
s_cselect_b64 vcc, -1, 0
v_cndmask_b32 v21, v14, v15, vcc
v_add_u32 v21, s55, v21""")
    wait_start()
    e("s_barrier")
    e(f"""s_mul_i32 s48, s{sW}, 2560
s_add_u32 s48, s48, {R2+128}
v_mov_b32 v12, s48
v_mov_b32 v14, 0x3e800000
v_mov_b32 v15, 0
ds_write_b64 v12, v[14:15]
s_waitcnt lgkmcnt(0)
s_barrier
s_setprio 2""")
    def kv_loads(reg, base):
        if NOKV: return ["s_nop 0"] * 8
        return [f"global_load_dwordx4 v[{reg+4*x}:{reg+4*x+3}], v{20 if x < 4 else 19}, s[{base}:{base+1}] offset:{(x%4)*1024} sc1" for x in range(8)]
    def yx(kl=()):
        kl = list(kl); n = 0
        for ct in range(4):
            for tt in range(2):
                a = YM + (ct * 2 + tt) * 4
                for ks in range(4):
                    c = "0" if ks == 0 else f"v[{a}:{a+3}]"
                    e(f"v_mfma_f32_16x16x32_bf16 v[{a}:{a+3}], v[{VX+(tt*4+ks)*4}:{VX+(tt*4+ks)*4+3}], v[{WO+(ct*4+ks)*4}:{WO+(ct*4+ks)*4+3}], {c}")
                    n += 1
                    if kl and n >= KLATE and (n - KLATE) % 2 == 0: e(kl.pop(0))
        for l in kl: e(l)
        for ct in range(4):
            for x in range(4):
                a = YM + ct * 8 + 2 * x
                e(f"v_cvt_pk_bf16_f32 v{YX+ct*4+x}, v{a}, v{a+1}")
        for r in range(0, 16, 2): e(f"v_mov_b64 v[{YM+r}:{YM+r+1}], 0")
    if kv_wait: kv_wait(e, Lfail, first=True)
    e("v_add_u32 v19, 4096, v20")
    for l in kv_loads(VX, sV): e(l)
    for l in kv_loads(KX, sK): e(l)
    e("s_waitcnt vmcnt(8)")
    yx()
    L2, LpB, L2x = e.label("L2"), e.label("LpB"), e.label("L2x")
    e(f"{L2}:\ns_barrier")
    tr(e, 0)
    reduce4(e, 4, 5, 18)
    publish_B(e, tail)
    tr(e, 1)
    e(f"""s_add_u32 s{sV}, s{sV}, {KVSTEP}
s_addc_u32 s{sV+1}, s{sV+1}, 0
s_add_u32 s{sK}, s{sK}, {KVSTEP}
s_addc_u32 s{sK+1}, s{sK+1}, 0
v_add_u32 v18, 4096, v1
v_add_u32 v19, 4096, v20""")
    if DELAY_B >= 0:
        for _ in range(DELAY_B): e("s_nop 7")
    elif ACK_B: e("s_waitcnt vmcnt(0)")
    tr(e, 2)
    e(f"{LpB}:")
    tr(e, 7)
    pieces = [(T + 4 * ks, 1, 1024 * ks) for ks in range(4)] + [(VV + 4 * u, 18, 1024 * u) for u in range(2)]
    ldB = [f"global_load_dwordx4 v[{r}:{r+3}], v{a}, s[{sB}:{sB+1}] offset:{o} sc1" for r, a, o in pieces]
    if LATE_V:
        for l in ldB[:4]: e(l)
        e("s_waitcnt vmcnt(3)")
        for l in ldB[4:]: e(l)
    else:
        for l in ldB: e(l)
    for i in range(5):
        e(f"{LpB}_c{i}:")
        t = pieces[i][0]
        if i < 4:
            e(f"s_waitcnt vmcnt({5-i})\nv_max3_u32 v10, v{t}, v{t+1}, v{t+2}\nv_max_u32 v10, v10, v{t+3}")
        else:
            e(f"s_waitcnt vmcnt(0)\nv_max3_u32 v10, v{t}, v{t+1}, v{t+2}\nv_max3_u32 v10, v{t+3}, v{t+4}, v10\nv_max3_u32 v10, v{t+5}, v{t+6}, v10\nv_max_u32 v10, v10, v{t+7}")
        e(f"v_cmp_eq_u32 vcc, -1, v10\ns_cbranch_vccnz {LpB}_r{i}")
        tail.append(f"{LpB}_r{i}:\n" + "\n".join(ldB[i:]) + f"\ns_add_u32 s{sSpin}, s{sSpin}, 1\ns_cmp_gt_u32 s{sSpin}, {SPIN_MAX}\ns_cbranch_scc1 {Lfail}\ns_branch {LpB}_c{i}")
        if i < 4:
            for (a, kreg) in ((S0, KX + i * 4), (S1_, KX + (4 + i) * 4), (SM, t)):
                c = "0" if i == 0 else f"v[{a}:{a+3}]"
                e(f"v_mfma_f32_16x16x32_bf16 v[{a}:{a+3}], v[{kreg}:{kreg+3}], v[{t}:{t+3}], {c}")
    e(f"s_cmp_eq_u32 s{sStep}, 63\ns_cbranch_scc1 {L2x}")
    tr(e, 3)
    ym = []
    for u in range(2):
        for ct in range(4):
            ym.append(f"v_smfmac_f32_16x16x64_bf16 v[{YM+4*ct}:{YM+4*ct+3}], v[{VV+4*u}:{VV+4*u+3}], v[{WO+(ct*4+2*u)*4}:{WO+(ct*4+2*u)*4+7}], v2")
    vl = kv_loads(VX, sV)
    sm = []
    sm.append(f"v_max3_f32 v12, v{S0}, v{S0+1}, v{S0+2}")
    sm.append(f"v_max3_f32 v13, v{S0+3}, v{S1_}, v{S1_+1}")
    sm.append(f"v_max3_f32 v12, v{S1_+2}, v{S1_+3}, v12")
    sm.append(f"v_max_f32 v12, v12, v13\ns_mov_b32 exec_hi, 0")
    sm.append(f"v_max3_f32 v12, v{SM}, v{SM+1}, v12")
    sm.append(f"v_max3_f32 v12, v{SM+2}, v{SM+3}, v12\ns_mov_b32 exec_hi, -1")
    sm.append("v_mov_b32 v13, v12")
    sm.append("v_permlane16_swap_b32 v12, v13")
    sm.append("v_max_f32 v12, v12, v13")
    sm.append("v_mov_b32 v13, v12")
    sm.append("v_permlane32_swap_b32 v12, v13")
    sm.append("v_max_f32 v12, v12, v13")
    sm.append(f"v_mul_f32 v12, s{sC}, v12")
    e(ym[0]); e(sm[0]); e(sm[1]); e(ym[1]); e(sm[2]); e(sm[3]); e(sm[4]); e(sm[5]); e(sm[6]); e(ym[2]); e(vl[0]); e(sm[7]); e(sm[8]); e(sm[9]); e(ym[3]); e(vl[1]); e(sm[10]); e(sm[11]); e(sm[12])
    regs = [S0 + i for i in range(12)]
    for i, r in enumerate(regs):
        e(f"v_fma_f32 v{r}, v{r}, s{sC}, -v12")
        if i >= 1: e(f"v_exp_f32 v{regs[i-1]}, v{regs[i-1]}")
        if i in (0, 2, 4, 6): e(ym[4 + i // 2])
        if i in (1, 5, 9): e(vl[2 + i // 4])
    e(f"v_exp_f32 v{regs[-1]}, v{regs[-1]}")
    for x in range(4): e(f"v_cvt_pk_bf16_f32 v{PX+x}, v{S0+2*x}, v{S0+2*x+1}")
    e(f"v_cvt_pk_bf16_f32 v{PM}, v{SM}, v{SM+1}\nv_cvt_pk_bf16_f32 v{PM+1}, v{SM+2}, v{SM+3}")
    e(f"v_mfma_f32_16x16x32_bf16 v[{LS}:{LS+3}], v[{PX}:{PX+3}], v[{ON32}:{ON32+3}], 0")
    e(f"v_mov_b32 v{PM+2}, v{PM}\nv_mov_b32 v{PM+3}, v{PM+1}")
    e(f"v_mfma_f32_16x16x32_bf16 v[{O}:{O+3}], v[{PX}:{PX+3}], v[{YX}:{YX+3}], 0")
    e(f"v_permlane32_swap_b32 v{PM}, v{PM+2}\nv_permlane32_swap_b32 v{PM+1}, v{PM+3}")
    e(f"v_mfma_f32_16x16x32_bf16 v[{O+4}:{O+7}], v[{PX}:{PX+3}], v[{YX+4}:{YX+7}], 0")
    for ct in range(2):
        e(f"v_cvt_pk_bf16_f32 v{YM+4*ct}, v{YM+4*ct}, v{YM+4*ct+1}\nv_cvt_pk_bf16_f32 v{YM+4*ct+1}, v{YM+4*ct+2}, v{YM+4*ct+3}")
    e(f"v_mfma_f32_16x16x16_bf16 v[{LS}:{LS+3}], v[{PM}:{PM+1}], v[{ON16}:{ON16+1}], v[{LS}:{LS+3}]")
    e(f"v_mfma_f32_16x16x32_bf16 v[{O+8}:{O+11}], v[{PX}:{PX+3}], v[{YX+8}:{YX+11}], 0")
    for ct in range(2, 4):
        e(f"v_cvt_pk_bf16_f32 v{YM+4*ct}, v{YM+4*ct}, v{YM+4*ct+1}\nv_cvt_pk_bf16_f32 v{YM+4*ct+1}, v{YM+4*ct+2}, v{YM+4*ct+3}")
    e(f"v_mfma_f32_16x16x32_bf16 v[{O+12}:{O+15}], v[{PX}:{PX+3}], v[{YX+12}:{YX+15}], 0")
    for ct in range(4):
        e(f"v_mfma_f32_16x16x16_bf16 v[{O+4*ct}:{O+4*ct+3}], v[{PM}:{PM+1}], v[{YM+4*ct}:{YM+4*ct+1}], v[{O+4*ct}:{O+4*ct+3}]")
        if ct < 3: e(vl[5 + ct])
    for r in range(4): e(f"v_rcp_f32 v{LS+r}, v{LS+r}")
    e("s_mov_b32 exec_lo, 0")
    for ct in range(4):
        for r in range(4): e(f"v_mul_f32 v{O+4*ct+r}, v{O+4*ct+r}, v{LS+r}")
        e(f"ds_write_b128 v3, v[{O+4*ct}:{O+4*ct+3}] offset:{ct*640}")
    tr(e, 4)
    e("s_mov_b64 exec, -1\ns_waitcnt lgkmcnt(0)\ns_barrier")
    tr(e, 5)
    Lna = e.label("Lna")
    e(f"s_cmp_lg_u32 s{S_WAVE}, 4\ns_cbranch_scc1 {Lna}")
    reduce4(e, 7, 8, 10)
    e(f"global_atomic_pk_add_bf16 v9, v12, s[{sACCN}:{sACCN+1}]\nv_add_u32 v19, 4096, v20\ns_waitcnt vmcnt(1)\ns_branch {Lna}_b\n{Lna}:\ns_waitcnt vmcnt(0)\n{Lna}_b:")
    def persist():
        Lp = e.label("Lp")
        e(f"s_cmp_gt_u32 s{sM}, 5\ns_cbranch_scc1 {Lp}")
        for mm in range(6):
            Ln = e.label("Lpn")
            e(f"s_cmp_lg_u32 s{sM}, {mm}\ns_cbranch_scc1 {Ln}")
            if mm < 4:
                e(f"s_mov_b32 exec_lo, 0x00ff00ff\ns_mov_b32 exec_hi, 0x00ff00ff\nglobal_store_dwordx4 v21, v[{T+4*mm}:{T+4*mm+3}], s[{sKVM}:{sKVM+1}] offset:{512*mm} sc1\ns_mov_b64 exec, -1")
            else:
                e(f"global_store_dwordx4 v21, v[{VV+4*(mm-4)}:{VV+4*(mm-4)+3}], s[{sKVM}:{sKVM+1}] offset:{2048+1024*(mm-4)} sc1")
            e(f"{Ln}:")
        e(f"{Lp}:\ns_add_u32 s{sKVM}, s{sKVM}, 131072\ns_addc_u32 s{sKVM+1}, s{sKVM+1}, 0")
    yx(kv_loads(KX, sK))
    persist()
    tr(e, 6)
    tr_out(e)
    advance(e)
    if kv_wait: kv_wait(e, Lfail, first=False)
    e(f"s_branch {L2}")
    e(f"{L2x}:\ns_setprio 0")
    persist()
    e(f"s_branch {L_done}")
    for t in tail: e(t)
    e(f"""{Lfail}:
s_mov_b64 exec, -1
v_mov_b32 v12, 0
v_mov_b32 v13, 1
global_store_dword v12, v13, s[{P_DBG}:{P_DBG+1}] offset:{DBG_FAIL}
s_endpgm""")

import struct
def f32bits(x): return struct.unpack("<I", struct.pack("<f", x))[0]
```

```python
import common
from common import *
from jobs import *
import chain as ch
from chain import chain

C_KV = 128
C_Q = 160
C_KVA = 68
C_FIN = 72
C_OA = 192
MAP = 1
FINE = 0
SPIN = 79

def signal(e, off, s_idx=None, val=1):
    L = e.label("Lsig")
    e(f"s_waitcnt vmcnt(0)\ns_barrier\ns_cmp_lg_u32 s{S_WAVE}, 0\ns_cbranch_scc1 {L}")
    if s_idx is None: e("v_mov_b32 v2, 0")
    else: e(f"s_lshl_b32 s48, s{s_idx}, 2\nv_mov_b32 v2, s48")
    e(f"""v_mov_b32 v3, {val}
s_mov_b64 exec, 1
global_atomic_add v2, v3, s[{P_DBG}:{P_DBG+1}] offset:{off}
s_mov_b64 exec, -1
{L}:""")

def poll(e, Lfail, off, s_idx, target, shift=0, mask=None, spin=SPIN, t=2, slp=8):
    L = e.label("Lpoll")
    if s_idx is None: e(f"v_mov_b32 v{t}, 0")
    else: e(f"s_lshl_b32 s48, s{s_idx}, 2\nv_mov_b32 v{t}, s48")
    e(f"""{L}:
global_load_dword v{t+1}, v{t}, s[{P_DBG}:{P_DBG+1}] offset:{off} sc1
s_add_u32 s{spin}, s{spin}, 1
s_cmp_gt_u32 s{spin}, {ch.SPIN_MAX}
s_cbranch_scc1 {Lfail}
s_waitcnt vmcnt(0)
v_readfirstlane_b32 s48, v{t+1}""")
    if shift: e(f"s_lshr_b32 s48, s48, {shift}")
    if mask: e(f"s_and_b32 s48, s48, {mask}")
    Lok = e.label("Lok")
    e(f"s_cmp_ge_u32 s48, {target}\ns_cbranch_scc1 {Lok}\ns_sleep {slp}\ns_branch {L}\n{Lok}:")

def wait(e, Lfail, conds):
    L = e.label("Lwt")
    e(f"s_cmp_lg_u32 s{S_WAVE}, 0\ns_cbranch_scc1 {L}")
    for c in conds: poll(e, Lfail, *c)
    e(f"{L}:\ns_barrier")

def kv_wait(e, Lfail, first):
    if first:
        e("s_mov_b32 s49, 0")
        poll(e, Lfail, C_KV, 49, 64, spin=ch.sSpin, t=12, slp=4)
        return
    L = e.label("Lkvw")
    e(f"""s_add_u32 s49, s{ch.sStep}, 1
s_and_b32 s48, s49, 7
s_cmp_lg_u32 s48, 0
s_cbranch_scc1 {L}
s_lshr_b32 s49, s49, 3
s_cmp_gt_u32 s49, 7
s_cbranch_scc1 {L}""")
    poll(e, Lfail, C_KV, 49, 64, spin=ch.sSpin, t=12, slp=4)
    e(f"{L}:")

def sig_hook(off, s_idx, val):
    def h(e):
        L = e.label("Lsig")
        e(f"""s_cmp_lg_u32 s{S_WAVE}, 0
s_cbranch_scc1 {L}
s_lshl_b32 s58, s{s_idx}, 2
v_mov_b32 v{EA}, s58
v_mov_b32 v{EA+1}, {val}
s_mov_b64 exec, 1
global_atomic_add v{EA}, v{EA+1}, s[{P_DBG}:{P_DBG+1}] offset:{off}
s_mov_b64 exec, -1
{L}:""")
    return h

CODE_KB = 40
TLB = 21
def k_fused(e):
    e("s_cmp_ge_u32 s2, 256\ns_cbranch_scc1 Lend")
    load_args(e)
    e("""s_and_b32 s48, s2, 3
s_lshl_b32 s48, s48, 1
s_lshr_b32 s49, s2, 7
s_add_u32 s48, s48, s49
s_bfe_u32 s49, s2, 0x40003
s_lshl_b32 s49, s49, 3
s_add_u32 s48, s48, s49
s_and_b32 s49, s2, 4
s_lshl_b32 s49, s49, 5
s_add_u32 s35, s48, s49""")
    if CODE_KB:
        e(f"""s_getpc_b64 s[48:49]
Lpc:
s_lshl_b32 s50, s{S_WAVE}, 13
v_lshlrev_b32 v1, 7, v0
v_add_u32 v1, s50, v1
v_min_u32 v1, Lend-Lpc, v1
global_load_dword v1, v1, s[48:49]""")
    if TLB:
        Lt = e.label("Ltlb")
        e(f"s_cmp_lg_u32 s{S_WAVE}, 7\ns_cbranch_scc1 {Lt}")
        for ptr, size in ((P_BX, 4*MB), (P_BWK, 8*MB), (P_BWV, 8*MB), (P_BWQ, 8*MB), (P_BWO, 8*MB), (P_AX, 4*MB), (P_AWQ, 2*MB), (P_AWO, 2*MB), (P_OUT, 8*MB), (P_WS, 80*MB)):
            sh = max(TLB, (size // 64 - 1).bit_length())
            e(f"v_lshlrev_b32 v2, {sh}, v0\nv_min_u32 v2, {size-4}, v2\nglobal_load_dword v1, v2, s[{ptr}:{ptr+1}] sc1")
        e(f"{Lt}:")
    stamp(e, 0, True); stamp(e, 14)
    X, Y = 70, 71
    M = [72, 74]; N = [73, 75]
    F = "Lwfail"
    e(f"s_and_b32 s{X}, s35, 7\ns_bfe_u32 s{Y}, s35, 0x40003\ns_mov_b32 s{SPIN}, 0")
    if FINE == 2: e(f"s_cmp_lt_u32 s35, 128\ns_cbranch_scc1 Lend\ns_bitcmp1_b32 s{X}, 0\ns_cbranch_scc1 Lend")
    if FINE == 3: e(f"s_cmp_lt_u32 s35, 128\ns_cbranch_scc1 Lend")
    e("s_cmp_ge_u32 s35, 128\ns_cbranch_scc1 Lworker")
    e(f"s_lshr_b32 s55, s{Y}, 3\ns_and_b32 s{N[0]}, s{Y}, 7\ns_lshl_b32 s48, s{X}, 3\ns_add_u32 s{N[0]}, s{N[0]}, s48\ns_add_u32 s{N[0]}, s{N[0]}, 32\ns_mov_b32 s{M[0]}, s55")
    j1 = QKV(G128(), M[0], N[0]); j1.pre(e); j1.main(e); j1.post(e)
    stamp(e, 3, True)
    def arrive(e):
        e(f"s_lshr_b32 s48, s{S_WG}, 6\ns_mov_b32 s49, s58")
        sig_hook(C_KV, 48, 1)(e)
        e("s_mov_b32 s58, s49")
    chain(e, "Lchain_done", kv_wait, arrive)
    e("Lchain_done:")
    signal(e, C_FIN)
    stamp(e, 2, True); stamp(e, 15)
    if common.DIAG: e("s_mov_b32 s84, s65")
    stamps_out(e, 16)
    e("s_endpgm")
    XQ, R = 78, 76
    e(f"Lworker:\ns_lshr_b32 s{XQ}, s{X}, 1\ns_bitcmp1_b32 s{X}, 0\ns_cbranch_scc1 LH2")
    def coords(e):
        e(f"""s_lshl_b32 s52, s{R}, 2
s_lshr_b32 s52, 0x46402, s52
s_and_b32 s52, s52, 15
s_bitcmp1_b32 0x12, s{R}
s_cselect_b32 s53, 2, 3
s_cselect_b32 s54, 0, 32
s_lshr_b32 s{M[0]}, s{Y}, s53
s_lshl_b32 s55, s{M[0]}, s53
s_sub_u32 s55, s{Y}, s55
s_add_u32 s{M[0]}, s{M[0]}, s52
s_lshl_b32 s{N[0]}, s{XQ}, s53
s_add_u32 s{N[0]}, s{N[0]}, s55
s_lshl_b32 s{N[0]}, s{N[0]}, 1
s_add_u32 s{N[0]}, s{N[0]}, s54""")
    js = QKV(G256(), M[0], N[0])
    e(f"s_mov_b32 s{R}, 0")
    coords(e); js.pre(e)
    def switch(e):
        L = e.label("Lsw")
        e(f"s_mov_b32 s{M[1]}, s{M[0]}\ns_mov_b32 s{N[1]}, s{N[0]}\ns_add_u32 s{R}, s{R}, 1")
        coords(e); js.srds(e)
        e(f"s_cmp_lt_u32 s{R}, 5\ns_cbranch_scc1 {L}\ns_mov_b32 s{SRD_X+2}, 0\ns_mov_b32 s{SRD_W+2}, 0\n{L}:")
    def tile_end(e, Ln):
        if FINE:
            e("s_mov_b32 s86, s88\ns_mov_b32 s87, s89"); stamp(e, 8)
        js.post(e, M[1], N[1])
        if FINE: stamp(e, 9)
        if common.DIAG:
            for i in range(1, 6):
                L = e.label("Lst"); e(f"s_cmp_lg_u32 s{R}, {i}\ns_cbranch_scc1 {L}"); stamp(e, i, True); e(f"{L}:")
        js.g.zero_acc(e)
        e(f"""s_cmp_lt_u32 s{N[1]}, 32
s_cselect_b32 s61, 8, 0
s_add_u32 s61, s61, s{M[1]}
s_mov_b32 s{js.g.sPh}, {js.g.NST-1}
s_cmp_lt_u32 s{R}, 5
s_cbranch_scc1 {Ln}""")
    js.g.run(e, js.nstores(), sig_hook(C_KV, 61, 2), switch, tile_end)
    e("s_barrier")
    sig_hook(C_KV, 61, 2)(e)
    if FINE:
        stamp(e, 15); stamps_out(e, 16); e("s_endpgm")
    e("s_branch LB")
    e(f"LH2:\ns_lshl_b32 s{M[0]}, s{XQ}, 4\ns_add_u32 s{M[0]}, s{M[0]}, s{Y}")
    job_a_kv(e, M[0], "sc1")
    signal(e, C_KVA)
    stamp(e, 1, True)
    e(f"s_lshl_b32 s{N[0]}, s{XQ}, 1\nLa2:")
    j5 = AAttn(Y, N[0], lambda e: wait(e, F, [(C_KVA, None, 64)]))
    j5.pre(e); j5.main(e); j5.post(e)
    signal(e, C_OA, Y, 1)
    if common.DIAG: e("s_mov_b32 s82, s83")
    stamp(e, 3, True)
    e(f"s_add_u32 s{N[0]}, s{N[0]}, 1\ns_bitcmp1_b32 s{N[0]}, 0\ns_cbranch_scc1 La2")
    wait(e, F, [(C_OA, Y, 8, 0, 255)])
    stamp(e, 4, True)
    j6 = Out("A", Y, XQ, 256); j6.pre(e); j6.main(e); j6.post(e)
    stamp(e, 5, True)
    if FINE:
        stamp(e, 15); stamps_out(e, 16); e("s_endpgm")
    e("LB:")
    stamp(e, 6, True)
    e(f"s_lshr_b32 s75, s{Y}, 1\ns_lshl_b32 s76, s{Y}, 2\ns_add_u32 s76, s76, 5")
    e(f"s_cmp_lg_u32 s{S_WAVE}, 0\ns_cbranch_scc1 Lw7")
    poll(e, F, C_Q, 75, 32)
    e(f"s_cmp_eq_u32 s{Y}, 15\ns_cbranch_scc1 Lw7f")
    poll(e, F, ch.DBG_PROG, None, "s76")
    e("s_branch Lw7\nLw7f:")
    poll(e, F, C_FIN, None, 128)
    e("Lw7:\ns_barrier")
    stamp(e, 8, True)
    b_attn_setup(e)
    e(f"""s_lshl_b32 s60, s{Y}, 2
s_lshr_b32 s48, s{S_WAVE}, 2
s_add_u32 s60, s60, s48
s_lshl_b32 s60, s60, 5
s_lshl_b32 s48, s{X}, 2
s_add_u32 s60, s60, s48
s_and_b32 s48, s{S_WAVE}, 3
s_add_u32 s60, s60, s48
s_mov_b32 s61, 0
Lbat:""")
    b_attn_unit(e, 60, "sc1", "sc1")
    e("s_add_u32 s60, s60, 64\ns_add_u32 s61, s61, 1\ns_cmp_lt_u32 s61, 2\ns_cbranch_scc1 Lbat")
    signal(e, C_OA, Y, 256)
    stamp(e, 9, True)
    wait(e, F, [(C_OA, Y, 8, 8, 255)])
    stamp(e, 10, True)
    j8 = Out("B", Y, X); j8.pre(e); j8.main(e); j8.post(e)
    stamp(e, 11, True); stamp(e, 15)
    stamps_out(e, 16)
    e(f"""Lend:
s_endpgm
{F}:
v_mov_b32 v2, 0
v_mov_b32 v3, 2
global_store_dword v2, v3, s[{P_DBG}:{P_DBG+1}] offset:{ch.DBG_FAIL - 4}
s_endpgm""")
```

```python
from common import *

class Gemm:
    def __init__(self, BM, BN, WM, WN, K, NST, xmode, xstride, wstride, acc0=128, ld="", mf=32, MH=1):
        assert WM * WN == 8
        self.BM, self.BN, self.WM, self.WN, self.K, self.NST = BM, BN, WM, WN, K, NST
        self.xmode, self.xstride, self.wstride, self.mf, self.MH = xmode, xstride, wstride, mf, MH
        self.TM, self.TN = BM // WM // mf, BN // WN // mf
        self.wrows = BM // WM
        self.NSUB = 4 if mf == 32 else 2 * MH
        self.TMS = self.TM if mf == 32 else self.TM // MH
        self.nX, self.nW = BM // 64, BN // 64
        assert self.nX >= 1 and self.nW >= 1 and (mf == 32 or BN >= 128)
        self.XS, self.WS = BM * 128, BN * 128
        self.WBASE = NST * self.XS
        self.lds = NST * (self.XS + self.WS)
        self.acc0 = acc0
        self.ld = ld
        r = 2
        self.vX = list(range(r, r + self.nX)); r += self.nX
        self.vW = list(range(r, r + self.nW)); r += self.nW
        self.nxa = (4 if mf == 32 else 2) if xmode == "rm" else 1
        self.aX = list(range(r, r + self.nxa)); r += self.nxa
        self.aW = list(range(r, r + self.TN)); r += self.TN
        assert r <= 20
        self.tmp = 20; r = 24
        self.fX = [[r + 4 * (p * self.TMS + i) for i in range(self.TMS)] for p in range(2)]; r += 8 * self.TMS
        self.fW = [[r + 4 * (p * self.TN + i) for i in range(self.TN)] for p in range(2)]; r += 8 * self.TN
        self.vend = r
        assert r <= 92
        self.sXo, self.sWo, self.sCnt, self.sMX, self.sMW, self.sBuf, self.sPh = 64, 65, 66, 67, 68, 69, 77
    def acc(self, nt, mt):
        return self.acc0 + (16 if self.mf == 32 else 4) * (nt * self.TM + mt)
    def wave_ids(self, e, sm, sn):
        lg = self.WN.bit_length() - 1
        e(f"s_lshr_b32 s{sm}, s{S_WAVE}, {lg}\ns_and_b32 s{sn}, s{S_WAVE}, {self.WN-1}")

    def setup(self, e):
        t0, t1, t2, t3 = self.tmp, self.tmp + 1, self.tmp + 2, self.tmp + 3
        BM, BN, m16 = self.BM, self.BN, self.mf == 16
        self.wave_ids(e, 48, 49)
        if self.xmode == "rm":
            e(f"""s_mul_i32 s50, s{S_WAVE}, {BM//8}
v_lshrrev_b32 v{t0}, 3, v0
v_add_u32 v{t0}, s50, v{t0}
v_lshrrev_b32 v{t1}, 1, v{t0}
v_xor_b32 v{t1}, v{t1}, v0
v_and_b32 v{t1}, 7, v{t1}
v_lshlrev_b32 v{t1}, 4, v{t1}
v_mul_u32_u24 v{t0}, {self.xstride}, v{t0}
v_add_u32 v{self.vX[0]}, v{t0}, v{t1}""")
            if self.nX > 1:
                e(f"v_xor_b32 v{t1}, 64, v{t1}\nv_add_u32 v{t1}, v{t0}, v{t1}")
            for j in range(1, self.nX):
                e(f"v_add_u32 v{self.vX[j]}, {j*(8*self.xstride - 1024)}, v{t1 if j & 1 else self.vX[0]}")
        else:
            assert self.nX in (1, 2, 4)
            e(f"""s_mul_i32 s50, s{S_WAVE}, {self.nX}
s_lshr_b32 s51, s50, 2
s_and_b32 s50, s50, 3
s_mul_i32 s51, s51, {self.xstride}
s_lshl_b32 s50, s50, 10
s_add_u32 s50, s50, s51
v_lshlrev_b32 v{t0}, 4, v0
v_add_u32 v{self.vX[0]}, s50, v{t0}""")
            for j in range(1, self.nX): e(f"v_mov_b32 v{self.vX[j]}, v{self.vX[0]}")
        rpi = 512 // BN
        lpr = 64 // rpi
        lgl = lpr.bit_length() - 1
        for j in range(self.nW):
            e(f"""s_lshl_b32 s50, s{S_WAVE}, 3
s_add_u32 s50, s50, {rpi*j}
v_lshrrev_b32 v{t0}, {lgl}, v0
v_add_u32 v{t0}, s50, v{t0}""")
            if BN >= 128:
                e(f"v_and_b32 v{t1}, 3, v{t0}\nv_lshlrev_b32 v{t1}, 2, v{t1}")
                if m16:
                    e(f"v_bfe_u32 v{t2}, v{t0}, {3 if self.xmode == 'rm' else 2}, 1\nv_lshl_or_b32 v{t1}, v{t2}, 1, v{t1}")
            else:
                e(f"v_and_b32 v{t1}, 2, v{t0}\nv_lshlrev_b32 v{t1}, 1, v{t1}")
            e(f"""v_and_b32 v{t2}, {lpr-1}, v0
v_xor_b32 v{t1}, v{t1}, v{t2}
v_mul_u32_u24 v{t0}, {self.wstride}, v{t0}
v_lshl_add_u32 v{t0}, v{t1}, 4, v{t0}
v_subrev_u32 v{self.vW[j]}, {1024*j}, v{t0}""")
        e(f"s_mul_i32 s{self.sMX}, s{S_WAVE}, {1024*self.nX}\ns_mul_i32 s{self.sMW}, s{S_WAVE}, {1024*self.nW}\ns_add_u32 s{self.sMW}, s{self.sMW}, {self.WBASE}")

    def setup2(self, e):
        t0, t1, t2, t3 = self.tmp, self.tmp + 1, self.tmp + 2, self.tmp + 3
        BM, BN, m16 = self.BM, self.BN, self.mf == 16
        self.wave_ids(e, 48, 49)
        e(f"s_mul_i32 s50, s48, {self.wrows*128}")
        if self.xmode == "rm":
            e(f"""v_and_b32 v{t0}, {self.mf-1}, v0
v_bfe_u32 v{t1}, v0, 1, 3
v_lshrrev_b32 v{t2}, {4 if m16 else 5}, v0
v_xor_b32 v{t1}, v{t1}, v{t2}
v_lshlrev_b32 v{t1}, 4, v{t1}
v_lshlrev_b32 v{t0}, 7, v{t0}
v_add_u32 v{t0}, s50, v{t0}""")
            for ks in range(self.nxa):
                e(f"v_xor_b32 v{t2}, {ks*(64 if m16 else 32)}, v{t1}\nv_add_u32 v{self.aX[ks]}, v{t0}, v{t2}")
        elif m16:
            e(f"""v_and_b32 v{t0}, 15, v0
v_lshlrev_b32 v{t0}, 4, v{t0}
v_lshrrev_b32 v{t1}, 4, v0
v_lshl_add_u32 v{t0}, v{t1}, 9, v{t0}
v_add_u32 v{self.aX[0]}, s50, v{t0}""")
        else:
            e(f"v_lshlrev_b32 v{t0}, 4, v0\nv_add_u32 v{self.aX[0]}, s50, v{t0}")
        P = 2 * BN
        e(f"v_bfe_u32 v{t0}, v0, 2, 2")
        if m16:
            if self.xmode == "rm":
                e(f"v_lshrrev_b32 v{t1}, 4, v0\nv_lshl_add_u32 v{t1}, v{t1}, 3, v{t0}")
            else:
                e(f"v_lshrrev_b32 v{t1}, 5, v0\nv_lshl_add_u32 v{t1}, v{t1}, 4, v{t0}\nv_bfe_u32 v{t2}, v0, 4, 1\nv_lshl_add_u32 v{t1}, v{t2}, 2, v{t1}")
            e(f"""v_mul_u32_u24 v{t1}, {P}, v{t1}
v_and_b32 v{t2}, 3, v0
v_lshl_add_u32 v{t1}, v{t2}, 3, v{t1}
v_add_u32 v{t1}, {self.WBASE}, v{t1}
v_bfe_u32 v{t2}, v0, 4, 1
v_lshl_or_b32 v{t0}, v{t0}, 1, v{t2}""")
            sh = 5
        else:
            himul = 3 if self.xmode == "rm" else 2
            e(f"""v_lshrrev_b32 v{t1}, 5, v0
v_lshl_add_u32 v{t1}, v{t1}, {himul}, v{t0}
v_mul_u32_u24 v{t1}, {P}, v{t1}
v_and_b32 v{t2}, 3, v0
v_lshl_add_u32 v{t1}, v{t2}, 3, v{t1}
v_bfe_u32 v{t2}, v0, 4, 1
v_lshl_add_u32 v{t1}, v{t2}, 5, v{t1}
v_add_u32 v{t1}, {self.WBASE}, v{t1}""")
            if BN < 128: e(f"v_lshrrev_b32 v{t0}, 1, v{t0}")
            sh = 6
        e(f"s_mul_i32 s50, s49, {self.TN}")
        for nt in range(self.TN):
            e(f"""s_add_u32 s51, s50, {nt}
v_xor_b32 v{t2}, s51, v{t0}
v_lshl_add_u32 v{self.aW[nt]}, v{t2}, {sh}, v{t1}""")

    def dma_list(self):
        L = []
        for j in range(self.nX):
            pre = f"s_mov_b32 m0, s{self.sMX}\n" if j == 0 else ""
            L.append(pre + f"buffer_load_dwordx4 v{self.vX[j]}, s[{SRD_X}:{SRD_X+3}], s{self.sXo} offen offset:{1024*j} {self.ld} lds")
        for j in range(self.nW):
            pre = f"s_mov_b32 m0, s{self.sMW}\n" if j == 0 else ""
            L.append(pre + f"buffer_load_dwordx4 v{self.vW[j]}, s[{SRD_W}:{SRD_W+3}], s{self.sWo} offen offset:{1024*j} lds")
        xadv = 128 if self.xmode == "rm" else 4096
        L[self.nX - 1] += f"\ns_add_u32 s{self.sXo}, s{self.sXo}, {xadv}\ns_add_u32 s{self.sMX}, s{self.sMX}, s62"
        L[-1] += f"\ns_add_u32 s{self.sWo}, s{self.sWo}, {64*self.wstride}\ns_add_u32 s{self.sMW}, s{self.sMW}, s63"
        return L
    def next_buf(self):
        m = lambda v: v & 0xffffffff
        return f"""s_add_u32 s{self.sBuf}, s{self.sBuf}, 1
s_cmp_eq_u32 s{self.sBuf}, {self.NST}
s_cselect_b32 s{self.sBuf}, 0, s{self.sBuf}
s_mov_b32 s62, {self.XS}
s_cselect_b32 s62, {hex(m(-(self.NST-1)*self.XS))}, s62
s_mov_b32 s63, {self.WS}
s_cselect_b32 s63, {hex(m(-(self.NST-1)*self.WS))}, s63"""

    def sub(self, i):
        if self.mf == 32: return i, 0, i & 1, i & 1
        kk, mh = divmod(i, self.MH)
        return kk, mh, kk & 1, i & 1

    def read_list(self, i):
        kk, mh, pw, px = self.sub(i)
        P = 2 * self.BN
        hstep = 4 if self.xmode == "rm" else 8
        kw = 16 if self.mf == 32 else 32
        order = []
        if mh == 0:
            for nt in range(self.TN):
                f = self.fW[pw][nt]
                for h in range(2):
                    order.append((nt * self.TMS + h * 0.1, f"ds_read_b64_tr_b16 v[{f+2*h}:{f+2*h+1}], v{self.aW[nt]} offset:{(kw*kk + hstep*h)*P}"))
        ax = self.aX
        for m in range(self.TMS):
            f = self.fX[px][m]; mt = mh * self.TMS + m
            if self.xmode == "rm": a, off = ax[kk], mt * self.mf * 128
            elif self.mf == 32: a, off = ax[0], mt * 4096 + kk * 1024
            else: a, off = ax[0], (mt // 2) * 4096 + kk * 2048 + (mt % 2) * 256
            order.append((m + 0.2, f"ds_read_b128 v[{f}:{f+3}], v{a} offset:{off}"))
        order.sort(key=lambda x: x[0])
        return [o[1] for o in order]

    def mfma_list(self, i):
        kk, mh, pw, px = self.sub(i)
        n = 15 if self.mf == 32 else 3
        op = "v_mfma_f32_32x32x16_bf16" if self.mf == 32 else "v_mfma_f32_16x16x32_bf16"
        L = []
        for nt in range(self.TN):
            for m in range(self.TMS):
                a = self.acc(nt, mh * self.TMS + m); w = self.fW[pw][nt]; x = self.fX[px][m]
                c = f"v[{a}:{a+n}]"
                L.append(f"{op} v[{a}:{a+n}], v[{w}:{w+3}], v[{x}:{x+3}], {c}")
        return L

    @staticmethod
    def weave(e, mf, fill):
        n = len(mf)
        per = -(-len(fill) // n) if fill else 0
        fi = 0
        for m in mf:
            e(m)
            for _ in range(per):
                if fi < len(fill): e(fill[fi]); fi += 1
        assert fi == len(fill)

    @staticmethod
    def merge(fill, extra):
        if not extra: return fill
        out = []; k = max(1, len(fill) // len(extra)); pi = 0
        for i, x in enumerate(fill):
            out.append(x)
            if (i + 1) % k == 0 and pi < len(extra): out.append(extra[pi]); pi += 1
        return out + extra[pi:]

    def prologue(self, e):
        L, Lx = e.label("Lpro"), e.label("Lprox")
        d = self.dma_list()
        e(f"s_mov_b32 s{self.sXo}, 0\ns_mov_b32 s{self.sWo}, 0\ns_mov_b32 s{self.sBuf}, 0\n{L}:")
        e(self.next_buf())
        for g in d[:self.nX]: e(g)
        e(f"s_cmp_eq_u32 s{self.sBuf}, 0\ns_cbranch_scc1 {Lx}")
        for g in d[self.nX:]: e(g)
        e(f"s_branch {L}\n{Lx}:")
    def zero_acc(self, e):
        n = self.TM * self.TN * (16 if self.mf == 32 else 4)
        for r in range(self.acc0, self.acc0 + n, 2): e(f"v_mov_b64 v[{r}:{r+1}], 0")

    def run(self, e, extra=0, hook=None, switch=None, tile_end=None):
        NS = self.K // 64; NST = self.NST; nper = self.nX + self.nW
        vm = (NST - 2) * nper
        L, Lb, Lh, Ls, Lsb, Ln, Lx = [e.label(x) for x in ("Lg", "Lgb", "Lgh", "Lgs", "Lgsb", "Lgn", "Lgx")]
        self.setup2(e)
        self.zero_acc(e)
        first_extra = 0 if tile_end else extra
        d = self.dma_list()
        e(f"s_mov_b32 s{self.sPh}, {NST-1 if first_extra or (hook and not tile_end) else 0}")
        e(f"s_waitcnt vmcnt({min(63, (NST-2)*nper + self.nX + first_extra)})\ns_barrier")
        for r in self.read_list(0): e(r)
        Le = e.label("Lge")
        e(f"s_mov_b32 s{self.sCnt}, 0\ns_branch {Ln}")
        e(f".p2align 6\n{L}:\ns_waitcnt vmcnt({vm}) lgkmcnt(0)\ns_barrier\n{Lb}:")
        fill = self.merge(self.read_list(0), d[:self.nX]) + [f"s_add_u32 s{self.sCnt}, s{self.sCnt}, 1\ns_cmp_eq_u32 s{self.sCnt}, {NS}"]
        self.weave(e, self.mfma_list(self.NSUB - 1), fill)
        e(f"s_cbranch_scc1 {Le}\n{Ln}:")
        for i in range(self.NSUB - 1):
            e("s_waitcnt lgkmcnt(0)")
            fill = self.read_list(i + 1)
            if i == 0: fill = self.merge(fill, d[self.nX:])
            if i == self.NSUB - 2:
                fill = fill + [self.next_buf()] + [f"v_add_u32 v{a}, s62, v{a}" for a in self.aX] + [f"v_add_u32 v{a}, s63, v{a}" for a in self.aW]
            self.weave(e, self.mfma_list(i), fill)
        e(f"""s_cmp_eq_u32 s{self.sCnt}, {NS - NST}
s_cbranch_scc1 {Ls}
{Lsb}:
s_cmp_eq_u32 s{self.sPh}, 0
s_cbranch_scc1 {L}
s_branch {Lh}
{Le}:
s_mov_b32 s{self.sCnt}, 0""")
        if tile_end: tile_end(e, Ln)
        e(f"s_branch {Lx}")
        e(f"{Ls}:")
        if switch:
            switch(e)
            e(f"s_mov_b32 s{self.sXo}, 0\ns_mov_b32 s{self.sWo}, 0")
        else:
            e(f"s_mov_b32 s{SRD_X+2}, 0\ns_mov_b32 s{SRD_W+2}, 0")
        e(f"s_branch {Lsb}")
        Lst = e.label("Lgst")
        e(f"""{Lh}:
s_sub_u32 s{self.sPh}, s{self.sPh}, 1
s_cmp_eq_u32 s{self.sPh}, 0
s_cbranch_scc1 {Lst}
s_waitcnt vmcnt({min(63, vm + extra)}) lgkmcnt(0)
s_barrier
s_branch {Lb}
{Lst}:
s_waitcnt vmcnt({vm}) lgkmcnt(0)
s_barrier""")
        if hook: hook(e)
        e(f"s_branch {Lb}\n{Lx}:\ns_waitcnt vmcnt(0) lgkmcnt(0)")
```

```python
import common
from common import *
from gemm import Gemm

def pack_tile(e, a, dst, swap=True):
    for i in range(8):
        e(f"v_cvt_pk_bf16_f32 v{dst+i}, v{a+2*i}, v{a+2*i+1}")
    if swap:
        for j in range(2):
            e(f"v_permlane32_swap_b32 v{dst+4*j}, v{dst+4*j+2}\nv_permlane32_swap_b32 v{dst+4*j+1}, v{dst+4*j+3}")

FINEA = 0
MF = 16
EA, ET = 92, 96

def tiles32(e, g):
    k = 0
    if g.mf == 32:
        for mt in range(g.TM):
            for nt in range(g.TN):
                d = ET + 8 * (k % 4); k += 1
                pack_tile(e, g.acc(nt, mt), d)
                yield nt, mt * 32, [(d, 0), (d + 4, 1)]
    else:
        for mt in range(g.TM):
            for n2 in range(g.TN // 2):
                d = ET + 4 * (k % 8); k += 1
                a, b = g.acc(2 * n2, mt), g.acc(2 * n2 + 1, mt)
                e(f"""v_cvt_pk_bf16_f32 v{d}, v{a}, v{a+1}
v_cvt_pk_bf16_f32 v{d+1}, v{a+2}, v{a+3}
v_cvt_pk_bf16_f32 v{d+2}, v{b}, v{b+1}
v_cvt_pk_bf16_f32 v{d+3}, v{b+2}, v{b+3}
v_permlane16_swap_b32 v{d}, v{d+2}
v_permlane16_swap_b32 v{d+1}, v{d+3}""")
                yield n2, mt * 16, [(d, 0)]

class QKV:
    def __init__(self, g, s_m, s_n): self.g, self.m, self.n = g, s_m, s_n
    def pre(self, e):
        self.srds(e); self.g.setup(e); self.g.prologue(e)
    def srds(self, e):
        g = self.g
        e(f"s_mul_i32 s52, s{self.m}, {g.BM*2048}")
        make_srd(e, SRD_X, P_BX, 52, 0, 4194304)
        e(f"""s_lshr_b32 s53, s{self.n}, 5
s_and_b32 s54, s{self.n}, 31
s_cmp_eq_u32 s53, 1
s_cselect_b32 s56, s{P_BWK}, s{P_BWQ}
s_cselect_b32 s57, s{P_BWK+1}, s{P_BWQ+1}
s_cmp_eq_u32 s53, 2
s_cselect_b32 s56, s{P_BWV}, s56
s_cselect_b32 s57, s{P_BWV+1}, s57
s_lshl_b32 s52, s54, 8""")
        make_srd(e, SRD_W, 56, 52, 0, 8388608)
    def main(self, e, extra=0, hook=None): self.g.run(e, extra, hook)
    def nstores(self): return self.g.BM * self.g.BN // 4096
    def post(self, e, m=None, n=None):
        g = self.g
        m = m or self.m; n = n or self.n
        n32w = g.BN // g.WN // 32
        e(f"""s_lshr_b32 s58, s{n}, 5
s_lshl_b32 s58, s58, 24
s_mul_i32 s59, s{m}, {g.BM*8192}
s_add_u32 s58, s58, s59
s_and_b32 s59, s{n}, 31
s_lshl_b32 s59, s59, 13
s_add_u32 s58, s58, s59""")
        make_srd(e, SRD_O, P_WS, 58, WS_QB, WS_SIZE)
        g.wave_ids(e, 60, 61)
        e(f"""s_mul_i32 s58, s61, {n32w}
s_lshr_b32 s59, s58, 2
s_lshl_b32 s59, s59, 13
s_and_b32 s58, s58, 3
s_lshl_b32 s58, s58, 10
s_add_u32 s58, s58, s59
s_mul_i32 s59, s60, {g.wrows*8192}
s_add_u32 s58, s58, s59
v_and_b32 v{EA}, 15, v0
v_lshlrev_b32 v{EA}, 4, v{EA}
v_bfe_u32 v{EA+1}, v0, 4, 1
v_lshl_add_u32 v{EA}, v{EA+1}, {12 if g.mf == 32 else 9}, v{EA}
v_lshrrev_b32 v{EA+1}, 5, v0
v_lshl_add_u32 v{EA}, v{EA+1}, 8, v{EA}""")
        cur = 0; n = 0
        for n32, row, quads in tiles32(e, g):
            so = (row // 32) * 262144 + ((row % 32) // 16) * 4096
            if so != cur: e(f"s_add_u32 s58, s58, {so - cur}"); cur = so
            for d, j in quads:
                e(f"buffer_store_dwordx4 v[{d}:{d+3}], v{EA}, s[{SRD_O}:{SRD_O+3}], s58 offen offset:{n32*1024 + j*512} sc1"); n += 1
        return n

def G256(): return Gemm(256, 256, 2, 4, 1024, 2, "rm", 2048, 8192, mf=MF, MH=2)
def G128(): return Gemm(256, 128, 4, 2, 1024, 3, "rm", 2048, 8192, mf=MF)
def G64(): return Gemm(128, 128, 2, 4, 1024, 4, "rm", 2048, 8192, mf=MF)

import math, struct
def f32bits(x): return struct.unpack("<I", struct.pack("<f", x))[0]

def job_a_kv(e, s_t, st=""):
    X, WF, AK, AV = 16, 48, 64, 80
    e(f"s_lshl_b32 s52, s{s_t}, 16")
    make_srd(e, SRD_X, P_AX, 52, 0, 4194304)
    e(f"s_lshl_b32 s52, s{S_WAVE}, 13")
    make_srd(e, SRD_W, P_AWK, 52, 0, 65536)
    make_srd(e, SRD_O, P_AWV, 52, 0, 65536)
    e(f"""v_lshlrev_b32 v2, 4, v0
s_lshl_b32 s53, s{S_WAVE}, 14
s_mov_b32 m0, s53
s_mov_b32 s54, 4096""")
    for x in range(4): e(f"buffer_load_dwordx4 v2, s[{SRD_W}:{SRD_W+3}], 0 offen offset:{x*1024} lds")
    e("s_add_u32 m0, s53, 4096")
    for x in range(4): e(f"buffer_load_dwordx4 v2, s[{SRD_W}:{SRD_W+3}], s54 offen offset:{x*1024} lds")
    e("s_add_u32 m0, s53, 8192")
    for x in range(4): e(f"buffer_load_dwordx4 v2, s[{SRD_O}:{SRD_O+3}], 0 offen offset:{x*1024} lds")
    e("s_add_u32 m0, s53, 12288")
    for x in range(4): e(f"buffer_load_dwordx4 v2, s[{SRD_O}:{SRD_O+3}], s54 offen offset:{x*1024} lds")
    e(f"""v_and_b32 v3, 31, v0
v_lshlrev_b32 v3, 11, v3
v_lshrrev_b32 v4, 5, v0
v_lshl_add_u32 v3, v4, 4, v3
s_lshl_b32 s55, s{S_WAVE}, 8""")
    for ks in range(8): e(f"buffer_load_dwordx4 v[{X+4*ks}:{X+4*ks+3}], v3, s[{SRD_X}:{SRD_X+3}], s55 offen offset:{32*ks}")
    e(f"""v_bfe_u32 v5, v0, 2, 2
v_lshl_add_u32 v5, v4, 3, v5
v_lshlrev_b32 v5, 6, v5
v_bfe_u32 v6, v0, 4, 1
v_lshl_add_u32 v5, v6, 5, v5
v_and_b32 v6, 3, v0
v_lshl_add_u32 v5, v6, 3, v5
v_add_u32 v5, s53, v5
s_waitcnt vmcnt(0)""")
    for ks in range(8):
        p = WF + 8 * (ks & 1)
        for m in range(2):
            for h in range(2):
                e(f"ds_read_b64_tr_b16 v[{p+4*m+2*h}:{p+4*m+2*h+1}], v5 offset:{m*8192 + (16*ks + 4*h)*64}")
        e("s_waitcnt lgkmcnt(0)")
        c1 = "0" if ks == 0 else f"v[{AK}:{AK+15}]"; c2 = "0" if ks == 0 else f"v[{AV}:{AV+15}]"
        e(f"v_mfma_f32_32x32x16_bf16 v[{AK}:{AK+15}], v[{p}:{p+3}], v[{X+4*ks}:{X+4*ks+3}], {c1}")
        e(f"v_mfma_f32_32x32x16_bf16 v[{AV}:{AV+15}], v[{X+4*ks}:{X+4*ks+3}], v[{p+4}:{p+7}], {c2}")
    e(f"v_add_u32 v6, s53, v2")
    for q in range(8): e(f"ds_write_b128 v6, v[{AK+4*q}:{AK+4*q+3}] offset:{q*1024}")
    Ls = e.label("Lakv")
    e(f"""s_waitcnt lgkmcnt(0)
s_barrier
s_cmp_gt_u32 s{S_WAVE}, 3
s_cbranch_scc1 {Ls}
s_lshl_b32 s53, s{S_WAVE}, 11
v_add_u32 v6, s53, v2
v_add_u32 v7, 65536, v6""")
    for w in range(8):
        for q in range(2):
            e(f"ds_read_b128 v[{16+8*w+4*q}:{16+8*w+4*q+3}], v{6 if w < 4 else 7} offset:{(w%4)*16384 + q*1024}")
    e("s_waitcnt lgkmcnt(0)")
    for w in range(1, 8):
        for r in range(8): e(f"v_add_f32 v{16+r}, v{16+r}, v{16+8*w+r}")
    for r in range(4): e(f"v_cvt_pk_bf16_f32 v{16+r}, v{16+2*r}, v{17+2*r}")
    e(f"""s_lshr_b32 s52, s{S_WAVE}, 1
s_lshl_b32 s52, s52, 17
s_and_b32 s53, s{S_WAVE}, 1
s_lshl_b32 s53, s53, 10
s_add_u32 s52, s52, s53
s_lshl_b32 s53, s{s_t}, 11
s_add_u32 s52, s52, s53""")
    make_srd(e, SRD_O, P_WS, 52, WS_KA, WS_SIZE)
    e(f"buffer_store_dwordx4 v[16:19], v2, s[{SRD_O}:{SRD_O+3}], 0 offen {st}\n{Ls}:")

class AAttn:
  def __init__(self, s_m, s_n, before_kv):
    self.m, self.n, self.before_kv = s_m, s_n, before_kv
    self.g = Gemm(128, 128, 2, 4, 1024, 5, "rm", 2048, 2048, acc0=128)
  def pre(self, e):
    e(f"s_lshl_b32 s52, s{self.m}, 18")
    make_srd(e, SRD_X, P_AX, 52, 0, 4194304)
    e(f"s_lshl_b32 s52, s{self.n}, 8")
    make_srd(e, SRD_W, P_AWQ, 52, 0, 2097152)
    self.g.setup(e); self.g.prologue(e)
  def main(self, e, extra=0, hook=None):
    g = self.g; ld = "sc1"; before_kv = self.before_kv
    if FINEA: stamp(e, 6)
    g.run(e, extra, hook)
    if FINEA: stamp(e, 7)
    Q = [8, 16]; P = [24, 32]; KF = [40, 48]; VF = [56, 64]; ONE = 72
    S = [80, 96]; NM = [112, 160]; O = [176, 192]; L = [208, 224]
    e(f"s_mov_b32 s50, {hex(f32bits(32 ** -0.5 * math.log2(math.e)))}")
    e("s_barrier")
    if before_kv: before_kv(e)
    make_srd(e, SRD_X, P_WS, None, WS_KA, WS_KA + 262144)
    e(f"""v_lshlrev_b32 v2, 4, v0
s_lshl_b32 s53, s{S_WAVE}, 12""")
    Lk = e.label("Lkld")
    e(f"s_mov_b32 s54, s53\n{Lk}:\ns_mov_b32 m0, s54")
    for x in range(4): e(f"buffer_load_dwordx4 v2, s[{SRD_X}:{SRD_X+3}], s54 offen offset:{x*1024} {ld} lds")
    e(f"s_add_u32 s54, s54, 32768\ns_cmp_lt_u32 s54, 131072\ns_cbranch_scc1 {Lk}")
    e(f"s_lshl_b32 s55, s{S_WAVE}, 11\ns_add_u32 s55, s55, 131072\ns_mov_b32 s56, s55")
    vdma = f"""s_mov_b32 m0, s55
s_xor_b32 s55, s55, 16384
buffer_load_dwordx4 v2, s[{SRD_X}:{SRD_X+3}], s56 offen {ld} lds
buffer_load_dwordx4 v2, s[{SRD_X}:{SRD_X+3}], s56 offen offset:1024 {ld} lds
s_add_u32 s56, s56, 16384"""
    e(vdma)
    for t in range(2):
        a = g.acc(0, t)
        for r in range(16): e(f"v_mul_f32 v{a+r}, s50, v{a+r}")
        pack_tile(e, a, Q[t], swap=False)
    for r in range(4): e(f"v_mov_b32 v{ONE+r}, 0x3f803f80")
    e("v_mov_b32 v4, 0xff800000\nv_mov_b32 v5, 0xff800000")
    e("v_mov_b32 v3, v2\ns_waitcnt vmcnt(2)\ns_barrier")
    def kread(set_, off): return [f"ds_read_b128 v[{KF[set_]+4*j}:{KF[set_]+4*j+3}], v3 offset:{off + 1024*j}" for j in range(2)]
    def qk(t, set_, dst, c):
        return [f"v_mfma_f32_32x32x16_bf16 v[{dst}:{dst+15}], v[{KF[set_]}:{KF[set_]+3}], v[{Q[t]}:{Q[t]+3}], {c}",
                f"v_mfma_f32_32x32x16_bf16 v[{dst}:{dst+15}], v[{KF[set_]+4}:{KF[set_]+7}], v[{Q[t]+4}:{Q[t]+7}], v[{dst}:{dst+15}]"]
    if FINEA: stamp(e, 8)
    SB = [[S[0], S[1]], [O[0], O[1]]]
    def mx(t, src): return [f"v_max3_f32 v{4+t}, v{src+2*i}, v{src+2*i+1}, v{4+t}" for i in range(8)]
    for x in kread(0, 0): e(x)
    for t in range(2):
        for r in range(16): e(f"v_mov_b32 v{SB[1][t]+r}, 0xff800000")
    L1 = e.label("Lp1")
    e(f"s_mov_b32 s57, 32\n{L1}:")
    for p in range(2):
        e("s_waitcnt lgkmcnt(0)")
        mf = qk(0, p, SB[p][0], "0") + qk(1, p, SB[p][1], "0")
        fill = kread(p ^ 1, (p + 1) * 2048) + (["v_add_u32 v3, 4096, v3"] if p else []) + mx(0, SB[p ^ 1][0]) + mx(1, SB[p ^ 1][1])
        Gemm.weave(e, mf, fill)
    e(f"s_sub_u32 s57, s57, 1\ns_cmp_lg_u32 s57, 0\ns_cbranch_scc1 {L1}")
    e("s_nop 7\ns_nop 3")
    for x in mx(0, SB[1][0]) + mx(1, SB[1][1]): e(x)
    for t in range(2):
        e(f"v_mov_b32 v6, v{4+t}\nv_permlane32_swap_b32 v{4+t}, v6\nv_max_f32 v{4+t}, v{4+t}, v6")
        for r in range(16): e(f"v_mul_f32 v{NM[t]+r}, -1.0, v{4+t}")
        for r in range(0, 16, 2): e(f"v_mov_b64 v[{O[t]+r}:{O[t]+r+1}], 0\nv_mov_b64 v[{L[t]+r}:{L[t]+r+1}], 0")
    for r in range(0, 8, 2): e(f"v_mov_b64 v[{P[1]+r}:{P[1]+r+1}], 0\nv_mov_b64 v[{VF[1]+r}:{VF[1]+r+1}], 0")
    if FINEA: stamp(e, 9)
    e("s_waitcnt lgkmcnt(0)\nv_mov_b32 v3, v2\nv_add_u32 v7, 131072, v2")
    for x in kread(0, 0) + kread(1, 2048): e(x)
    e("s_waitcnt lgkmcnt(0)")
    for x in qk(0, 0, S[0], f"v[{NM[0]}:{NM[0]+15}]"): e(x)
    def pv(t, set_):
        r = []
        for j in range(2):
            r.append(f"v_mfma_f32_32x32x16_bf16 v[{O[t]}:{O[t]+15}], v[{VF[set_]+4*j}:{VF[set_]+4*j+3}], v[{P[t]+4*j}:{P[t]+4*j+3}], v[{O[t]}:{O[t]+15}]")
            r.append(f"v_mfma_f32_32x32x16_bf16 v[{L[t]}:{L[t]+15}], v[{ONE}:{ONE+3}], v[{P[t]+4*j}:{P[t]+4*j+3}], v[{L[t]}:{L[t]+15}]")
        return r
    def sm(t):
        r = []
        for i in range(8):
            r.append(f"v_exp_f32 v{S[t]+2*i}, v{S[t]+2*i}")
            r.append(f"v_exp_f32 v{S[t]+2*i+1}, v{S[t]+2*i+1}")
            if i >= 1: r.append(f"v_cvt_pk_bf16_f32 v{P[t]+i-1}, v{S[t]+2*i-2}, v{S[t]+2*i-1}")
        r.append(f"s_nop 0\nv_cvt_pk_bf16_f32 v{P[t]+7}, v{S[t]+14}, v{S[t]+15}")
        return r
    L2, L2c, L2b, L2x = e.label("Lp2"), e.label("Lp2c"), e.label("Lp2b"), e.label("Lp2x")
    e(f"s_mov_b32 s57, 0\ns_mov_b32 s51, 0x27fff\n{L2}:\ns_and_b32 s52, s57, 3\ns_cbranch_scc0 {L2c}\n{L2b}:")
    for p in range(2):
        vread = [f"ds_read_b128 v[{VF[p]+4*j}:{VF[p]+4*j+3}], v7 offset:{p*2048 + 1024*j}" for j in range(2)]
        if p: vread += ["v_add_u32 v7, 4096, v7", "v_and_b32 v7, s51, v7"]
        Gemm.weave(e, qk(1, p, S[1], f"v[{NM[1]}:{NM[1]+15}]") + pv(1, p ^ 1), vread + sm(0))
        e("s_waitcnt lgkmcnt(0)")
        f = sm(1)
        f = f[:10] + kread(p, (p + 2) * 2048) + (["v_add_u32 v3, 4096, v3"] if p else []) + f[10:]
        Gemm.weave(e, qk(0, p ^ 1, S[0], f"v[{NM[0]}:{NM[0]+15}]") + pv(0, p), f)
    e(f"""s_add_u32 s57, s57, 1
s_cmp_lg_u32 s57, 32
s_cbranch_scc1 {L2}
s_branch {L2x}
{L2c}:
s_waitcnt vmcnt(0) lgkmcnt(0)
s_barrier
{vdma}
s_branch {L2b}
{L2x}:""")
    for x in pv(1, 1): e(x)
    e("s_waitcnt vmcnt(0) lgkmcnt(0)")
    if FINEA: stamp(e, 10)
  def post(self, e):
    O = [176, 192]; L = [208, 224]
    self.g.wave_ids(e, 60, 61)
    e(f"""s_lshl_b32 s58, s{self.m}, 2
s_lshl_b32 s59, s60, 1
s_add_u32 s58, s58, s59
s_lshl_b32 s58, s58, 16
s_lshl_b32 s59, s{self.n}, 2
s_add_u32 s59, s59, s61
s_lshl_b32 s59, s59, 11
s_add_u32 s58, s58, s59
s_mov_b32 s59, 65536
v_lshlrev_b32 v{EA}, 4, v0""")
    make_srd(e, SRD_O, P_WS, 58, WS_OA, WS_SIZE)
    for t in range(2):
        e(f"v_rcp_f32 v{EA+1}, v{L[t]}")
        for r in range(16): e(f"v_mul_f32 v{O[t]+r}, v{O[t]+r}, v{EA+1}")
        pack_tile(e, O[t], ET + 8 * t, swap=False)
        for j in range(2):
            e(f"buffer_store_dwordx4 v[{ET+8*t+4*j}:{ET+8*t+4*j+3}], v{EA}, s[{SRD_O}:{SRD_O+3}], {'s59' if t else '0'} offen offset:{1024*j} sc1")
    return 4

class Out:
    def __init__(self, part, s_m, s_n, BN=128):
        self.part, self.m, self.n, self.sh = part, s_m, s_n, BN.bit_length()
        self.K = 1024 if part == "A" else 4096
        self.g = Gemm(128, BN, 2, 4, self.K, 5 if BN == 128 else 3, "frag", self.K * 64, 2048, ld="sc1", mf=MF)
    def pre(self, e):
        A = self.part == "A"
        e(f"s_mul_i32 s52, s{self.m}, {4*self.K*64}")
        make_srd(e, SRD_X, P_WS, 52, WS_OA if A else WS_OB, WS_SIZE)
        e(f"s_lshl_b32 s52, s{self.n}, {self.sh}")
        make_srd(e, SRD_W, P_AWO if A else P_BWO, 52, 0, self.K * 2048)
        self.g.setup(e); self.g.prologue(e)
    def main(self, e, extra=0, hook=None): self.g.run(e, extra, hook)
    def post(self, e):
        g = self.g
        e(f"s_lshl_b32 s58, s{self.n}, {self.sh}\ns_lshl_b32 s59, s{self.m}, 19\ns_add_u32 s58, s58, s59")
        make_srd(e, SRD_O, P_OUT, 58, 0 if self.part == "A" else 2048, 8388608)
        g.wave_ids(e, 60, 61)
        e(f"""s_mul_i32 s58, s60, {g.wrows*4096}
s_mul_i32 s59, s61, {g.BN//g.WN*2}
s_add_u32 s58, s58, s59
v_and_b32 v{EA}, {g.mf-1}, v0
v_lshlrev_b32 v{EA}, 12, v{EA}
v_lshrrev_b32 v{EA+1}, 5, v0
v_lshl_add_u32 v{EA}, v{EA+1}, 4, v{EA}""")
        if g.mf == 16: e(f"v_bfe_u32 v{EA+1}, v0, 4, 1\nv_lshl_add_u32 v{EA}, v{EA+1}, 5, v{EA}")
        cur = 0; n = 0
        for n32, row, quads in tiles32(e, g):
            so = row * 4096
            if so != cur: e(f"s_add_u32 s58, s58, {so - cur}"); cur = so
            for d, j in quads:
                e(f"buffer_store_dwordx4 v[{d}:{d+3}], v{EA}, s[{SRD_O}:{SRD_O+3}], s58 offen offset:{n32*64 + j*32}"); n += 1
        return n

def b_attn_setup(e):
    e(f"""v_bfe_u32 v2, v0, 4, 1
v_lshlrev_b32 v2, 12, v2
v_and_b32 v3, 15, v0
v_lshl_add_u32 v2, v3, 4, v2
v_lshrrev_b32 v4, 5, v0
v_lshl_add_u32 v2, v4, 8, v2
v_and_b32 v3, 7, v0
v_lshlrev_b32 v3, 4, v3
v_lshl_add_u32 v3, v4, 7, v3
v_lshlrev_b32 v5, 4, v0
s_mul_i32 s58, s{S_WAVE}, 10240""")
    e("""v_bfe_u32 v6, v0, 2, 2
v_lshl_add_u32 v6, v4, 2, v6
v_lshlrev_b32 v6, 4, v6
v_bfe_u32 v7, v0, 4, 1
v_lshlrev_b32 v7, 1, v7
v_bfe_u32 v8, v0, 1, 1
v_add_u32 v7, v7, v8
v_and_b32 v8, 1, v0
v_lshl_add_u32 v6, v8, 3, v6
v_lshl_add_u32 v9, v7, 7, v6
v_lshl_add_u32 v6, v7, 8, v6
v_add_u32 v6, s58, v6
s_add_u32 s59, s58, 8192
v_add_u32 v9, s59, v9""")
    e("""v_lshrrev_b32 v7, 4, v0
v_lshlrev_b32 v7, 8, v7
v_and_b32 v8, 7, v0
v_lshl_add_u32 v7, v8, 4, v7
v_bfe_u32 v8, v0, 3, 1
v_lshl_add_u32 v7, v8, 2, v7
v_add_u32 v7, s59, v7
v_and_b32 v8, 31, v0
v_lshlrev_b32 v10, 2, v4
v_sub_u32 v8, v8, v10
v_mov_b32 v10, 0xff800000""")
    e(f"s_mov_b32 s57, {hex(f32bits(128 ** -0.5 * math.log2(math.e)))}")
    make_srd(e, SRD_X, P_WS, None, 0, WS_SIZE)

def b_attn_unit(e, s_u, ld="", st=""):
    Q, K, KM, VM, SX, SM, P, VT, O = 16, 48, 80, 112, 120, 136, 152, 164, 176
    X = f"s[{SRD_X}:{SRD_X+3}]"
    e(f"""s_lshl_b32 s50, s{s_u}, 13
s_add_u32 s51, s50, {WS_KB}
s_add_u32 s52, s50, {WS_VB}
s_add_u32 s53, s52, 4096
s_lshl_b32 s54, s{s_u}, 12
s_add_u32 s54, s54, {WS_KVM}
s_add_u32 s55, s50, {WS_OB}
s_add_u32 s56, s55, 4096""")
    for ks in range(8):
        e(f"buffer_load_dwordx4 v[{Q+4*ks}:{Q+4*ks+3}], v2, {X}, s50 offen offset:{(ks//2)*1024 + (ks%2)*512} {ld}")
        e(f"buffer_load_dwordx4 v[{K+4*ks}:{K+4*ks+3}], v2, {X}, s51 offen offset:{(ks//2)*1024 + (ks%2)*512} {ld}")
        e(f"buffer_load_dwordx4 v[{KM+4*ks}:{KM+4*ks+3}], v3, {X}, s54 offen offset:{ks*256} {ld}")
    for u in range(2): e(f"buffer_load_dwordx4 v[{VM+4*u}:{VM+4*u+3}], v5, {X}, s54 offen offset:{2048+1024*u} {ld}")
    e("s_mov_b32 m0, s58")
    for x in range(4): e(f"buffer_load_dwordx4 v5, {X}, s52 offen offset:{x*1024} {ld} lds")
    e("s_add_u32 m0, s58, 4096")
    for x in range(4): e(f"buffer_load_dwordx4 v5, {X}, s53 offen offset:{x*1024} {ld} lds")
    for ks in range(8):
        e(f"s_waitcnt vmcnt({10 + 3*(7-ks)})")
        e(f"v_mfma_f32_32x32x16_bf16 v[{SX}:{SX+15}], v[{K+4*ks}:{K+4*ks+3}], v[{Q+4*ks}:{Q+4*ks+3}], {'0' if ks == 0 else f'v[{SX}:{SX+15}]'}")
        e(f"v_mfma_f32_32x32x16_bf16 v[{SM}:{SM+15}], v[{KM+4*ks}:{KM+4*ks+3}], v[{Q+4*ks}:{Q+4*ks+3}], {'0' if ks == 0 else f'v[{SM}:{SM+15}]'}")
    e("s_waitcnt vmcnt(8)")
    for u in range(2):
        for q in range(4):
            e(f"ds_write_b32 v7, v{VM+4*u+q} offset:{(8*u + q//2)*128 + (q%2)*8}")
    for r in range(16):
        e(f"v_cmp_le_i32 vcc, {8*(r//4) + r%4}, v8\nv_cndmask_b32 v{SX+r}, v10, v{SX+r}, vcc")
    e(f"v_max3_f32 v11, v{SM}, v{SM+1}, v{SM+2}\nv_max_f32 v11, v11, v{SM+3}")
    for i in range(8): e(f"v_max3_f32 v11, v{SX+2*i}, v{SX+2*i+1}, v11")
    e("v_mov_b32 v12, v11\nv_permlane32_swap_b32 v11, v12\nv_max_f32 v11, v11, v12\nv_mul_f32 v11, s57, v11")
    regs = [SX + i for i in range(20)]
    for r in regs: e(f"v_fma_f32 v{r}, v{r}, s57, -v11")
    for r in regs: e(f"v_exp_f32 v{r}, v{r}")
    e(f"v_add_f32 v11, v{regs[0]}, v{regs[1]}\nv_add_f32 v12, v{regs[2]}, v{regs[3]}")
    for i in range(4, 20, 2): e(f"v_add_f32 v11, v11, v{regs[i]}\nv_add_f32 v12, v12, v{regs[i+1]}")
    e("v_add_f32 v11, v11, v12\nv_mov_b32 v12, v11\nv_permlane32_swap_b32 v11, v12\nv_add_f32 v11, v11, v12\nv_rcp_f32 v11, v11")
    for r in regs: e(f"v_mul_f32 v{r}, v{r}, v11")
    for i in range(10): e(f"v_cvt_pk_bf16_f32 v{P+i}, v{regs[2*i]}, v{regs[2*i+1]}")
    e("s_waitcnt vmcnt(0) lgkmcnt(0)")
    for et in range(4):
        vt = Q + 12 * et
        for j in range(2):
            for h in range(2):
                e(f"ds_read_b64_tr_b16 v[{vt+4*j+2*h}:{vt+4*j+2*h+1}], v6 offset:{j*4096 + et*1024 + h*128}")
        e(f"ds_read_b64_tr_b16 v[{vt+8}:{vt+9}], v9 offset:{et*512}")
    for et in range(4):
        vt = Q + 12 * et; o = O + 16 * et
        e(f"s_waitcnt lgkmcnt({5*(3-et)})")
        e(f"v_mfma_f32_32x32x16_bf16 v[{o}:{o+15}], v[{vt}:{vt+3}], v[{P}:{P+3}], 0")
        e(f"v_mfma_f32_32x32x16_bf16 v[{o}:{o+15}], v[{vt+4}:{vt+7}], v[{P+4}:{P+7}], v[{o}:{o+15}]")
        e(f"v_mfma_f32_32x32x8_bf16 v[{o}:{o+15}], v[{vt+8}:{vt+9}], v[{P+8}:{P+9}], v[{o}:{o+15}]")
    for et in range(4):
        d = KM + 8 * et
        pack_tile(e, O + 16 * et, d, swap=False)
        for j in range(2):
            e(f"buffer_store_dwordx4 v[{d+4*j}:{d+4*j+3}], v5, {X}, s{55 + et//2} offen offset:{(et%2)*2048 + j*1024} {st}")
```

```python
import common
from common import *
import math

SPREAD = 0
def acc_step(): return 256 if SPREAD else 20480
def acc_piece(): return 65 * 256 if SPREAD else 256
KLATE = 8
DELAY_B = -1
CANARY = 1
CGAP = 2
CTHR = 8
FIX_A = -1
WS_CAN = WS_ACC + 0x180000
BR_G = 24576
WS_PR = WS_BR + 0x80000
PR_SLOT = 98304
BR_SLOT = 8 * BR_G
R1 = 0
R2 = 18432
RL = 28672
YD2 = 65536
YD = 32768
SPIN_MAX = 400000
ACK_B = 1
KVSTEP = 262144
NOKV = 0
LATE_V = 0
XT = 0
XW = 12
VLATE = 8
FL = 29184
XW23 = 9
RSEL = 0
FORCE_FB = 0
VEARLY = 8
EARLY = -1
EGAP = 2
EADD = 0
EW0 = 1
EPRE = 2
EDLY = 0
XST = 0
XSL = 8
XLD = 2
KEARLY = 0
PLATE = 24
NOQ = 0
PREF = 0
RANK_A = 2
PACE_A = 0
DBG_ARRIVE = 0
DBG_XCC = 4
DBG_PROG = 64
DBG_FAIL = 252 - 172

sStep, sSpin, sMode = 64, 65, 66
sACC, sACCN, sB, sBO, sK, sV, sKVM = 68, 70, 72, 74, 76, 78, 60
sSelE, sSelO, sC, sG, sM, sW = 62, 63, 59, 56, 57, 58
sQ, sQL = 60, 61

TRACE = False
WS_TRACE = WS_DIAG + (1 << 20)
def tr(e, i):
    if TRACE: e(f"s_memrealtime s[{86+2*i}:{87+2*i}]")
def tr_out(e):
    if not TRACE: return
    e(f"""s_waitcnt lgkmcnt(0)
s_lshl_b32 s48, s{S_WG}, 3
s_add_u32 s48, s48, s{S_WAVE}
s_lshl_b32 s48, s48, 6
s_add_u32 s48, s48, s{sStep}
s_lshl_b32 s48, s48, 5
s_add_u32 s48, s48, {WS_TRACE}
v_lshlrev_b32 v13, 2, v0
v_add_u32 v13, s48, v13""")
    for i in range(8): e(f"v_writelane_b32 v12, s{86+2*i}, {i}")
    e(f"s_mov_b64 exec, 0xff\nglobal_store_dword v13, v12, s[{P_WS}:{P_WS+1}]\ns_mov_b64 exec, -1")

def reduce4(e, alo, ahi, st, t=12, scale=None):
    e(f"""ds_read2st64_b32 v[{t}:{t+1}], v{alo} offset0:0 offset1:{st}
ds_read2st64_b32 v[{t+2}:{t+3}], v{ahi} offset0:0 offset1:{st}
ds_read2st64_b32 v[{t+4}:{t+5}], v{alo} offset0:{2*st} offset1:{3*st}
ds_read2st64_b32 v[{t+6}:{t+7}], v{ahi} offset0:{2*st} offset1:{3*st}
s_cmp_lg_u32 s{sMode}, 0
s_waitcnt lgkmcnt(2)
v_add_f32 v{t}, v{t}, v{t+1}
v_add_f32 v{t+2}, v{t+2}, v{t+3}""")
    if scale: e(f"v_mul_f32 v{t}, v{t}, v{scale}\nv_mul_f32 v{t+2}, v{t+2}, v{scale}")
    e(f"""s_waitcnt lgkmcnt(0)
v_add_f32 v{t+4}, v{t+4}, v{t+5}
v_add_f32 v{t+6}, v{t+6}, v{t+7}""")
    if scale: e(f"v_fmac_f32 v{t}, v{t+4}, v{scale}\nv_fmac_f32 v{t+2}, v{t+6}, v{scale}")
    else: e(f"v_add_f32 v{t}, v{t}, v{t+4}\nv_add_f32 v{t+2}, v{t+2}, v{t+6}")
    e(f"v_cvt_pk_bf16_f32 v{t}, v{t}, v{t+2}")

def reduce4n(e, ar, one, t, r):
    e(f"""ds_read_b128 v[{r}:{r+3}], v{ar}
ds_read2st64_b32 v[{t}:{t+1}], v7 offset0:0 offset1:10
ds_read2st64_b32 v[{t+2}:{t+3}], v8 offset0:0 offset1:10
ds_read2st64_b32 v[{t+4}:{t+5}], v7 offset0:20 offset1:30
ds_read2st64_b32 v[{t+6}:{t+7}], v8 offset0:20 offset1:30
s_waitcnt lgkmcnt(2)
v_mul_f32 v{t}, v{t}, v{r}
v_fma_f32 v{t+2}, v{t+2}, v{r}, v{one}
v_fmac_f32 v{t}, v{t+1}, v{r+1}
v_fmac_f32 v{t+2}, v{t+3}, v{r+1}
s_waitcnt lgkmcnt(0)
v_fmac_f32 v{t}, v{t+4}, v{r+2}
v_fmac_f32 v{t+2}, v{t+6}, v{r+2}
v_fmac_f32 v{t}, v{t+5}, v{r+3}
v_fmac_f32 v{t+2}, v{t+7}, v{r+3}
v_cvt_pk_bf16_f32 v{t}, v{t}, v{t+2}""")
def rn_setup(ar, one):
    return f"""v_bfe_u32 v{ar}, v0, 2, 3
v_lshlrev_b32 v{ar}, 4, v{ar}
v_add_u32 v{ar}, {RL + 128}, v{ar}
v_and_b32 v{one}, 3, v0
v_cmp_eq_u32 vcc, 3, v{one}
v_cndmask_b32 v{one}, 0, 1.0, vcc"""

def publish_B(e, tail, d=12):
    ls, lb = e.label("Lslow"), e.label("Lback")
    e(f"""v_min_u32 v{d}, -2, v{d}
s_cbranch_scc1 {ls}
global_store_dword v6, v{d}, s[{sB}:{sB+1}]
global_store_dword v6, v11, s[{sBO}:{sBO+1}]
{lb}:""")
    tail.append(f"""{ls}:
global_store_dword v6, v{d}, s[{sB}:{sB+1}] sc1
global_store_dword v6, v11, s[{sBO}:{sBO+1}] sc1
s_branch {lb}""")

def advance(e):
    e(f"""s_add_u32 s{sStep}, s{sStep}, 1
s_mov_b64 s[{sACC}:{sACC+1}], s[{sACCN}:{sACCN+1}]
s_add_u32 s{sACCN}, s{sACCN}, {acc_step()}
s_addc_u32 s{sACCN+1}, s{sACCN+1}, 0
s_mov_b64 s[50:51], s[{sB}:{sB+1}]
s_mov_b64 s[{sB}:{sB+1}], s[{sBO}:{sBO+1}]
s_mov_b64 s[{sBO}:{sBO+1}], s[50:51]""")

def chain(e, L_done, kv_wait=None, arrive_hook=None):
    tail = []
    Lfail = e.label("Lcfail")
    e(f"""s_and_b32 s{sG}, s{S_WG}, 7
s_lshr_b32 s{sM}, s{S_WG}, 3
s_and_b32 s{sW}, s{S_WAVE}, 3
s_mov_b32 s{sStep}, 0
s_mov_b32 s{sSpin}, 0
s_mov_b32 s{sSelE}, 0x05040100
s_mov_b32 s{sSelO}, 0x07060100
s_mov_b32 s{sC}, {hex(f32bits(128 ** -0.5 * math.log2(math.e)))}
s_add_u32 s{sACC}, s{P_WS}, {WS_ACC}
s_addc_u32 s{sACC+1}, s{P_WS+1}, 0
s_add_u32 s{sACCN}, s{sACC}, {acc_step()}
s_addc_u32 s{sACCN+1}, s{sACC+1}, 0
s_mul_i32 s48, s{sG}, {BR_G}
s_add_u32 s48, s48, {WS_BR}
s_add_u32 s{sB}, s{P_WS}, s48
s_addc_u32 s{sB+1}, s{P_WS+1}, 0
s_add_u32 s{sBO}, s{sB}, {BR_SLOT}
s_addc_u32 s{sBO+1}, s{sB+1}, 0
s_add_u32 s{sK}, s{P_WS}, {WS_KB}
s_addc_u32 s{sK+1}, s{P_WS+1}, 0
s_add_u32 s{sV}, s{P_WS}, {WS_VB}
s_addc_u32 s{sV+1}, s{P_WS+1}, 0
s_add_u32 s{sKVM}, s{P_WS}, {WS_OP - 2*524288}
s_addc_u32 s{sKVM+1}, s{P_WS+1}, 0
v_mov_b32 v11, -1""")
    e("""v_and_b32 v12, 3, v0
v_bfe_u32 v13, v0, 2, 3
v_lshrrev_b32 v14, 5, v0""")
    e("""v_mov_b32 v2, 0x4444
v_mov_b32 v15, 0xeeee
v_and_b32 v16, 8, v0
v_cmp_ne_u32 vcc, 0, v16
v_cndmask_b32 v2, v2, v15, vcc""")
    e(f"""s_lshl_b32 s48, s{S_WAVE}, 4
v_lshlrev_b32 v15, 2, v12
v_lshlrev_b32 v16, 1, v14
v_add3_u32 v15, v15, v16, s48
v_add_u32 v16, 1, v15
v_lshlrev_b32 v17, 5, v12
v_lshl_add_u32 v17, v14, 1, v17
v_add_u32 v17, 13, v17
v_add_u32 v18, 16, v17
s_cmp_eq_u32 s{S_WAVE}, 4
s_cselect_b64 s[48:49], -1, 0
v_cndmask_b32 v15, v15, v17, s[48:49]
v_cndmask_b32 v16, v16, v18, s[48:49]""")
    e("""v_cmp_le_u32 s[50:51], 2, v12
s_and_b64 s[50:51], s[50:51], s[48:49]
v_cmp_eq_u32 s[52:53], 2, v12
s_and_b64 s[52:53], s[52:53], s[48:49]
v_cmp_eq_u32 s[54:55], 3, v12""")
    for col, dst in ((15, 7), (16, 8)):
        e(f"""v_lshrrev_b32 v17, 2, v{col}
v_mul_u32_u24 v17, 160, v17
v_and_b32 v18, 3, v{col}
v_lshlrev_b32 v18, 5, v18
v_add_u32 v17, v17, v18
v_lshl_add_u32 v17, v13, 2, v17
v_add_u32 v{dst}, {R2}, v17""")
    e(f"""v_mov_b32 v17, {R2+132}
v_mov_b32 v18, {R2+132}
v_cndmask_b32 v7, v7, v18, s[50:51]
v_cndmask_b32 v8, v8, v18, s[52:53]
v_cndmask_b32 v8, v8, v17, s[54:55]""")
    e(f"""s_mul_i32 s67, s{sM}, 5
s_add_u32 s67, s67, s{S_WAVE}
s_mul_i32 s67, s67, {acc_piece()}
v_lshlrev_b32 v9, 2, v0
v_add_u32 v9, s67, v9""")
    Ln0 = e.label("Lnomem0")
    e(f"""s_cmp_lg_u32 s{sG}, 0
s_cbranch_scc1 {Ln0}
s_cmp_gt_u32 s{S_WAVE}, 4
s_cbranch_scc1 {Ln0}
s_lshl_b32 s48, s{sM}, 7
v_lshlrev_b32 v17, 11, v13
v_add_u32 v17, s48, v17
v_and_b32 v15, 63, v15
v_and_b32 v16, 63, v16
v_lshl_add_u32 v15, v15, 1, v17
v_lshl_add_u32 v16, v16, 1, v17
global_load_ushort v15, v15, s[{P_MEM0}:{P_MEM0+1}]
global_load_ushort v16, v16, s[{P_MEM0}:{P_MEM0+1}]
v_mov_b32 v17, 0x4100
s_waitcnt vmcnt(0)
v_cndmask_b32 v15, v15, 0, s[50:51]
v_cndmask_b32 v16, v16, 0, s[52:53]
v_cndmask_b32 v16, v16, v17, s[54:55]
v_lshl_or_b32 v15, v16, 16, v15
global_store_dword v9, v15, s[{sACC}:{sACC+1}] sc1
{Ln0}:""")
    Lz = e.label("Lz")
    e(f"""s_mul_i32 s48, s{S_WG}, 640
s_lshl_b32 s49, s{S_WAVE}, 6
s_add_u32 s48, s48, s49
v_mov_b64 v[16:17], 0
v_mov_b64 v[18:19], 0""")
    for rep in range(2):
        if rep: e(f"s_cmp_gt_u32 s{S_WAVE}, 1\ns_cbranch_scc1 {Lz}\ns_add_u32 s48, s48, 512")
        e("v_add_u32 v15, s48, v0")
        if SPREAD: e("v_lshrrev_b32 v20, 10, v15\nv_lshlrev_b32 v15, 4, v15\nv_lshl_add_u32 v15, v20, 8, v15")
        else: e("v_lshlrev_b32 v15, 4, v15")
        e(f"global_store_dwordx4 v15, v[16:19], s[{sACCN}:{sACCN+1}] sc1")
    e(f"{Lz}:")
    LS2i, Lji = e.label("LS2i"), e.label("Lji")
    e(f"""s_lshr_b32 s48, s{sM}, 2
s_mul_i32 s48, s48, 6144
s_and_b32 s49, s{sM}, 3
s_cmp_ge_u32 s{S_WAVE}, 4
s_cbranch_scc1 {LS2i}""")
    e(f"""s_and_b32 s50, s{S_WAVE}, 1
s_lshl_b32 s51, s50, 3
v_lshl_add_u32 v15, v12, 1, v14
v_add_u32 v15, s51, v15
v_mul_u32_u24 v15, 96, v15
v_lshl_add_u32 v15, v13, 2, v15
v_add_u32 v4, {R1 + 2*1536}, v15
v_add_u32 v5, 32, v4
s_lshl_b32 s49, s49, 9
s_lshl_b32 s50, s50, 8
s_add_u32 s48, s48, s49
s_add_u32 s48, s48, s50
s_add_u32 s48, s48, 4096
s_branch {Lji}
{LS2i}:""")
    e(f"""s_lshl_b32 s51, s{sW}, 2
v_add_u32 v15, s51, v12
v_mul_u32_u24 v15, 96, v15
v_lshl_add_u32 v15, v13, 2, v15
v_xor_b32 v16, 1, v14
v_mul_u32_u24 v16, 1536, v16
v_add3_u32 v4, v15, v16, {R1}
v_add_u32 v5, 32, v4
s_lshl_b32 s49, s49, 10
s_lshl_b32 s50, s{sW}, 8
s_add_u32 s48, s48, s49
s_add_u32 s48, s48, s50
{Lji}:
v_lshlrev_b32 v6, 2, v0
v_add_u32 v6, s48, v6""")
    e(f"""global_store_dword v6, v11, s[{sB}:{sB+1}] sc1
global_store_dword v6, v11, s[{sBO}:{sBO+1}] sc1
s_min_u32 s48, s{S_WAVE}, 2
s_mul_i32 s49, s{S_WG}, 3
s_add_u32 s48, s48, s49
s_lshl_b32 s48, s48, 8
s_add_u32 s48, s48, {WS_PR}
v_lshl_add_u32 v15, v0, 2, s48
global_store_dword v15, v11, s[{P_WS}:{P_WS+1}] sc1
s_waitcnt vmcnt(0)
s_barrier""")
    if arrive_hook: arrive_hook(e)
    La = e.label("La")
    e(f"""s_cmp_lg_u32 s{S_WAVE}, 0
s_cbranch_scc1 {La}
s_getreg_b32 s48, hwreg(HW_REG_XCC_ID)
s_and_b32 s48, s48, 15
s_lshl_b32 s48, 1, s48
s_lshl_b32 s49, s{sG}, 2
s_mov_b64 exec, 1
v_mov_b32 v15, s49
v_mov_b32 v16, s48
global_atomic_or v15, v16, s[{P_DBG}:{P_DBG+1}] offset:{DBG_XCC}
s_waitcnt vmcnt(0)
v_mov_b32 v15, 0
v_mov_b32 v16, 1
global_atomic_add v15, v16, s[{P_DBG}:{P_DBG+1}] offset:{DBG_ARRIVE}
s_mov_b64 exec, -1
{La}:""")
    LS2 = e.label("LS2")
    e(f"s_cmp_ge_u32 s{S_WAVE}, 4\ns_cbranch_scc1 {LS2}")

    def wait_start():
        Lw = e.label("Lws")
        e(f"""s_lshl_b32 s49, s{sG}, 2
v_mov_b32 v12, 0
v_mov_b32 v13, s49
{Lw}:
s_sleep 4
global_load_dword v14, v12, s[{P_DBG}:{P_DBG+1}] offset:{DBG_ARRIVE} sc1
s_add_u32 s{sSpin}, s{sSpin}, 1
s_cmp_gt_u32 s{sSpin}, {SPIN_MAX}
s_cbranch_scc1 {Lfail}
s_waitcnt vmcnt(0)
v_readfirstlane_b32 s48, v14
s_cmp_lt_u32 s48, 128
s_cbranch_scc1 {Lw}
global_load_dword v14, v13, s[{P_DBG}:{P_DBG+1}] offset:{DBG_XCC} sc1
s_waitcnt vmcnt(0)
v_readfirstlane_b32 s48, v14
s_bcnt1_i32_b32 s48, s48
s_sub_u32 s{sMode}, s48, 1""")

    W1 = 64; G = 20; AC = 40
    e(f"""s_lshl_b32 s48, s{sG}, 2
s_lshr_b32 s49, s{sM}, 2
s_add_u32 s48, s48, s49
s_lshl_b32 s48, s48, 8
s_and_b32 s49, s{sM}, 3
s_lshl_b32 s49, s49, 6
s_add_u32 s48, s48, s49
s_lshl_b32 s49, s{sW}, 21
s_add_u32 s52, s48, s49
v_lshrrev_b32 v12, 2, v0
v_lshlrev_b32 v12, 13, v12
v_and_b32 v13, 3, v0
v_lshl_add_u32 v12, v13, 4, v12
s_lshl_b32 s53, s{sW}, 15""")
    e(f"""v_lshrrev_b32 v13, 5, v0
v_lshlrev_b32 v13, 6, v13
v_bfe_u32 v14, v0, 4, 1
v_lshl_add_u32 v13, v14, 3, v13
v_bfe_u32 v14, v0, 2, 2
v_add_u32 v13, v13, v14
v_lshlrev_b32 v13, 6, v13
v_and_b32 v14, 3, v0
v_lshl_add_u32 v13, v14, 3, v13
v_add_u32 v13, s53, v13""")
    def w1_dma(ptr, half):
        make_srd(e, SRD_W, ptr, 52, 0, 8388608)
        L = e.label("Lw1")
        e(f"""s_add_u32 m0, s53, {half*16384}
s_mov_b32 s54, 0
{L}:
buffer_load_dwordx4 v12, s[{SRD_W}:{SRD_W+3}], s54 offen lds
s_add_u32 s54, s54, {16*8192}
s_add_u32 m0, m0, 1024
s_cmp_lt_u32 s54, {256*8192}
s_cbranch_scc1 {L}""")
    def w1_read(mat, half):
        for ch in range(2):
            for i in range(4):
                r = W1 + ((2 * mat + ch) * 4 + i) * 8
                for q in range(2):
                    for h in range(2):
                        e(f"ds_read_b64_tr_b16 v[{r+4*q+2*h}:{r+4*q+2*h+1}], v13 offset:{half*16384 + (128*q + 16*i + 4*h)*64 + 32*ch}")
    w1_dma(P_BWQ, 0); w1_dma(P_BWK, 1)
    e("s_waitcnt vmcnt(16)")
    w1_read(0, 0)
    e("s_waitcnt lgkmcnt(0)")
    w1_dma(P_BWV, 0)
    e("s_waitcnt vmcnt(16)")
    w1_read(1, 1)
    e("s_waitcnt vmcnt(0)")
    w1_read(2, 0)
    e(f"""s_lshl_b32 s48, s{sW}, 2
v_lshrrev_b32 v1, 4, v0
v_add_u32 v1, s48, v1
v_mul_u32_u24 v1, {5*acc_piece()}, v1
v_and_b32 v14, 15, v0
v_lshl_add_u32 v1, v14, 4, v1
v_lshrrev_b32 v15, 5, v0
v_lshl_add_u32 v14, v15, 4, v14
v_lshrrev_b32 v15, 1, v14
v_mul_u32_u24 v15, 96, v15
v_and_b32 v14, 1, v14
v_lshl_add_u32 v15, v14, 5, v15
v_bfe_u32 v14, v0, 4, 1
v_lshl_add_u32 v15, v14, 4, v15
s_mul_i32 s48, s{sW}, 4608
s_add_u32 s48, s48, {R1}
v_add_u32 v3, s48, v15
s_waitcnt lgkmcnt(0)""")
    make_srd(e, SRD_X, P_WS, None, WS_PR, WS_PR + 4 * PR_SLOT)
    e(f"""s_and_b32 s48, s{S_WAVE}, 1
s_mul_i32 s47, s48, 1536
s_mul_i32 s49, s{sG}, 12288
s_add_u32 s47, s47, s49
s_lshl_b32 s48, s48, 11
s_lshl_b32 s43, s{S_WG}, 12
s_add_u32 s43, s43, s48
s_lshr_b32 s48, s{S_WAVE}, 1
s_mul_i32 s42, s48, 3072
s_add_u32 s42, s42, {YD}
s_lshl_b32 s48, s48, 10
s_add_u32 s43, s43, s48""")
    wait_start()
    e("s_barrier")
    e("s_barrier")
    e("s_setprio 3\ns_mov_b32 s67, 0x41000000")
    if common.DIAG: e("s_mov_b32 s85, 0")
    stamp(e, 1, True)
    L1, LpA, L1x = e.label("L1"), e.label("LpA"), e.label("L1x")
    def aaddr():
        for i in range(1, 5): e(f"v_add_u32 v{13+i}, {i*acc_piece()}, v1")
    aaddr()
    e(f"{L1}:")
    if not XT: tr(e, 7)
    e(f"{LpA}:")
    tr(e, 0)
    e(f"global_load_dwordx4 v[{G+16}:{G+19}], v17, s[{sACC}:{sACC+1}] sc1")
    for i in range(4):
        e(f"global_load_dwordx4 v[{G+4*i}:{G+4*i+3}], v{13+i if i else 1}, s[{sACC}:{sACC+1}] sc1")
    if VLATE: e(f"s_lshl_b32 s48, s{sW}, 2\nv_mov_b32 v12, s48\nv_mov_b32 v13, s{sStep}\nds_write_b32 v12, v13 offset:{FL}")
    e(f"s_add_u32 s{sSpin}, s{sSpin}, 1\ns_cmp_gt_u32 s{sSpin}, {SPIN_MAX}\ns_cbranch_scc1 {Lfail}")
    for r in range(0, 24, 2): e(f"v_mov_b64 v[{AC+r}:{AC+r+1}], 0")
    def sm1(c, i):
        w = W1 + (c * 4 + i) * 8
        return f"v_smfmac_f32_16x16x64_bf16 v[{AC+4*c}:{AC+4*c+3}], v[{G+4*i}:{G+4*i+3}], v[{w}:{w+7}], v2"
    def arr(i):
        d3 = G + 4 * i + 3
        e(f"s_waitcnt vmcnt({3-i})")
        if i == 3: tr(e, 1)
        e(f"v_min_u32 v10, v{d3}, v{G+19 if i == 0 else 10}")
        e(f"v_perm_b32 v{d3}, v{G+16+i//2}, v{d3}, s{sSelO if i & 1 else sSelE}")
    def epi(p):
        a, b = AC + 8 * p, AC + 8 * p + 4
        return [f"v_permlane32_swap_b32 v{a+r}, v{b+r}" for r in range(4)] + [f"v_add_f32 v{a+r}, v{a+r}, v{b+r}" for r in range(4)] + [f"ds_write_b128 v3, v[{a}:{a+3}] offset:{p*1536}"]
    arr(0)
    for c in range(5): e(sm1(c, 0))
    arr(1); e(sm1(5, 0))
    for c in range(3): e(sm1(c, 1))
    arr(2); e(sm1(3, 1))
    e(sm1(0, 2)); arr(3); e(sm1(1, 2))
    e(f"v_cmp_gt_u32 vcc, s67, v10")
    e(sm1(0, 3)); e(f"s_cbranch_vccnz {LpA}_retry"); e(sm1(1, 3))
    for c, i in ((2, 2), (3, 2), (2, 3), (3, 3)): e(sm1(c, i) + "\ns_nop 0")
    f = epi(0) + epi(1) + epi(2)
    for c, i in ((4, 1), (5, 1), (4, 2), (5, 2), (4, 3), (5, 3)):
        e(sm1(c, i)); e(f.pop(0)); e(f.pop(0))
    for x in f: e(x)
    tail.append(f"{LpA}_retry:\ns_nop 7\n" + ("s_add_u32 s85, s85, 1\n" if common.DIAG else "") + f"s_branch {LpA}")
    tr(e, 2)
    e("s_waitcnt lgkmcnt(0)\ns_barrier")
    tr(e, 3)
    Lnp = e.label("Lnp")
    e(f"s_cmp_gt_u32 s{S_WAVE}, 1\ns_cbranch_scc1 {Lnp}_o")
    reduce4(e, 4, 5, 18)
    publish_B(e, tail)
    e(f"s_waitcnt vmcnt(0)\n{Lnp}:")
    tail.append(f"""{Lnp}_o:
s_sleep {XW23}
s_lshl_b32 s48, s{S_WG}, 3
s_add_u32 s48, s48, s{S_WAVE}
s_cmp_lg_u32 s48, 2
s_cbranch_scc1 {Lnp}
v_mov_b32 v20, 0
v_mov_b32 v21, s{sStep}
s_mov_b64 exec, 1
global_store_dword v20, v21, s[{P_DBG}:{P_DBG+1}] offset:{DBG_PROG} sc1
s_mov_b64 exec, -1
s_branch {Lnp}""")
    PXr = [40 + 4 * h for h in range(4)]; PMr = [56 + 2 * h for h in range(4)]; XA = 12; YB = [32, 36, 24, 28]
    ldp = "v_lshlrev_b32 v18, 4, v0\nv_lshlrev_b32 v19, 3, v0\n" + "\n".join(
        f"buffer_load_dwordx4 v[{PXr[h]}:{PXr[h]+3}], v18, s[{SRD_X}:{SRD_X+3}], s{44+h//2} offen offset:{(h%2)*3072} sc1\n"
        f"buffer_load_dwordx2 v[{PMr[h]}:{PMr[h]+1}], v19, s[{SRD_X}:{SRD_X+3}], s{40+h//2} offen offset:{(h%2)*3072} sc1" for h in range(4))
    tr_out(e)
    e(f"s_sleep {XW}\n{Lnp}_e:")
    e(f"""s_add_u32 s{sKVM}, s{sKVM}, 524288
s_addc_u32 s{sKVM+1}, s{sKVM+1}, 0
s_xor_b32 s42, s42, {YD ^ YD2}
s_add_u32 s44, s{sStep}, 3
s_and_b32 s44, s44, 3
s_mul_i32 s44, s44, {PR_SLOT}
s_add_u32 s44, s44, s47
s_add_u32 s45, s44, 6144
s_add_u32 s40, s44, 1024
s_add_u32 s41, s45, 1024
{ldp}
v_add_u32 v20, s42, v18
v_add_u32 v21, 8, v20
v_add_u32 v22, s43, v18""")
    e(rn_setup(23, 24))
    e("s_barrier")
    tr(e, 4)
    reduce4n(e, 23, 24, 12, 28)
    e(f"global_atomic_pk_add_bf16 v10, v9, v12, s[{sACCN}:{sACCN+1}] sc0")
    tr(e, 5)
    rd = [(h, k) for h in (0, 2) for k in range(6)]
    def rdy(i):
        h, k = rd[i]; b = YB[i % 4]
        if k < 4: return f"ds_read_b128 v[{b}:{b+3}], v20 offset:{(h + k//2)*6144 + (k%2)*1024}"
        return f"ds_read2st64_b64 v[{b}:{b+3}], v{20 + k - 4} offset0:{12*h + 4} offset1:{12*h + 16}"
    e(f"s_cmp_eq_u32 s{sStep}, 0\ns_cbranch_scc1 {Lnp}_q")
    for i in range(4): e(rdy(i))
    e(f"""s_waitcnt vmcnt(1)
{Lnp}_c:
v_max3_u32 v13, v43, v47, v51
v_max3_u32 v14, v55, v57, v59
v_max3_u32 v13, v61, v63, v13
v_max_u32 v13, v13, v14
v_cmp_eq_u32 vcc, -1, v13
s_cbranch_vccnz {Lnp}_r""")
    tail.append(f"{Lnp}_r:\n{ldp}\ns_add_u32 s{sSpin}, s{sSpin}, 1\ns_cmp_gt_u32 s{sSpin}, {SPIN_MAX}\ns_cbranch_scc1 {Lfail}\ns_waitcnt vmcnt(0)\ns_branch {Lnp}_c")
    nxt = 4
    for i, (h, k) in enumerate(rd):
        b = YB[i % 4]; a = XA + 4 * (k % 2); pr = PXr[h + k // 2] if k < 4 else PMr[h]
        e(f"s_waitcnt lgkmcnt({nxt - 1 - i})")
        e(f"v_mfma_f32_16x16x32_bf16 v[{a}:{a+3}], v[{b}:{b+3}], v[{pr}:{pr+3}], " + ("0" if h == 0 and k < 2 else f"v[{a}:{a+3}]"))
        if nxt < len(rd): e(rdy(nxt)); nxt += 1
    for x in range(4): e(f"v_cvt_pk_bf16_f32 v{24+x}, v{XA+2*x}, v{XA+2*x+1}")
    e(f"v_permlane16_swap_b32 v24, v26\nv_permlane16_swap_b32 v25, v27\n{Lnp}_q:\nglobal_store_dwordx4 v22, v[24:27], s[{sKVM}:{sKVM+1}] sc1")
    if XT: tr(e, 7)
    e(f"s_cmp_ge_u32 s{sStep}, 63\ns_cbranch_scc1 {L1x}")
    advance(e)
    aaddr()
    e("s_waitcnt vmcnt(1)")
    tr(e, 6)
    Lr = e.label("Lrank")
    e(f"""v_and_b32 v10, 0xffff0000, v10
v_cvt_u32_f32 v10, v10
v_readlane_b32 s48, v10, 3
{Lr}:
s_cmp_ge_u32 s48, 7
s_cbranch_scc1 {L1}
s_add_u32 s48, s48, 1
s_sleep {RANK_A}
s_branch {Lr}
{L1x}:
s_setprio 0
s_add_u32 s{sStep}, s{sStep}, 1
s_cmp_eq_u32 s{sStep}, 64
s_cbranch_scc1 {Lnp}_e
s_branch {L_done}""")

    e(f"{LS2}:")
    T, VV, S0, S1_, SM, PX, PM, YM, O, LS, YX, KX, VX, WO = 28, 44, 52, 56, 60, 64, 68, 72, 88, 104, 108, 124, 156, 188
    ON16, ON32 = 22, 24
    DQ, NEG = 252, 253
    e(f"""s_lshl_b32 s48, s{sG}, 2
s_add_u32 s48, s48, s{sW}
s_lshl_b32 s55, s48, 13
s_lshl_b32 s48, s48, 18
s_lshl_b32 s49, s{sM}, 7
s_add_u32 s52, s48, s49
v_lshrrev_b32 v12, 3, v0
v_lshlrev_b32 v12, 11, v12
v_and_b32 v13, 7, v0
v_lshl_add_u32 v12, v13, 4, v12
s_lshl_b32 s53, s{sW}, 13
s_add_u32 s53, s53, 131072
v_lshrrev_b32 v13, 4, v0
v_lshlrev_b32 v13, 3, v13
v_bfe_u32 v14, v0, 2, 2
v_add_u32 v13, v13, v14
v_lshlrev_b32 v13, 7, v13
v_and_b32 v14, 3, v0
v_lshl_add_u32 v13, v14, 3, v13
v_add_u32 v13, s53, v13""")
    make_srd(e, SRD_W, P_BWO, 52, 0, 8388608)
    for rnd in range(2):
        L = e.label("Lwo")
        e(f"""s_mov_b32 m0, s53
s_mov_b32 s54, {rnd*64*2048}
{L}:
buffer_load_dwordx4 v12, s[{SRD_W}:{SRD_W+3}], s54 offen lds
s_add_u32 s54, s54, {8*2048}
s_add_u32 m0, m0, 1024
s_cmp_lt_u32 s54, {(rnd+1)*64*2048}
s_cbranch_scc1 {L}""")
        e("s_waitcnt vmcnt(0)")
        for ct in range(4):
            for jj in range(2):
                r = WO + (ct * 4 + rnd * 2 + jj) * 4
                for h in range(2):
                    e(f"ds_read_b64_tr_b16 v[{r+2*h}:{r+2*h+1}], v13 offset:{(32*jj + 4*h)*128 + 32*ct}")
        e("s_waitcnt lgkmcnt(0)")
    e(f"""s_mul_i32 s48, s{sW}, 6144
v_lshlrev_b32 v14, 4, v0
v_add_u32 v1, s48, v14
v_add_u32 v20, s55, v14
s_lshl_b32 s49, s{sM}, 9
s_add_u32 s55, s55, s49
s_add_u32 s55, s55, {2*KVSTEP}
v_and_b32 v15, 15, v0
v_lshrrev_b32 v16, 2, v15
v_mul_u32_u24 v16, 160, v16
v_and_b32 v15, 3, v15
v_lshl_add_u32 v16, v15, 5, v16
v_bfe_u32 v15, v0, 4, 1
v_lshl_add_u32 v16, v15, 4, v16
s_mul_i32 s48, s{sW}, 2560
s_add_u32 s48, s48, {R2}
v_add_u32 v3, s48, v16
v_mov_b32 v{ON32}, 0x3f803f80
v_mov_b32 v{ON32+1}, 0x3f803f80
v_mov_b32 v{ON32+2}, 0x3f803f80
v_mov_b32 v{ON32+3}, 0x3f803f80
v_cmp_gt_u32 vcc, 32, v0
v_cndmask_b32 v{ON16}, 0, v{ON32}, vcc
v_cndmask_b32 v{ON16+1}, 0, v{ON32}, vcc""")
    e(f"""v_and_b32 v15, 15, v0
v_lshrrev_b32 v16, 4, v0
s_mul_i32 s48, s{sW}, 6144
s_add_u32 s48, s48, {YD}
v_lshl_add_u32 v21, v0, 4, s48
s_and_b32 s48, s{sM}, 3
s_lshl_b32 s49, s48, 3
v_lshlrev_b32 v16, 2, v16
v_sub_u32 v15, v15, v16
v_add_u32 v15, s49, v15
s_mov_b32 s40, 0xff00ff00
s_mov_b32 s41, 0xff00ff00
v_cndmask_b32 v{DQ}, v15, 64, s[40:41]
v_mov_b32 v{NEG}, 0xf149f2ca
s_lshr_b32 s49, s48, 1
s_and_b32 s48, s48, 1
s_lshl_b32 s48, s48, 7
s_lshl_b32 s{sQ}, s49, 12
s_add_u32 s{sQ}, s{sQ}, s48
s_sub_u32 s55, s55, s{sQ}
s_mul_i32 s42, s{sW}, 3072
s_mul_i32 s43, s{sG}, 12288
s_add_u32 s42, s42, s43
s_mul_i32 s43, s49, 1536
s_add_u32 s42, s42, s43
s_add_u32 s43, s42, s48
s_lshr_b32 s48, s48, 1
s_add_u32 s44, s42, s48
s_add_u32 s44, s44, 1024
s_lshr_b32 s45, s{sM}, 2""")
    make_srd(e, SRD_X, P_WS, None, WS_QB, WS_SIZE)
    e(rn_setup(254, 255))
    wait_start()
    e("s_barrier")
    e(f"""s_mul_i32 s48, s{sW}, 2560
s_add_u32 s48, s48, {R2+128}
v_mov_b32 v12, s48
v_mov_b32 v14, 0x3e800000
v_mov_b32 v15, 0
ds_write_b64 v12, v[14:15]
s_waitcnt lgkmcnt(0)
s_barrier
s_setprio 2
v_mov_b32 v14, s{sC}
v_cmp_gt_u32 vcc, 32, v0
v_cndmask_b32 v14, v14, 1.0, vcc
v_and_b32 v15, 15, v0
s_lshl_b32 s48, s{sW}, 2
s_add_u32 s48, s48, {RL}
v_lshl_add_u32 v16, v15, 5, s55
v_lshl_add_u32 v15, v15, 4, s48
v_lshrrev_b32 v17, 4, v0
v_min_u32 v17, 2, v17
v_lshlrev_b32 v17, 24, v17
v_add_u32 v17, v17, v16
v_add_u32 v18, 4096, v1
v_add_u32 v19, 4096, v20
s_mov_b32 s46, 0x21800000
s_mov_b32 s47, 0x3c000000""")
    def kv_loads(reg, base):
        if NOKV: return ["s_nop 0"] * 8
        return [f"global_load_dwordx4 v[{reg+4*x}:{reg+4*x+3}], v{20 if x < 4 else 19}, s[{base}:{base+1}] offset:{(x%4)*1024} sc1" for x in range(8)]
    def yacc(ct, tt): return T + (ct * 2 + tt) * 4
    def yx_mf():
        return [f"v_mfma_f32_16x16x32_bf16 v[{yacc(ct,tt)}:{yacc(ct,tt)+3}], v[{VX+(tt*4+ks)*4}:{VX+(tt*4+ks)*4+3}], v[{WO+(ct*4+ks)*4}:{WO+(ct*4+ks)*4+3}], " + ("0" if ks == 0 else f"v[{yacc(ct,tt)}:{yacc(ct,tt)+3}]")
                for ks in range(4) for tt in range(2) for ct in range(4)]
    def yx_cvt():
        return [f"v_cvt_pk_bf16_f32 v{YX+ct*4+x}, v{yacc(ct,0)+2*x}, v{yacc(ct,0)+2*x+1}" for ct in range(4) for x in range(4)] + [f"v_mov_b64 v[{YM+r}:{YM+r+1}], 0" for r in range(0, 16, 2)]
    def q_loads():
        L = [f"buffer_load_dwordx4 v[{O+4*x}:{O+4*x+3}], v20, s[{SRD_X}:{SRD_X+3}], s{sQ} offen offset:{x*1024} sc1" for x in range(4)]
        return "s_not_b64 exec, s[40:41]\n" + "\n".join(L) + f"\ns_mov_b64 exec, -1\ns_add_u32 s{sQ}, s{sQ}, {KVSTEP}"
    def mask_init():
        m = ["vcc", "s[48:49]", "s[50:51]", "s[52:53]"]
        return [x for h in range(2) for x in [f"v_cmp_gt_i32 {m[r]}, {r + 16*h}, v{DQ}" for r in range(4)] + [f"v_cndmask_b32 v{S0+4*h+r}, 0, v{NEG}, {m[r]}" for r in range(4)]]
    kvadv = f"""s_add_u32 s{sV}, s{sV}, {KVSTEP}
s_addc_u32 s{sV+1}, s{sV+1}, 0
s_add_u32 s{sK}, s{sK}, {KVSTEP}
s_addc_u32 s{sK+1}, s{sK+1}, 0"""
    E = T
    def xpart(ld):
        Lp, Lv = e.label("Lxp"), e.label("Lv")
        e(f"s_cmp_eq_u32 s45, s{sW}\ns_cbranch_scc1 {Lp}")
        def pst(f): return f"""buffer_store_dwordx4 v[{PX}:{PX+3}], v12, s[{SRD_X}:{SRD_X+3}], s48 offen {f}
buffer_store_dwordx2 v[{PM}:{PM+1}], v13, s[{SRD_X}:{SRD_X+3}], s48 offen {f}
buffer_store_dwordx4 v[{SM}:{SM+3}], v12, s[{SRD_X}:{SRD_X+3}], s49 offen {f}
buffer_store_dwordx2 v[{SM}:{SM+1}], v13, s[{SRD_X}:{SRD_X+3}], s49 offen {f}
s_mov_b64 exec, -1
s_branch {Lv}"""
        tail.append(f"""{Lp}:
""" + "\n".join(f"v_mul_f32 v{r}, v{r}, v{LS+1}" for r in list(range(E + 8, E + 12)) + list(range(E, E + 8))) + f"""
v_cvt_pk_bf16_f32 v{PM}, v{E+8}, v{E+9}
v_cvt_pk_bf16_f32 v{PM+1}, v{E+10}, v{E+11}
v_cvt_pk_bf16_f32 v{PX}, v{E}, v{E+1}
v_mov_b32 v{PM+2}, v{PM}
v_mov_b32 v{PM+3}, v{PM+1}
v_cvt_pk_bf16_f32 v{PX+1}, v{E+2}, v{E+3}
v_cvt_pk_bf16_f32 v{PX+2}, v{E+4}, v{E+5}
v_permlane32_swap_b32 v{PM}, v{PM+2}
v_permlane32_swap_b32 v{PM+1}, v{PM+3}
v_cvt_pk_bf16_f32 v{PX+3}, v{E+6}, v{E+7}
v_lshl_add_u32 v12, v0, 4, s43
v_lshl_add_u32 v13, v0, 3, s44
s_and_b32 s48, s{sStep}, 3
s_mul_i32 s48, s48, {PR_SLOT}
s_add_u32 s48, s48, {WS_PR}
s_add_u32 s49, s{sStep}, 1
s_and_b32 s49, s49, 3
s_mul_i32 s49, s49, {PR_SLOT}
s_add_u32 s49, s49, {WS_PR}
v_mov_b64 v[{SM}:{SM+1}], -1
v_mov_b64 v[{SM+2}:{SM+3}], -1
s_not_b64 exec, s[40:41]
s_cmp_lg_u32 s{sMode}, 0
s_cbranch_scc1 {Lp}_s
{pst('')}
{Lp}_s:
{pst('sc1')}""")
        e(f"{Lv}:")
        if XT: tr(e, 0)
        ld = list(ld)
        dump = [f"ds_write_b128 v21, v[{YX+4*x}:{YX+4*x+3}] offset:{(x//2)*3072 + (x%2)*1024}" for x in range(4)] + [f"ds_write_b128 v21, v[{YM+4*x}:{YM+4*x+3}] offset:{2048+3072*x}" for x in range(2)]
        v = kv_loads(VX, sV)
        vv = [(8 * ks + 4 * tt + 3, v[tt * 4 + ks]) for ks in range(4) for tt in range(2)]
        ld = [(0, l) for l in ld] + vv[:8 - VLATE]
        yc = yx_cvt()
        for i, m in enumerate(yx_mf() + yc[16:] + yc[:16] + mask_init()):
            e(m)
            if i >= KLATE and (i - KLATE) % (XLD if i < 32 else 3 * XLD) == 0 and ld and ld[0][0] <= i: e(ld.pop(0)[1])
            if i % 4 == 2 and i > 4 and dump: e(dump.pop(0))
            if XT and i == 31: tr(e, 1)
        for l in ld: e(l[1])
        e(f"s_waitcnt lgkmcnt(0)\ns_cmp_eq_u32 s{sStep}, 63\ns_cbranch_scc1 {L2x}")
        if XT: tr(e, 2)
        if VLATE:
            Lf = e.label("Lfl")
            e(f"""v_and_b32 v12, 3, v0
v_lshlrev_b32 v12, 2, v12
{Lf}:
ds_read_b32 v13, v12 offset:{FL}
s_add_u32 s{sSpin}, s{sSpin}, 1
s_cmp_gt_u32 s{sSpin}, {SPIN_MAX}
s_cbranch_scc1 {Lfail}
s_waitcnt lgkmcnt(0)
v_cmp_eq_u32 vcc, s{sStep}, v13
s_cbranch_vccnz {Lf}""")
            for l in vv[8 - VLATE:]: e(l[1])
        e(kvadv)
        e(f"v_xor_b32 v21, {YD ^ YD2}, v21")
    if kv_wait: kv_wait(e, Lfail, first=True)
    for l in kv_loads(VX, sV): e(l)
    for l in kv_loads(KX, sK): e(l)
    e(q_loads())
    e("s_waitcnt vmcnt(12)")
    for x in yx_mf() + yx_cvt() + mask_init(): e(x)
    e(kvadv)
    for l in kv_loads(VX, sV): e(l)
    e(f"s_add_u32 s{sV}, s{sV}, {KVSTEP}\ns_addc_u32 s{sV+1}, s{sV+1}, 0")
    L2, LpB, L2x = e.label("L2"), e.label("LpB"), e.label("L2x")
    e(f"{L2}:\ns_barrier")
    tr(e, 0)
    reduce4(e, 4, 5, 18, T, 14)
    publish_B(e, tail, T)
    tr(e, 1)
    if DELAY_B >= 0:
        for _ in range(DELAY_B): e("s_nop 7")
    elif ACK_B: e("s_waitcnt vmcnt(0)")
    tr(e, 2)
    e(f"{LpB}:")
    tr(e, 7)
    pieces = [(T + 4 * ks, 1, 1024 * ks) for ks in range(4)] + [(VV + 4 * u, 18, 1024 * u) for u in range(2)]
    ldB = [f"global_load_dwordx4 v[{r}:{r+3}], v{a}, s[{sB}:{sB+1}] offset:{o} sc1" for r, a, o in pieces]
    if LATE_V:
        for l in ldB[:4]: e(l)
        e("s_waitcnt vmcnt(3)")
        for l in ldB[4:]: e(l)
    else:
        for l in ldB: e(l)
    def chk(i, mid=""):
        e(f"{LpB}_c{i}:\ns_waitcnt vmcnt({5-i})\nv_cmp_eq_u32 vcc, -1, v{pieces[i][0]+3}\n{mid}\ns_cbranch_vccnz {LpB}_r{i}")
        rl = ldB[i:] if not RSEL else [ldB[i]] + ([ldB[4 + i // 2]] if i < 4 else [])
        tail.append(f"{LpB}_r{i}:\n" + "\n".join(rl) + f"\ns_add_u32 s{sSpin}, s{sSpin}, 1\ns_cmp_gt_u32 s{sSpin}, {SPIN_MAX}\ns_cbranch_scc1 {Lfail}\n" + ("s_waitcnt vmcnt(0)\n" if RSEL else "") + f"s_branch {LpB}_c{i}")
    for i in range(4):
        t = pieces[i][0]
        chk(i, "\n".join(f"v_cndmask_b32 v{O+4*i+r}, v{O+4*i+r}, v{t+r}, s[40:41]" for r in range(4)))
        for (a, kreg) in ((S0, KX + i * 4), (S1_, KX + (4 + i) * 4), (SM, t)):
            c = "0" if i == 0 and a == SM else f"v[{a}:{a+3}]"
            e(f"v_mfma_f32_16x16x32_bf16 v[{a}:{a+3}], v[{kreg}:{kreg+3}], v[{O+4*i}:{O+4*i+3}], {c}")
    tr(e, 3)
    ym = [f"v_smfmac_f32_16x16x64_bf16 v[{YM+4*ct}:{YM+4*ct+3}], v[{VV+4*u}:{VV+4*u+3}], v[{WO+(ct*4+2*u)*4}:{WO+(ct*4+2*u)*4+7}], v2" for u in range(2) for ct in range(4)]
    vl = ([f"buffer_load_dword v16, v17, s[{SRD_X}:{SRD_X+3}], s{sQ} offen sc1"] if PREF else []) + kv_loads(KX, sK)[:KEARLY]
    def V():
        if vl: e(vl.pop(0))
    ex = [f"v_exp_f32 v{E+i}, v{S0+i}" for i in range(12)]
    cp = [f"v_cvt_pk_bf16_f32 v{PX+x}, v{E+2*x}, v{E+2*x+1}" for x in range(6)]
    dup = [f"v_mov_b32 v{PM+2}, v{PM}", f"v_mov_b32 v{PM+3}, v{PM+1}", f"v_permlane32_swap_b32 v{PM}, v{PM+2}", f"v_permlane32_swap_b32 v{PM+1}, v{PM+3}"]
    cy = [f"v_cvt_pk_bf16_f32 v{YM+x}, v{YM+2*x}, v{YM+2*x+1}" for x in range(8)]
    ox = [f"v_mfma_f32_16x16x32_bf16 v[{O+4*ct}:{O+4*ct+3}], v[{PX}:{PX+3}], v[{YX+4*ct}:{YX+4*ct+3}], 0" for ct in range(4)]
    om = [f"v_mfma_f32_16x16x16_bf16 v[{O+4*ct}:{O+4*ct+3}], v[{PM}:{PM+1}], v[{YM+2*ct}:{YM+2*ct+1}], v[{O+4*ct}:{O+4*ct+3}]" for ct in range(4)]
    lx = f"v_mfma_f32_16x16x32_bf16 v[{LS}:{LS+3}], v[{ON32}:{ON32+3}], v[{PX}:{PX+3}], 0"
    lm = f"v_mfma_f32_16x16x16_bf16 v[{LS}:{LS+3}], v[{ON16}:{ON16+1}], v[{PM}:{PM+1}], v[{LS}:{LS+3}]"
    wr = [f"ds_write_b128 v3, v[{O+4*ct}:{O+4*ct+3}] offset:{ct*640}" for ct in range(4)]
    chk(4)
    e(ym[0]); e(ym[1]); e(ex[0]); e(ym[2]); e(ex[1]); e(ym[3]); e(ex[2])
    chk(5, ex[3])
    e(ym[4]); e(ex[4]); e(ym[5]); e(ex[5]); e(ym[6]); e(ex[6]); e(ym[7]); e(ex[7])
    e(cp[0]); e(cp[1]); e(cp[2]); e(cp[3]); e(ex[8]); V()
    e(ox[0]); e(ex[9]); e(ox[1]); e(ex[10]); e(ox[2]); e(ex[11]); e(ox[3]); e(cp[4]); e(cp[5])
    e(lx); e(dup[0]); e(dup[1]); e(cy[0]); e(cy[1]); e(dup[2]); e(dup[3]); e(cy[2]); e(cy[3])
    e(om[0]); e(cy[4]); e(cy[5]); e(lm); e(cy[6]); e(cy[7]); e(om[1]); V(); e(om[2]); V(); e(om[3]); V()
    Lfb = e.label("Lfb")
    fin = ["s_mov_b32 exec_lo, 0", wr[0], f"v_rcp_f32 v{LS+1}, v{LS}", wr[1], wr[2], wr[3], "s_mov_b32 exec_lo, -1"]
    e(f"v_rcp_f32 v{LS+1}, v{LS}\ns_mov_b32 exec_lo, 0")
    for x in wr: e(x)
    e(f"""s_mov_b32 exec_lo, -1
ds_write_b32 v15, v{LS+1}
v_subrev_u32 v10, s46, v{LS}
v_cmp_lt_u32 vcc, s47, v10""")
    while vl: V()
    e(f"s_cbranch_vccn{'z' if not FORCE_FB else 'z'} {Lfb}" if not FORCE_FB else f"s_branch {Lfb}")
    e(f"{Lfb}_b:")
    fb = [f"""{Lfb}:
v_max3_f32 v12, v{S0}, v{S0+1}, v{S0+2}
v_max3_f32 v13, v{S0+3}, v{S1_}, v{S1_+1}
v_max3_f32 v12, v{S1_+2}, v{S1_+3}, v12
v_max_f32 v12, v12, v13
s_mov_b32 exec_hi, 0
v_max3_f32 v12, v{SM}, v{SM+1}, v12
v_max3_f32 v12, v{SM+2}, v{SM+3}, v12
s_mov_b32 exec_hi, -1
v_mov_b32 v13, v12
v_permlane16_swap_b32 v12, v13
v_max_f32 v12, v12, v13
v_mov_b32 v13, v12
v_permlane32_swap_b32 v12, v13
v_max_f32 v12, v12, v13"""]
    fb += [f"v_sub_f32 v{S0+i}, v{S0+i}, v12" for i in range(12)] + ex + cp + dup + [lx] + ox + [lm] + om
    fb += [f"v_rcp_f32 v{LS+1}, v{LS}\ns_mov_b32 exec_lo, 0"] + wr + [f"s_mov_b32 exec_lo, -1\nds_write_b32 v15, v{LS+1}\ns_branch {Lfb}_b"]
    tail.append("\n".join(fb))
    tr(e, 4)
    e("s_waitcnt lgkmcnt(0)\ns_barrier")
    tr(e, 5)
    Lna = e.label("Lna")
    e(f"s_cmp_lg_u32 s{S_WAVE}, 4\ns_cbranch_scc1 {Lna}")
    reduce4n(e, 254, 255, VV, S0)
    e(f"global_atomic_pk_add_bf16 v9, v{VV}, s[{sACCN}:{sACCN+1}]\n{Lna}:")
    xpart(kv_loads(KX, sK)[KEARLY:] + [q_loads()])
    tr(e, 6)
    tr_out(e)
    advance(e)
    if kv_wait: kv_wait(e, Lfail, first=False)
    e(f"s_branch {L2}")
    e(f"{L2x}:\ns_waitcnt lgkmcnt(0)\ns_barrier\ns_setprio 0")
    e(f"s_branch {L_done}")
    for t in tail: e(t)
    e(f"""{Lfail}:
s_mov_b64 exec, -1
v_mov_b32 v12, 0
v_mov_b32 v13, 1
global_store_dword v12, v13, s[{P_DBG}:{P_DBG+1}] offset:{DBG_FAIL}
s_endpgm""")

import struct
def f32bits(x): return struct.unpack("<I", struct.pack("<f", x))[0]
```

```python
import common
from common import *
from jobs import *
import chain as ch
from chain import chain

C_KV = 128
C_KVA = 68
C_FIN = 72
C_OA = 192
MAP = 1
FINE = 0
SPIN = 79

def signal(e, off, s_idx=None, val=1):
    L = e.label("Lsig")
    e(f"s_waitcnt vmcnt(0)\ns_barrier\ns_cmp_lg_u32 s{S_WAVE}, 0\ns_cbranch_scc1 {L}")
    if s_idx is None: e("v_mov_b32 v2, 0")
    else: e(f"s_lshl_b32 s48, s{s_idx}, 2\nv_mov_b32 v2, s48")
    e(f"""v_mov_b32 v3, {val}
s_mov_b64 exec, 1
global_atomic_add v2, v3, s[{P_DBG}:{P_DBG+1}] offset:{off}
s_mov_b64 exec, -1
{L}:""")

def poll(e, Lfail, off, s_idx, target, shift=0, mask=None, spin=SPIN, t=2, slp=8):
    L = e.label("Lpoll")
    if s_idx is None: e(f"v_mov_b32 v{t}, 0")
    else: e(f"s_lshl_b32 s48, s{s_idx}, 2\nv_mov_b32 v{t}, s48")
    e(f"""{L}:
global_load_dword v{t+1}, v{t}, s[{P_DBG}:{P_DBG+1}] offset:{off} sc1
s_add_u32 s{spin}, s{spin}, 1
s_cmp_gt_u32 s{spin}, {ch.SPIN_MAX}
s_cbranch_scc1 {Lfail}
s_waitcnt vmcnt(0)
v_readfirstlane_b32 s48, v{t+1}""")
    if shift: e(f"s_lshr_b32 s48, s48, {shift}")
    if mask: e(f"s_and_b32 s48, s48, {mask}")
    Lok = e.label("Lok")
    e(f"s_cmp_ge_u32 s48, {target}\ns_cbranch_scc1 {Lok}\ns_sleep {slp}\ns_branch {L}\n{Lok}:")

def wait(e, Lfail, conds):
    L = e.label("Lwt")
    e(f"s_cmp_lg_u32 s{S_WAVE}, 0\ns_cbranch_scc1 {L}")
    for c in conds: poll(e, Lfail, *c)
    e(f"{L}:\ns_barrier")

def kv_wait(e, Lfail, first):
    if first:
        e("s_mov_b32 s49, 0")
        poll(e, Lfail, C_KV, 49, 96, spin=ch.sSpin, t=12, slp=4)
        return
    L = e.label("Lkvw")
    e(f"""s_add_u32 s49, s{ch.sStep}, {2 + ch.PREF}
s_and_b32 s48, s49, 7
s_cmp_lg_u32 s48, 0
s_cbranch_scc1 {L}
s_lshr_b32 s49, s49, 3
s_cmp_gt_u32 s49, 7
s_cbranch_scc1 {L}""")
    poll(e, Lfail, C_KV, 49, 96, spin=ch.sSpin, t=12, slp=4)
    e(f"{L}:")

def sig_hook(off, s_idx, val):
    def h(e):
        L = e.label("Lsig")
        e(f"""s_cmp_lg_u32 s{S_WAVE}, 0
s_cbranch_scc1 {L}
s_lshl_b32 s58, s{s_idx}, 2
v_mov_b32 v{EA}, s58
v_mov_b32 v{EA+1}, {val}
s_mov_b64 exec, 1
global_atomic_add v{EA}, v{EA+1}, s[{P_DBG}:{P_DBG+1}] offset:{off}
s_mov_b64 exec, -1
{L}:""")
    return h

CODE_KB = 40
SCHED = 0
J_END, J_G128, J_G256, J_AKV, J_ATT, J_AOUT = range(6)
def schedule():
    T = [[] for _ in range(128)]
    def g256(blocks):
        return [[(J_G256, b, 2 * (12 * xq + c)) for b in blocks for c in range(12)] for xq in range(4)]
    for xq in range(4):
        W = lambda j: T[xq * 32 + j]
        P1, P2, P3 = range(0, 8), range(8, 16), range(16, 32)
        for j in range(24): W(8 + j).append((J_G128, 0, 24 * xq + j))
        for j in P1: W(j).append((J_G256, 1, 24 * xq + 2 * j))
        for j in P2: W(j).append((J_G128, 1, 24 * xq + 16 + j - 8))
        for j in P3: W(j).append((J_AKV, 16 * xq + j - 16, 0))
        rest = g256(range(2, 8))[xq]
        for j in P3: W(j).append(rest.pop(0))
        k = 0
        while rest:
            W(k % 16).append(rest.pop(0)); k += 1
        units = [(J_ATT, 4 * xq + m, n) for m in range(4) for n in range(8)]
        order = list(P3) + list(P2) + list(P3)[:8]
        for j, u in zip(order, units): W(j).append(u)
        outs = [(J_AOUT, 4 * xq + m, n) for m in range(4) for n in range(4)]
        order = list(P3)[8:] + list(P1)
        for j, u in zip(order, outs): W(j).append(u)
    return T

def k_fused(e):
    e("s_cmp_ge_u32 s2, 256\ns_cbranch_scc1 Lend")
    e("""s_getpc_b64 s[48:49]
Lpc:
s_and_b32 s50, s2, 3
s_lshl_b32 s50, s50, 5
s_lshr_b32 s51, s2, 3
s_add_u32 s70, s50, s51
s_lshl_b32 s50, s70, 6
s_add_u32 s50, s50, Ltab-Lpc
v_and_b32 v2, 15, v0
v_lshl_add_u32 v2, v2, 2, s50
global_load_dword v90, v2, s[48:49]""")
    if CODE_KB:
        e("""v_lshlrev_b32 v2, 7, v0
v_min_u32 v2, Lend-Lpc, v2
global_load_dword v91, v2, s[48:49]""")
    load_args(e)
    e("""s_and_b32 s48, s2, 3
s_lshl_b32 s48, s48, 1
s_lshr_b32 s49, s2, 7
s_add_u32 s48, s48, s49
s_bfe_u32 s49, s2, 0x40003
s_lshl_b32 s49, s49, 3
s_add_u32 s35, s48, s49""")
    stamp(e, 0, True); stamp(e, 14)
    F = "Lwfail"
    e("s_bitcmp1_b32 s2, 2\ns_cbranch_scc1 Lworker")
    chain(e, "Lchain_done", kv_wait, None)
    e("Lchain_done:")
    signal(e, C_FIN)
    stamp(e, 2, True); stamp(e, 15)
    if common.DIAG: e("s_mov_b32 s84, s65")
    stamps_out(e, 16)
    e("s_endpgm")
    W, J, TY = 70, 71, 76
    M = [72, 74]; N = [73, 75]
    def fetch(e):
        e(f"""v_readlane_b32 s{N[0]}, v1, s{J}
s_add_u32 s{J}, s{J}, 1
s_lshr_b32 s{TY}, s{N[0]}, 16
s_bfe_u32 s{M[0]}, s{N[0]}, 0x80008
s_and_b32 s{N[0]}, s{N[0]}, 255""")
    def jstamp(e, d=0):
        if common.DIAG: e(f"s_memrealtime s[98:99]\ns_add_u32 m0, s{J}, {16+d}\ns_waitcnt lgkmcnt(0)\nv_writelane_b32 v1, s98, m0")
    e(f"Lworker:\ns_add_u32 s35, s{W}, 128\ns_mov_b32 s{SPIN}, 0\ns_mov_b32 s{J}, 0\ns_waitcnt vmcnt({1 if CODE_KB else 0})\nv_mov_b32 v1, v90")
    e("Lnext:")
    jstamp(e)
    fetch(e)
    e("Ldisp:")
    for t in (J_G256, J_AKV, J_ATT, J_AOUT, J_END): e(f"s_cmp_eq_u32 s{TY}, {t}\ns_cbranch_scc1 Ljob{t}")
    for t, G, val in ((J_G128, G128, 1), (J_G256, G256, 2)):
        e(f"Ljob{t}:")
        js = QKV(G(), M[0], N[0])
        js.pre(e)
        def switch(e):
            L = e.label("Lsw")
            e(f"s_mov_b32 s{M[1]}, s{M[0]}\ns_mov_b32 s{N[1]}, s{N[0]}")
            fetch(e); js.srds(e)
            e(f"s_cmp_eq_u32 s{TY}, {t}\ns_cbranch_scc1 {L}\ns_mov_b32 s{SRD_X+2}, 0\ns_mov_b32 s{SRD_W+2}, 0\n{L}:")
        def tile_end(e, Ln):
            js.post(e, M[1], N[1])
            jstamp(e, -1)
            js.g.zero_acc(e)
            e(f"""s_mov_b32 s61, s{M[1]}
s_mov_b32 s{js.g.sPh}, {js.g.NST-1}
s_cmp_eq_u32 s{TY}, {t}
s_cbranch_scc1 {Ln}""")
        js.g.run(e, js.nstores(), sig_hook(C_KV, 61, val), switch, tile_end)
        e("s_barrier")
        sig_hook(C_KV, 61, val)(e)
        e("s_branch Ldisp")
    e(f"Ljob{J_AKV}:")
    job_a_kv(e, M[0], "sc1")
    signal(e, C_KVA)
    e(f"s_branch Lnext\nLjob{J_ATT}:")
    j5 = AAttn(M[0], N[0], lambda e: wait(e, F, [(C_KVA, None, 64)]))
    j5.pre(e); j5.main(e); j5.post(e)
    signal(e, C_OA, M[0], 1)
    e(f"s_branch Lnext\nLjob{J_AOUT}:")
    wait(e, F, [(C_OA, M[0], 8)])
    j6 = Out("A", M[0], N[0], 256); j6.pre(e); j6.main(e); j6.post(e)
    e(f"s_barrier\ns_branch Lnext\nLjob{J_END}:")
    e(f"s_cmp_eq_u32 s{S_WAVE}, 7\ns_cbranch_scc1 Lw7f\ns_lshl_b32 s76, s{S_WAVE}, 3\ns_add_u32 s76, s76, 10")
    poll(e, F, ch.DBG_PROG, None, "s76")
    e("s_branch Lw7\nLw7f:")
    poll(e, F, C_FIN, None, 128, slp=2)
    e("Lw7:")
    stamp(e, 10, True)
    e(f"""s_lshl_b32 s52, s{S_WAVE}, 7
s_add_u32 s52, s52, s{W}
s_lshr_b32 s53, s52, 4
s_lshl_b32 s53, s53, 17
s_and_b32 s54, s52, 15
s_lshl_b32 s54, s54, 7
s_add_u32 s53, s53, s54
s_lshl_b32 s52, s52, 15
v_lshlrev_b32 v2, 4, v0
v_and_b32 v3, 15, v0
v_lshlrev_b32 v3, 12, v3
v_bfe_u32 v4, v0, 4, 1
v_lshl_add_u32 v3, v4, 5, v3
v_lshrrev_b32 v4, 5, v0
v_lshl_add_u32 v3, v4, 4, v3
s_mov_b32 s54, 0xffff0000""")
    make_srd(e, SRD_X, P_WS, 52, WS_OP, WS_SIZE)
    make_srd(e, SRD_O, P_OUT, 53, 2048, 8388608)
    for i in range(32):
        if i % 4 == 0: e(f"s_mov_b32 s55, {i*1024}")
        e(f"buffer_load_dwordx4 v[{16+4*i}:{19+4*i}], v2, s[{SRD_X}:{SRD_X+3}], s55 offen offset:{(i%4)*1024} sc1")
    A = 144
    e("s_mov_b32 s55, 65536")
    for i in range(32):
        a = A + 8 * (i % 4)
        e(f"s_waitcnt vmcnt({31 - i + max(0, i - 28)})")
        for r in range(4):
            d = 16 + 4 * i + r
            if i < 4: e(f"v_lshlrev_b32 v{a+2*r}, 16, v{d}\nv_and_b32 v{a+2*r+1}, s54, v{d}")
            else: e(f"v_lshlrev_b32 v{8+2*r}, 16, v{d}\nv_and_b32 v{9+2*r}, s54, v{d}\nv_pk_add_f32 v[{a+2*r}:{a+2*r+1}], v[{a+2*r}:{a+2*r+1}], v[{8+2*r}:{9+2*r}]")
        if i >= 28:
            for r in range(4): e(f"v_cvt_pk_bf16_f32 v{a+r}, v{a+2*r}, v{a+2*r+1}")
            e(f"buffer_store_dwordx4 v[{a}:{a+3}], v3, s[{SRD_O}:{SRD_O+3}], {'s55' if i & 2 else '0'} offen offset:{(i&1)*64}")
    stamp(e, 11, True); stamp(e, 15)
    if common.DIAG:
        for i in range(1, 10): e(f"v_readlane_b32 s{80+i}, v1, {16+i}")
    stamps_out(e, 16)
    e(f"""Lend:
s_endpgm
{F}:
v_mov_b32 v2, 0
v_mov_b32 v3, 2
global_store_dword v2, v3, s[{P_DBG}:{P_DBG+1}] offset:{ch.DBG_FAIL - 4}
s_endpgm
.p2align 6
Ltab:""")
    for jl in schedule():
        assert len(jl) < 16
        e(".long " + ", ".join(str(t << 16 | m << 8 | n) for t, m, n in jl + [(0, 0, 0)] * (16 - len(jl))))
```

```python
import common
from common import *
from gemm import Gemm

def pack_tile(e, a, dst, swap=True):
    for i in range(8):
        e(f"v_cvt_pk_bf16_f32 v{dst+i}, v{a+2*i}, v{a+2*i+1}")
    if swap:
        for j in range(2):
            e(f"v_permlane32_swap_b32 v{dst+4*j}, v{dst+4*j+2}\nv_permlane32_swap_b32 v{dst+4*j+1}, v{dst+4*j+3}")

FINEA = 0
MF = 16
EA, ET = 92, 96

def tiles32(e, g):
    k = 0
    if g.mf == 32:
        for mt in range(g.TM):
            for nt in range(g.TN):
                d = ET + 8 * (k % 4); k += 1
                pack_tile(e, g.acc(nt, mt), d)
                yield nt, mt * 32, [(d, 0), (d + 4, 1)]
    else:
        for mt in range(g.TM):
            for n2 in range(g.TN // 2):
                d = ET + 4 * (k % 8); k += 1
                a, b = g.acc(2 * n2, mt), g.acc(2 * n2 + 1, mt)
                e(f"""v_cvt_pk_bf16_f32 v{d}, v{a}, v{a+1}
v_cvt_pk_bf16_f32 v{d+1}, v{a+2}, v{a+3}
v_cvt_pk_bf16_f32 v{d+2}, v{b}, v{b+1}
v_cvt_pk_bf16_f32 v{d+3}, v{b+2}, v{b+3}
v_permlane16_swap_b32 v{d}, v{d+2}
v_permlane16_swap_b32 v{d+1}, v{d+3}""")
                yield n2, mt * 16, [(d, 0)]

class QKV:
    def __init__(self, g, s_m, s_n): self.g, self.m, self.n = g, s_m, s_n
    def pre(self, e):
        self.srds(e); self.g.setup(e); self.g.prologue(e)
    def srds(self, e):
        g = self.g
        e(f"s_mul_i32 s52, s{self.m}, {g.BM*2048}")
        make_srd(e, SRD_X, P_BX, 52, 0, 4194304)
        e(f"""s_lshr_b32 s53, s{self.n}, 5
s_and_b32 s54, s{self.n}, 31
s_cmp_eq_u32 s53, 1
s_cselect_b32 s56, s{P_BWK}, s{P_BWQ}
s_cselect_b32 s57, s{P_BWK+1}, s{P_BWQ+1}
s_cmp_eq_u32 s53, 2
s_cselect_b32 s56, s{P_BWV}, s56
s_cselect_b32 s57, s{P_BWV+1}, s57
s_lshl_b32 s52, s54, 8""")
        make_srd(e, SRD_W, 56, 52, 0, 8388608)
    def main(self, e, extra=0, hook=None): self.g.run(e, extra, hook)
    def nstores(self): return self.g.BM * self.g.BN // 4096
    def post(self, e, m=None, n=None):
        g = self.g
        m = m or self.m; n = n or self.n
        n32w = g.BN // g.WN // 32
        L = e.label("Lqs")
        e(f"s_cmp_ge_u32 s{n}, 32\ns_cbranch_scc1 {L}\ns_mov_b32 s58, {hex(f32bits(128 ** -0.5 * math.log2(math.e)))}\ns_nop 7")
        for r in range(g.acc0, g.acc0 + g.BM * g.BN // 512, 2): e(f"v_pk_mul_f32 v[{r}:{r+1}], v[{r}:{r+1}], s[58:59] op_sel_hi:[1,0]")
        e(f"{L}:")
        e(f"""s_lshr_b32 s58, s{n}, 5
s_lshl_b32 s58, s58, 24
s_mul_i32 s59, s{m}, {g.BM*8192}
s_add_u32 s58, s58, s59
s_and_b32 s59, s{n}, 31
s_lshl_b32 s59, s59, 13
s_add_u32 s58, s58, s59""")
        make_srd(e, SRD_O, P_WS, 58, WS_QB, WS_SIZE)
        g.wave_ids(e, 60, 61)
        e(f"""s_mul_i32 s58, s61, {n32w}
s_lshr_b32 s59, s58, 2
s_lshl_b32 s59, s59, 13
s_and_b32 s58, s58, 3
s_lshl_b32 s58, s58, 10
s_add_u32 s58, s58, s59
s_mul_i32 s59, s60, {g.wrows*8192}
s_add_u32 s58, s58, s59
v_and_b32 v{EA}, 15, v0
v_lshlrev_b32 v{EA}, 4, v{EA}
v_bfe_u32 v{EA+1}, v0, 4, 1
v_lshl_add_u32 v{EA}, v{EA+1}, {12 if g.mf == 32 else 9}, v{EA}
v_lshrrev_b32 v{EA+1}, 5, v0
v_lshl_add_u32 v{EA}, v{EA+1}, 8, v{EA}""")
        cur = 0; n = 0
        for n32, row, quads in tiles32(e, g):
            so = (row // 32) * 262144 + ((row % 32) // 16) * 4096
            if so != cur: e(f"s_add_u32 s58, s58, {so - cur}"); cur = so
            for d, j in quads:
                e(f"buffer_store_dwordx4 v[{d}:{d+3}], v{EA}, s[{SRD_O}:{SRD_O+3}], s58 offen offset:{n32*1024 + j*512} sc1"); n += 1
        return n

def G256(): return Gemm(256, 256, 2, 4, 1024, 2, "rm", 2048, 8192, mf=MF, MH=2)
def G128(): return Gemm(256, 128, 4, 2, 1024, 3, "rm", 2048, 8192, mf=MF)
def G64(): return Gemm(128, 128, 2, 4, 1024, 4, "rm", 2048, 8192, mf=MF)

import math, struct
def f32bits(x): return struct.unpack("<I", struct.pack("<f", x))[0]

def job_a_kv(e, s_t, st=""):
    X, WF, AK, AV = 16, 48, 64, 80
    e(f"s_lshl_b32 s52, s{s_t}, 16")
    make_srd(e, SRD_X, P_AX, 52, 0, 4194304)
    e(f"s_lshl_b32 s52, s{S_WAVE}, 13")
    make_srd(e, SRD_W, P_AWK, 52, 0, 65536)
    make_srd(e, SRD_O, P_AWV, 52, 0, 65536)
    e(f"""v_lshlrev_b32 v2, 4, v0
s_lshl_b32 s53, s{S_WAVE}, 14
s_mov_b32 m0, s53
s_mov_b32 s54, 4096""")
    for x in range(4): e(f"buffer_load_dwordx4 v2, s[{SRD_W}:{SRD_W+3}], 0 offen offset:{x*1024} lds")
    e("s_add_u32 m0, s53, 4096")
    for x in range(4): e(f"buffer_load_dwordx4 v2, s[{SRD_W}:{SRD_W+3}], s54 offen offset:{x*1024} lds")
    e("s_add_u32 m0, s53, 8192")
    for x in range(4): e(f"buffer_load_dwordx4 v2, s[{SRD_O}:{SRD_O+3}], 0 offen offset:{x*1024} lds")
    e("s_add_u32 m0, s53, 12288")
    for x in range(4): e(f"buffer_load_dwordx4 v2, s[{SRD_O}:{SRD_O+3}], s54 offen offset:{x*1024} lds")
    e(f"""v_and_b32 v3, 31, v0
v_lshlrev_b32 v3, 11, v3
v_lshrrev_b32 v4, 5, v0
v_lshl_add_u32 v3, v4, 4, v3
s_lshl_b32 s55, s{S_WAVE}, 8""")
    for ks in range(8): e(f"buffer_load_dwordx4 v[{X+4*ks}:{X+4*ks+3}], v3, s[{SRD_X}:{SRD_X+3}], s55 offen offset:{32*ks}")
    e(f"""v_bfe_u32 v5, v0, 2, 2
v_lshl_add_u32 v5, v4, 3, v5
v_lshlrev_b32 v5, 6, v5
v_bfe_u32 v6, v0, 4, 1
v_lshl_add_u32 v5, v6, 5, v5
v_and_b32 v6, 3, v0
v_lshl_add_u32 v5, v6, 3, v5
v_add_u32 v5, s53, v5
s_waitcnt vmcnt(0)""")
    for ks in range(8):
        p = WF + 8 * (ks & 1)
        for m in range(2):
            for h in range(2):
                e(f"ds_read_b64_tr_b16 v[{p+4*m+2*h}:{p+4*m+2*h+1}], v5 offset:{m*8192 + (16*ks + 4*h)*64}")
        e("s_waitcnt lgkmcnt(0)")
        c1 = "0" if ks == 0 else f"v[{AK}:{AK+15}]"; c2 = "0" if ks == 0 else f"v[{AV}:{AV+15}]"
        e(f"v_mfma_f32_32x32x16_bf16 v[{AK}:{AK+15}], v[{p}:{p+3}], v[{X+4*ks}:{X+4*ks+3}], {c1}")
        e(f"v_mfma_f32_32x32x16_bf16 v[{AV}:{AV+15}], v[{X+4*ks}:{X+4*ks+3}], v[{p+4}:{p+7}], {c2}")
    e(f"v_add_u32 v6, s53, v2")
    for q in range(8): e(f"ds_write_b128 v6, v[{AK+4*q}:{AK+4*q+3}] offset:{q*1024}")
    Ls = e.label("Lakv")
    e(f"""s_waitcnt lgkmcnt(0)
s_barrier
s_cmp_gt_u32 s{S_WAVE}, 3
s_cbranch_scc1 {Ls}
s_lshl_b32 s53, s{S_WAVE}, 11
v_add_u32 v6, s53, v2
v_add_u32 v7, 65536, v6""")
    for w in range(8):
        for q in range(2):
            e(f"ds_read_b128 v[{16+8*w+4*q}:{16+8*w+4*q+3}], v{6 if w < 4 else 7} offset:{(w%4)*16384 + q*1024}")
    e("s_waitcnt lgkmcnt(0)")
    for w in range(1, 8):
        for r in range(8): e(f"v_add_f32 v{16+r}, v{16+r}, v{16+8*w+r}")
    for r in range(4): e(f"v_cvt_pk_bf16_f32 v{16+r}, v{16+2*r}, v{17+2*r}")
    e(f"""s_lshr_b32 s52, s{S_WAVE}, 1
s_lshl_b32 s52, s52, 17
s_and_b32 s53, s{S_WAVE}, 1
s_lshl_b32 s53, s53, 10
s_add_u32 s52, s52, s53
s_lshl_b32 s53, s{s_t}, 11
s_add_u32 s52, s52, s53""")
    make_srd(e, SRD_O, P_WS, 52, WS_KA, WS_SIZE)
    e(f"buffer_store_dwordx4 v[16:19], v2, s[{SRD_O}:{SRD_O+3}], 0 offen {st}\n{Ls}:")

class AAttn:
  def __init__(self, s_m, s_n, before_kv):
    self.m, self.n, self.before_kv = s_m, s_n, before_kv
    self.g = Gemm(128, 128, 2, 4, 1024, 5, "rm", 2048, 2048, acc0=128)
  def pre(self, e):
    e(f"s_lshl_b32 s52, s{self.m}, 18")
    make_srd(e, SRD_X, P_AX, 52, 0, 4194304)
    e(f"s_lshl_b32 s52, s{self.n}, 8")
    make_srd(e, SRD_W, P_AWQ, 52, 0, 2097152)
    self.g.setup(e); self.g.prologue(e)
  def main(self, e, extra=0, hook=None):
    g = self.g; ld = "sc1"; before_kv = self.before_kv
    if FINEA: stamp(e, 6)
    g.run(e, extra, hook)
    if FINEA: stamp(e, 7)
    Q = [8, 16]; P = [24, 32]; KF = [40, 48]; VF = [56, 64]; ONE = 72
    S = [80, 96]; NM = [112, 160]; O = [176, 192]; L = [208, 224]
    e(f"s_mov_b32 s50, {hex(f32bits(32 ** -0.5 * math.log2(math.e)))}")
    e("s_barrier")
    if before_kv: before_kv(e)
    make_srd(e, SRD_X, P_WS, None, WS_KA, WS_KA + 262144)
    e(f"""v_lshlrev_b32 v2, 4, v0
s_lshl_b32 s53, s{S_WAVE}, 12""")
    Lk = e.label("Lkld")
    e(f"s_mov_b32 s54, s53\n{Lk}:\ns_mov_b32 m0, s54")
    for x in range(4): e(f"buffer_load_dwordx4 v2, s[{SRD_X}:{SRD_X+3}], s54 offen offset:{x*1024} {ld} lds")
    e(f"s_add_u32 s54, s54, 32768\ns_cmp_lt_u32 s54, 131072\ns_cbranch_scc1 {Lk}")
    e(f"s_lshl_b32 s55, s{S_WAVE}, 11\ns_add_u32 s55, s55, 131072\ns_mov_b32 s56, s55")
    vdma = f"""s_mov_b32 m0, s55
s_xor_b32 s55, s55, 16384
buffer_load_dwordx4 v2, s[{SRD_X}:{SRD_X+3}], s56 offen {ld} lds
buffer_load_dwordx4 v2, s[{SRD_X}:{SRD_X+3}], s56 offen offset:1024 {ld} lds
s_add_u32 s56, s56, 16384"""
    e(vdma)
    for t in range(2):
        a = g.acc(0, t)
        for r in range(16): e(f"v_mul_f32 v{a+r}, s50, v{a+r}")
        pack_tile(e, a, Q[t], swap=False)
    for r in range(4): e(f"v_mov_b32 v{ONE+r}, 0x3f803f80")
    e("v_mov_b32 v4, 0xff800000\nv_mov_b32 v5, 0xff800000")
    e("v_mov_b32 v3, v2\ns_waitcnt vmcnt(2)\ns_barrier")
    def kread(set_, off): return [f"ds_read_b128 v[{KF[set_]+4*j}:{KF[set_]+4*j+3}], v3 offset:{off + 1024*j}" for j in range(2)]
    def qk(t, set_, dst, c):
        return [f"v_mfma_f32_32x32x16_bf16 v[{dst}:{dst+15}], v[{KF[set_]}:{KF[set_]+3}], v[{Q[t]}:{Q[t]+3}], {c}",
                f"v_mfma_f32_32x32x16_bf16 v[{dst}:{dst+15}], v[{KF[set_]+4}:{KF[set_]+7}], v[{Q[t]+4}:{Q[t]+7}], v[{dst}:{dst+15}]"]
    if FINEA: stamp(e, 8)
    SB = [[S[0], S[1]], [O[0], O[1]]]
    def mx(t, src): return [f"v_max3_f32 v{4+t}, v{src+2*i}, v{src+2*i+1}, v{4+t}" for i in range(8)]
    for x in kread(0, 0): e(x)
    for t in range(2):
        for r in range(16): e(f"v_mov_b32 v{SB[1][t]+r}, 0xff800000")
    L1 = e.label("Lp1")
    e(f"s_mov_b32 s57, 32\n{L1}:")
    for p in range(2):
        e("s_waitcnt lgkmcnt(0)")
        mf = qk(0, p, SB[p][0], "0") + qk(1, p, SB[p][1], "0")
        fill = kread(p ^ 1, (p + 1) * 2048) + (["v_add_u32 v3, 4096, v3"] if p else []) + mx(0, SB[p ^ 1][0]) + mx(1, SB[p ^ 1][1])
        Gemm.weave(e, mf, fill)
    e(f"s_sub_u32 s57, s57, 1\ns_cmp_lg_u32 s57, 0\ns_cbranch_scc1 {L1}")
    e("s_nop 7\ns_nop 3")
    for x in mx(0, SB[1][0]) + mx(1, SB[1][1]): e(x)
    for t in range(2):
        e(f"v_mov_b32 v6, v{4+t}\nv_permlane32_swap_b32 v{4+t}, v6\nv_max_f32 v{4+t}, v{4+t}, v6")
        for r in range(16): e(f"v_mul_f32 v{NM[t]+r}, -1.0, v{4+t}")
        for r in range(0, 16, 2): e(f"v_mov_b64 v[{O[t]+r}:{O[t]+r+1}], 0\nv_mov_b64 v[{L[t]+r}:{L[t]+r+1}], 0")
    for r in range(0, 8, 2): e(f"v_mov_b64 v[{P[1]+r}:{P[1]+r+1}], 0\nv_mov_b64 v[{VF[1]+r}:{VF[1]+r+1}], 0")
    if FINEA: stamp(e, 9)
    e("s_waitcnt lgkmcnt(0)\nv_mov_b32 v3, v2\nv_add_u32 v7, 131072, v2")
    for x in kread(0, 0) + kread(1, 2048): e(x)
    e("s_waitcnt lgkmcnt(0)")
    for x in qk(0, 0, S[0], f"v[{NM[0]}:{NM[0]+15}]"): e(x)
    def pv(t, set_):
        r = []
        for j in range(2):
            r.append(f"v_mfma_f32_32x32x16_bf16 v[{O[t]}:{O[t]+15}], v[{VF[set_]+4*j}:{VF[set_]+4*j+3}], v[{P[t]+4*j}:{P[t]+4*j+3}], v[{O[t]}:{O[t]+15}]")
            r.append(f"v_mfma_f32_32x32x16_bf16 v[{L[t]}:{L[t]+15}], v[{ONE}:{ONE+3}], v[{P[t]+4*j}:{P[t]+4*j+3}], v[{L[t]}:{L[t]+15}]")
        return r
    def sm(t):
        r = []
        for i in range(8):
            r.append(f"v_exp_f32 v{S[t]+2*i}, v{S[t]+2*i}")
            r.append(f"v_exp_f32 v{S[t]+2*i+1}, v{S[t]+2*i+1}")
            if i >= 1: r.append(f"v_cvt_pk_bf16_f32 v{P[t]+i-1}, v{S[t]+2*i-2}, v{S[t]+2*i-1}")
        r.append(f"s_nop 0\nv_cvt_pk_bf16_f32 v{P[t]+7}, v{S[t]+14}, v{S[t]+15}")
        return r
    L2, L2c, L2b, L2x = e.label("Lp2"), e.label("Lp2c"), e.label("Lp2b"), e.label("Lp2x")
    e(f"s_mov_b32 s57, 0\ns_mov_b32 s51, 0x27fff\n{L2}:\ns_and_b32 s52, s57, 3\ns_cbranch_scc0 {L2c}\n{L2b}:")
    for p in range(2):
        vread = [f"ds_read_b128 v[{VF[p]+4*j}:{VF[p]+4*j+3}], v7 offset:{p*2048 + 1024*j}" for j in range(2)]
        if p: vread += ["v_add_u32 v7, 4096, v7", "v_and_b32 v7, s51, v7"]
        Gemm.weave(e, qk(1, p, S[1], f"v[{NM[1]}:{NM[1]+15}]") + pv(1, p ^ 1), vread + sm(0))
        e("s_waitcnt lgkmcnt(0)")
        f = sm(1)
        f = f[:10] + kread(p, (p + 2) * 2048) + (["v_add_u32 v3, 4096, v3"] if p else []) + f[10:]
        Gemm.weave(e, qk(0, p ^ 1, S[0], f"v[{NM[0]}:{NM[0]+15}]") + pv(0, p), f)
    e(f"""s_add_u32 s57, s57, 1
s_cmp_lg_u32 s57, 32
s_cbranch_scc1 {L2}
s_branch {L2x}
{L2c}:
s_waitcnt vmcnt(0) lgkmcnt(0)
s_barrier
{vdma}
s_branch {L2b}
{L2x}:""")
    for x in pv(1, 1): e(x)
    e("s_waitcnt vmcnt(0) lgkmcnt(0)")
    if FINEA: stamp(e, 10)
  def post(self, e):
    O = [176, 192]; L = [208, 224]
    self.g.wave_ids(e, 60, 61)
    e(f"""s_lshl_b32 s58, s{self.m}, 2
s_lshl_b32 s59, s60, 1
s_add_u32 s58, s58, s59
s_lshl_b32 s58, s58, 16
s_lshl_b32 s59, s{self.n}, 2
s_add_u32 s59, s59, s61
s_lshl_b32 s59, s59, 11
s_add_u32 s58, s58, s59
s_mov_b32 s59, 65536
v_lshlrev_b32 v{EA}, 4, v0""")
    make_srd(e, SRD_O, P_WS, 58, WS_OA, WS_SIZE)
    for t in range(2):
        e(f"v_rcp_f32 v{EA+1}, v{L[t]}")
        for r in range(16): e(f"v_mul_f32 v{O[t]+r}, v{O[t]+r}, v{EA+1}")
        pack_tile(e, O[t], ET + 8 * t, swap=False)
        for j in range(2):
            e(f"buffer_store_dwordx4 v[{ET+8*t+4*j}:{ET+8*t+4*j+3}], v{EA}, s[{SRD_O}:{SRD_O+3}], {'s59' if t else '0'} offen offset:{1024*j} sc1")
    return 4

class Out:
    def __init__(self, part, s_m, s_n, BN=128):
        self.part, self.m, self.n, self.sh = part, s_m, s_n, BN.bit_length()
        self.K = 1024 if part == "A" else 4096
        self.g = Gemm(128, BN, 2, 4, self.K, 5 if BN == 128 else 3, "frag", self.K * 64, 2048, ld="sc1", mf=MF)
    def pre(self, e):
        A = self.part == "A"
        e(f"s_mul_i32 s52, s{self.m}, {4*self.K*64}")
        make_srd(e, SRD_X, P_WS, 52, WS_OA if A else WS_OB, WS_SIZE)
        e(f"s_lshl_b32 s52, s{self.n}, {self.sh}")
        make_srd(e, SRD_W, P_AWO if A else P_BWO, 52, 0, self.K * 2048)
        self.g.setup(e); self.g.prologue(e)
    def main(self, e, extra=0, hook=None): self.g.run(e, extra, hook)
    def post(self, e):
        g = self.g
        e(f"s_lshl_b32 s58, s{self.n}, {self.sh}\ns_lshl_b32 s59, s{self.m}, 19\ns_add_u32 s58, s58, s59")
        make_srd(e, SRD_O, P_OUT, 58, 0 if self.part == "A" else 2048, 8388608)
        g.wave_ids(e, 60, 61)
        e(f"""s_mul_i32 s58, s60, {g.wrows*4096}
s_mul_i32 s59, s61, {g.BN//g.WN*2}
s_add_u32 s58, s58, s59
v_and_b32 v{EA}, {g.mf-1}, v0
v_lshlrev_b32 v{EA}, 12, v{EA}
v_lshrrev_b32 v{EA+1}, 5, v0
v_lshl_add_u32 v{EA}, v{EA+1}, 4, v{EA}""")
        if g.mf == 16: e(f"v_bfe_u32 v{EA+1}, v0, 4, 1\nv_lshl_add_u32 v{EA}, v{EA+1}, 5, v{EA}")
        cur = 0; n = 0
        for n32, row, quads in tiles32(e, g):
            so = row * 4096
            if so != cur: e(f"s_add_u32 s58, s58, {so - cur}"); cur = so
            for d, j in quads:
                e(f"buffer_store_dwordx4 v[{d}:{d+3}], v{EA}, s[{SRD_O}:{SRD_O+3}], s58 offen offset:{n32*64 + j*32}"); n += 1
        return n

def b_attn_setup(e):
    e(f"""v_bfe_u32 v2, v0, 4, 1
v_lshlrev_b32 v2, 12, v2
v_and_b32 v3, 15, v0
v_lshl_add_u32 v2, v3, 4, v2
v_lshrrev_b32 v4, 5, v0
v_lshl_add_u32 v2, v4, 8, v2
v_and_b32 v3, 7, v0
v_lshlrev_b32 v3, 4, v3
v_lshl_add_u32 v3, v4, 7, v3
v_lshlrev_b32 v5, 4, v0
s_mul_i32 s58, s{S_WAVE}, 10240""")
    e("""v_bfe_u32 v6, v0, 2, 2
v_lshl_add_u32 v6, v4, 2, v6
v_lshlrev_b32 v6, 4, v6
v_bfe_u32 v7, v0, 4, 1
v_lshlrev_b32 v7, 1, v7
v_bfe_u32 v8, v0, 1, 1
v_add_u32 v7, v7, v8
v_and_b32 v8, 1, v0
v_lshl_add_u32 v6, v8, 3, v6
v_lshl_add_u32 v9, v7, 7, v6
v_lshl_add_u32 v6, v7, 8, v6
v_add_u32 v6, s58, v6
s_add_u32 s59, s58, 8192
v_add_u32 v9, s59, v9""")
    e("""v_lshrrev_b32 v7, 4, v0
v_lshlrev_b32 v7, 8, v7
v_and_b32 v8, 7, v0
v_lshl_add_u32 v7, v8, 4, v7
v_bfe_u32 v8, v0, 3, 1
v_lshl_add_u32 v7, v8, 2, v7
v_add_u32 v7, s59, v7
v_and_b32 v8, 31, v0
v_lshlrev_b32 v10, 2, v4
v_sub_u32 v8, v8, v10
v_mov_b32 v10, 0xff800000""")
    e(f"s_mov_b32 s57, {hex(f32bits(128 ** -0.5 * math.log2(math.e)))}")
    make_srd(e, SRD_X, P_WS, None, 0, WS_SIZE)

def b_attn_unit(e, s_u, ld="", st=""):
    Q, K, KM, VM, SX, SM, P, VT, O = 16, 48, 80, 112, 120, 136, 152, 164, 176
    X = f"s[{SRD_X}:{SRD_X+3}]"
    e(f"""s_lshl_b32 s50, s{s_u}, 13
s_add_u32 s51, s50, {WS_KB}
s_add_u32 s52, s50, {WS_VB}
s_add_u32 s53, s52, 4096
s_lshl_b32 s54, s{s_u}, 12
s_add_u32 s54, s54, {WS_KVM}
s_add_u32 s55, s50, {WS_OB}
s_add_u32 s56, s55, 4096""")
    for ks in range(8):
        e(f"buffer_load_dwordx4 v[{Q+4*ks}:{Q+4*ks+3}], v2, {X}, s50 offen offset:{(ks//2)*1024 + (ks%2)*512} {ld}")
        e(f"buffer_load_dwordx4 v[{K+4*ks}:{K+4*ks+3}], v2, {X}, s51 offen offset:{(ks//2)*1024 + (ks%2)*512} {ld}")
        e(f"buffer_load_dwordx4 v[{KM+4*ks}:{KM+4*ks+3}], v3, {X}, s54 offen offset:{ks*256} {ld}")
    for u in range(2): e(f"buffer_load_dwordx4 v[{VM+4*u}:{VM+4*u+3}], v5, {X}, s54 offen offset:{2048+1024*u} {ld}")
    e("s_mov_b32 m0, s58")
    for x in range(4): e(f"buffer_load_dwordx4 v5, {X}, s52 offen offset:{x*1024} {ld} lds")
    e("s_add_u32 m0, s58, 4096")
    for x in range(4): e(f"buffer_load_dwordx4 v5, {X}, s53 offen offset:{x*1024} {ld} lds")
    for ks in range(8):
        e(f"s_waitcnt vmcnt({10 + 3*(7-ks)})")
        e(f"v_mfma_f32_32x32x16_bf16 v[{SX}:{SX+15}], v[{K+4*ks}:{K+4*ks+3}], v[{Q+4*ks}:{Q+4*ks+3}], {'0' if ks == 0 else f'v[{SX}:{SX+15}]'}")
        e(f"v_mfma_f32_32x32x16_bf16 v[{SM}:{SM+15}], v[{KM+4*ks}:{KM+4*ks+3}], v[{Q+4*ks}:{Q+4*ks+3}], {'0' if ks == 0 else f'v[{SM}:{SM+15}]'}")
    e("s_waitcnt vmcnt(8)")
    for u in range(2):
        for q in range(4):
            e(f"ds_write_b32 v7, v{VM+4*u+q} offset:{(8*u + q//2)*128 + (q%2)*8}")
    for r in range(16):
        e(f"v_cmp_le_i32 vcc, {8*(r//4) + r%4}, v8\nv_cndmask_b32 v{SX+r}, v10, v{SX+r}, vcc")
    e(f"v_max3_f32 v11, v{SM}, v{SM+1}, v{SM+2}\nv_max_f32 v11, v11, v{SM+3}")
    for i in range(8): e(f"v_max3_f32 v11, v{SX+2*i}, v{SX+2*i+1}, v11")
    e("v_mov_b32 v12, v11\nv_permlane32_swap_b32 v11, v12\nv_max_f32 v11, v11, v12\nv_mul_f32 v11, s57, v11")
    regs = [SX + i for i in range(20)]
    for r in regs: e(f"v_fma_f32 v{r}, v{r}, s57, -v11")
    for r in regs: e(f"v_exp_f32 v{r}, v{r}")
    e(f"v_add_f32 v11, v{regs[0]}, v{regs[1]}\nv_add_f32 v12, v{regs[2]}, v{regs[3]}")
    for i in range(4, 20, 2): e(f"v_add_f32 v11, v11, v{regs[i]}\nv_add_f32 v12, v12, v{regs[i+1]}")
    e("v_add_f32 v11, v11, v12\nv_mov_b32 v12, v11\nv_permlane32_swap_b32 v11, v12\nv_add_f32 v11, v11, v12\nv_rcp_f32 v11, v11")
    for r in regs: e(f"v_mul_f32 v{r}, v{r}, v11")
    for i in range(10): e(f"v_cvt_pk_bf16_f32 v{P+i}, v{regs[2*i]}, v{regs[2*i+1]}")
    e("s_waitcnt vmcnt(0) lgkmcnt(0)")
    for et in range(4):
        vt = Q + 12 * et
        for j in range(2):
            for h in range(2):
                e(f"ds_read_b64_tr_b16 v[{vt+4*j+2*h}:{vt+4*j+2*h+1}], v6 offset:{j*4096 + et*1024 + h*128}")
        e(f"ds_read_b64_tr_b16 v[{vt+8}:{vt+9}], v9 offset:{et*512}")
    for et in range(4):
        vt = Q + 12 * et; o = O + 16 * et
        e(f"s_waitcnt lgkmcnt({5*(3-et)})")
        e(f"v_mfma_f32_32x32x16_bf16 v[{o}:{o+15}], v[{vt}:{vt+3}], v[{P}:{P+3}], 0")
        e(f"v_mfma_f32_32x32x16_bf16 v[{o}:{o+15}], v[{vt+4}:{vt+7}], v[{P+4}:{P+7}], v[{o}:{o+15}]")
        e(f"v_mfma_f32_32x32x8_bf16 v[{o}:{o+15}], v[{vt+8}:{vt+9}], v[{P+8}:{P+9}], v[{o}:{o+15}]")
    for et in range(4):
        d = KM + 8 * et
        pack_tile(e, O + 16 * et, d, swap=False)
        for j in range(2):
            e(f"buffer_store_dwordx4 v[{d+4*j}:{d+4*j+3}], v5, {X}, s{55 + et//2} offen offset:{(et%2)*2048 + j*1024} {st}")
```

```python
import common
from common import *
import math

SPREAD = 0
def acc_step(): return 256 if SPREAD else 20480
def acc_piece(): return 65 * 256 if SPREAD else 256
KLATE = 8
DELAY_B = -1
CANARY = 1
CGAP = 2
CTHR = 8
FIX_A = -1
WS_CAN = WS_ACC + 0x180000
BR_G = 24576
WS_PR = WS_BR + 0x80000
PR_SLOT = 98304
BR_SLOT = 8 * BR_G
R1 = 0
R2 = 18432
RL = 28672
YD2 = 65536
YD = 32768
SPIN_MAX = 400000
ACK_B = 1
KVSTEP = 262144
NOKV = 0
LATE_V = 0
XT = 0
XW = 6
STL = 2
PDMA = 1
QL = 0
SFLAG = 1
XS2 = 10
PBL = 0
KPOS = 0xe000001000
PL = 98304
VSL = 1
QONE = 1
KVE = 1
VARR = -1
VPOST = 0
AF = 1
KVF = 1
LF = ['', 'sc1', 'nt', 'sc0', 'sc1 nt', 'sc0 sc1']
XSF = 1
RTAB = 0x023579bd
FL2 = 29440
FSL = 2
KPRE = 6
FPOS = 1
OOB = 131072
P1B = 1
BPIPE = 1
FINR = 0
VLATE = 8
FL = 29184
XW23 = 9
RSEL = 0
FORCE_FB = 0
VEARLY = 8
EARLY = -1
EGAP = 2
EADD = 0
EW0 = 1
EPRE = 2
EDLY = 0
XST = 0
XSL = 8
XLD = 2
KEARLY = 8
PLATE = 24
NOQ = 0
PREF = 0
RANK_A = 2
PACE_A = 0
DBG_ARRIVE = 0
DBG_XCC = 4
DBG_PROG = 64
DBG_FAIL = 252 - 172

sStep, sSpin, sMode = 64, 65, 66
sACC, sACCN, sB, sBO, sK, sV, sKVM = 68, 70, 72, 74, 76, 78, 60
sSelE, sSelO, sC, sG, sM, sW = 62, 63, 59, 56, 57, 58
sQ, sQL = 60, 61

TRACE = False
WS_TRACE = WS_DIAG + (1 << 20)
def tr(e, i):
    if TRACE: e(f"s_memrealtime s[{86+2*i}:{87+2*i}]")
def tr_out(e):
    if not TRACE: return
    e(f"""s_waitcnt lgkmcnt(0)
s_lshl_b32 s48, s{S_WG}, 3
s_add_u32 s48, s48, s{S_WAVE}
s_lshl_b32 s48, s48, 6
s_add_u32 s48, s48, s{sStep}
s_lshl_b32 s48, s48, 5
s_add_u32 s48, s48, {WS_TRACE}
v_lshlrev_b32 v13, 2, v0
v_add_u32 v13, s48, v13""")
    for i in range(8): e(f"v_writelane_b32 v12, s{86+2*i}, {i}")
    e(f"s_mov_b64 exec, 0xff\nglobal_store_dword v13, v12, s[{P_WS}:{P_WS+1}]\ns_mov_b64 exec, -1")

def reduce4(e, alo, ahi, st, t=12, scale=None):
    e(f"""ds_read2st64_b32 v[{t}:{t+1}], v{alo} offset0:0 offset1:{st}
ds_read2st64_b32 v[{t+2}:{t+3}], v{ahi} offset0:0 offset1:{st}
ds_read2st64_b32 v[{t+4}:{t+5}], v{alo} offset0:{2*st} offset1:{3*st}
ds_read2st64_b32 v[{t+6}:{t+7}], v{ahi} offset0:{2*st} offset1:{3*st}
s_cmp_lg_u32 s{sMode}, 0
s_waitcnt lgkmcnt(2)
v_add_f32 v{t}, v{t}, v{t+1}
v_add_f32 v{t+2}, v{t+2}, v{t+3}""")
    if scale: e(f"v_mul_f32 v{t}, v{t}, v{scale}\nv_mul_f32 v{t+2}, v{t+2}, v{scale}")
    e(f"""s_waitcnt lgkmcnt(0)
v_add_f32 v{t+4}, v{t+4}, v{t+5}
v_add_f32 v{t+6}, v{t+6}, v{t+7}""")
    if scale: e(f"v_fmac_f32 v{t}, v{t+4}, v{scale}\nv_fmac_f32 v{t+2}, v{t+6}, v{scale}")
    else: e(f"v_add_f32 v{t}, v{t}, v{t+4}\nv_add_f32 v{t+2}, v{t+2}, v{t+6}")
    e(f"v_cvt_pk_bf16_f32 v{t}, v{t}, v{t+2}")

def reduce4n(e, ar, one, t, r):
    e(f"""ds_read_b128 v[{r}:{r+3}], v{ar}
ds_read2st64_b32 v[{t}:{t+1}], v7 offset0:0 offset1:10
ds_read2st64_b32 v[{t+2}:{t+3}], v8 offset0:0 offset1:10
ds_read2st64_b32 v[{t+4}:{t+5}], v7 offset0:20 offset1:30
ds_read2st64_b32 v[{t+6}:{t+7}], v8 offset0:20 offset1:30
s_waitcnt lgkmcnt(2)
v_mul_f32 v{t}, v{t}, v{r}
v_fma_f32 v{t+2}, v{t+2}, v{r}, v{one}
v_fmac_f32 v{t}, v{t+1}, v{r+1}
v_fmac_f32 v{t+2}, v{t+3}, v{r+1}
s_waitcnt lgkmcnt(0)
v_fmac_f32 v{t}, v{t+4}, v{r+2}
v_fmac_f32 v{t+2}, v{t+6}, v{r+2}
v_fmac_f32 v{t}, v{t+5}, v{r+3}
v_fmac_f32 v{t+2}, v{t+7}, v{r+3}
v_cvt_pk_bf16_f32 v{t}, v{t}, v{t+2}""")
def rn_setup(ar, one):
    return f"""v_bfe_u32 v{ar}, v0, 2, 3
v_lshlrev_b32 v{ar}, 4, v{ar}
v_add_u32 v{ar}, {RL + 128}, v{ar}
v_and_b32 v{one}, 3, v0
v_cmp_eq_u32 vcc, 3, v{one}
v_cndmask_b32 v{one}, 0, 1.0, vcc"""

def publish_B(e, tail, d=12):
    ls, lb = e.label("Lslow"), e.label("Lback")
    e(f"""v_min_u32 v{d}, -2, v{d}
s_cbranch_scc1 {ls}
global_store_dword v6, v{d}, s[{sB}:{sB+1}]
global_store_dword v6, v11, s[{sBO}:{sBO+1}]
{lb}:""")
    tail.append(f"""{ls}:
global_store_dword v6, v{d}, s[{sB}:{sB+1}] sc1
global_store_dword v6, v11, s[{sBO}:{sBO+1}] sc1
s_branch {lb}""")

def advance(e):
    e(f"""s_add_u32 s{sStep}, s{sStep}, 1
s_mov_b64 s[{sACC}:{sACC+1}], s[{sACCN}:{sACCN+1}]
s_add_u32 s{sACCN}, s{sACCN}, {acc_step()}
s_addc_u32 s{sACCN+1}, s{sACCN+1}, 0
s_mov_b64 s[50:51], s[{sB}:{sB+1}]
s_mov_b64 s[{sB}:{sB+1}], s[{sBO}:{sBO+1}]
s_mov_b64 s[{sBO}:{sBO+1}], s[50:51]""")

def chain(e, L_done, kv_wait=None, arrive_hook=None):
    tail = []
    Lfail = e.label("Lcfail")
    e(f"""s_and_b32 s{sG}, s{S_WG}, 7
s_lshr_b32 s{sM}, s{S_WG}, 3
s_and_b32 s{sW}, s{S_WAVE}, 3
s_mov_b32 s{sStep}, 0
s_mov_b32 s{sSpin}, 0
s_mov_b32 s{sSelE}, 0x05040100
s_mov_b32 s{sSelO}, 0x07060100
s_mov_b32 s{sC}, {hex(f32bits(128 ** -0.5 * math.log2(math.e)))}
s_add_u32 s{sACC}, s{P_WS}, {WS_ACC}
s_addc_u32 s{sACC+1}, s{P_WS+1}, 0
s_add_u32 s{sACCN}, s{sACC}, {acc_step()}
s_addc_u32 s{sACCN+1}, s{sACC+1}, 0
s_mul_i32 s48, s{sG}, {BR_G}
s_add_u32 s48, s48, {WS_BR}
s_add_u32 s{sB}, s{P_WS}, s48
s_addc_u32 s{sB+1}, s{P_WS+1}, 0
s_add_u32 s{sBO}, s{sB}, {BR_SLOT}
s_addc_u32 s{sBO+1}, s{sB+1}, 0
s_add_u32 s{sK}, s{P_WS}, {WS_KB}
s_addc_u32 s{sK+1}, s{P_WS+1}, 0
s_add_u32 s{sV}, s{P_WS}, {WS_VB}
s_addc_u32 s{sV+1}, s{P_WS+1}, 0
s_add_u32 s{sKVM}, s{P_WS}, {WS_OP - 2*524288}
s_addc_u32 s{sKVM+1}, s{P_WS+1}, 0
v_mov_b32 v11, -1""")
    e("""v_and_b32 v12, 3, v0
v_bfe_u32 v13, v0, 2, 3
v_lshrrev_b32 v14, 5, v0""")
    e("""v_mov_b32 v2, 0x4444
v_mov_b32 v15, 0xeeee
v_and_b32 v16, 8, v0
v_cmp_ne_u32 vcc, 0, v16
v_cndmask_b32 v2, v2, v15, vcc""")
    e(f"""s_lshl_b32 s48, s{S_WAVE}, 4
v_lshlrev_b32 v15, 2, v12
v_lshlrev_b32 v16, 1, v14
v_add3_u32 v15, v15, v16, s48
v_add_u32 v16, 1, v15
v_lshlrev_b32 v17, 5, v12
v_lshl_add_u32 v17, v14, 1, v17
v_add_u32 v17, 13, v17
v_add_u32 v18, 16, v17
s_cmp_eq_u32 s{S_WAVE}, 4
s_cselect_b64 s[48:49], -1, 0
v_cndmask_b32 v15, v15, v17, s[48:49]
v_cndmask_b32 v16, v16, v18, s[48:49]""")
    e("""v_cmp_le_u32 s[50:51], 2, v12
s_and_b64 s[50:51], s[50:51], s[48:49]
v_cmp_eq_u32 s[52:53], 2, v12
s_and_b64 s[52:53], s[52:53], s[48:49]
v_cmp_eq_u32 s[54:55], 3, v12""")
    for col, dst in ((15, 7), (16, 8)):
        e(f"""v_lshrrev_b32 v17, 2, v{col}
v_mul_u32_u24 v17, 160, v17
v_and_b32 v18, 3, v{col}
v_lshlrev_b32 v18, 5, v18
v_add_u32 v17, v17, v18
v_lshl_add_u32 v17, v13, 2, v17
v_add_u32 v{dst}, {R2}, v17""")
    e(f"""v_mov_b32 v17, {R2+132}
v_mov_b32 v18, {R2+132}
v_cndmask_b32 v7, v7, v18, s[50:51]
v_cndmask_b32 v8, v8, v18, s[52:53]
v_cndmask_b32 v8, v8, v17, s[54:55]""")
    e(f"""s_mul_i32 s67, s{sM}, 5
s_add_u32 s67, s67, s{S_WAVE}
s_mul_i32 s67, s67, {acc_piece()}
v_lshlrev_b32 v9, 2, v0
v_add_u32 v9, s67, v9""")
    Ln0 = e.label("Lnomem0")
    e(f"""s_cmp_lg_u32 s{sG}, 0
s_cbranch_scc1 {Ln0}
s_cmp_gt_u32 s{S_WAVE}, 4
s_cbranch_scc1 {Ln0}
s_lshl_b32 s48, s{sM}, 7
v_lshlrev_b32 v17, 11, v13
v_add_u32 v17, s48, v17
v_and_b32 v15, 63, v15
v_and_b32 v16, 63, v16
v_lshl_add_u32 v15, v15, 1, v17
v_lshl_add_u32 v16, v16, 1, v17
global_load_ushort v15, v15, s[{P_MEM0}:{P_MEM0+1}]
global_load_ushort v16, v16, s[{P_MEM0}:{P_MEM0+1}]
v_mov_b32 v17, 0x4100
s_waitcnt vmcnt(0)
v_cndmask_b32 v15, v15, 0, s[50:51]
v_cndmask_b32 v16, v16, 0, s[52:53]
v_cndmask_b32 v16, v16, v17, s[54:55]
v_lshl_or_b32 v15, v16, 16, v15
global_store_dword v9, v15, s[{sACC}:{sACC+1}] sc1
{Ln0}:""")
    Lz = e.label("Lz")
    e(f"""s_mul_i32 s48, s{S_WG}, 640
s_lshl_b32 s49, s{S_WAVE}, 6
s_add_u32 s48, s48, s49
v_mov_b64 v[16:17], 0
v_mov_b64 v[18:19], 0""")
    for rep in range(2):
        if rep: e(f"s_cmp_gt_u32 s{S_WAVE}, 1\ns_cbranch_scc1 {Lz}\ns_add_u32 s48, s48, 512")
        e("v_add_u32 v15, s48, v0")
        if SPREAD: e("v_lshrrev_b32 v20, 10, v15\nv_lshlrev_b32 v15, 4, v15\nv_lshl_add_u32 v15, v20, 8, v15")
        else: e("v_lshlrev_b32 v15, 4, v15")
        e(f"global_store_dwordx4 v15, v[16:19], s[{sACCN}:{sACCN+1}] sc1")
    e(f"{Lz}:")
    LS2i, Lji = e.label("LS2i"), e.label("Lji")
    e(f"""s_lshr_b32 s48, s{sM}, 2
s_mul_i32 s48, s48, 6144
s_and_b32 s49, s{sM}, 3
s_cmp_ge_u32 s{S_WAVE}, 4
s_cbranch_scc1 {LS2i}""")
    e(f"""s_and_b32 s50, s{S_WAVE}, 1
s_lshl_b32 s51, s50, 3
v_lshl_add_u32 v15, v12, 1, v14
v_add_u32 v15, s51, v15
v_mul_u32_u24 v15, 96, v15
v_lshl_add_u32 v15, v13, 2, v15
v_add_u32 v4, {R1 + 2*1536}, v15
v_add_u32 v5, 32, v4
s_lshl_b32 s49, s49, 9
s_lshl_b32 s50, s50, 8
s_add_u32 s48, s48, s49
s_add_u32 s48, s48, s50
s_add_u32 s48, s48, 4096
s_branch {Lji}
{LS2i}:""")
    e(f"""s_lshl_b32 s51, s{sW}, 2
v_add_u32 v15, s51, v12
v_mul_u32_u24 v15, 96, v15
v_lshl_add_u32 v15, v13, 2, v15
v_xor_b32 v16, 1, v14
v_mul_u32_u24 v16, 1536, v16
v_add3_u32 v4, v15, v16, {R1}
v_add_u32 v5, 32, v4
s_lshl_b32 s49, s49, 10
s_lshl_b32 s50, s{sW}, 8
s_add_u32 s48, s48, s49
s_add_u32 s48, s48, s50
{Lji}:
v_lshlrev_b32 v6, 2, v0
v_add_u32 v6, s48, v6""")
    e(f"""global_store_dword v6, v11, s[{sB}:{sB+1}] sc1
global_store_dword v6, v11, s[{sBO}:{sBO+1}] sc1
s_min_u32 s48, s{S_WAVE}, 2
s_mul_i32 s49, s{S_WG}, 3
s_add_u32 s48, s48, s49
s_lshl_b32 s48, s48, 8
s_add_u32 s48, s48, {WS_PR}
v_lshl_add_u32 v15, v0, 2, s48
global_store_dword v15, v11, s[{P_WS}:{P_WS+1}] sc1
s_waitcnt vmcnt(0)
s_barrier""")
    stamp(e, 6, True)
    La = e.label("La")
    e(f"""s_cmp_lg_u32 s{S_WAVE}, 0
s_cbranch_scc1 {La}
s_getreg_b32 s48, hwreg(HW_REG_XCC_ID)
s_and_b32 s48, s48, 15
s_lshl_b32 s48, 1, s48
s_lshl_b32 s49, s{sG}, 2
s_mov_b64 exec, 1
v_mov_b32 v15, s49
v_mov_b32 v16, s48
global_atomic_or v15, v16, s[{P_DBG}:{P_DBG+1}] offset:{DBG_XCC}
s_waitcnt vmcnt(0)
v_mov_b32 v15, 0
v_mov_b32 v16, 1
global_atomic_add v15, v16, s[{P_DBG}:{P_DBG+1}] offset:{DBG_ARRIVE}
s_mov_b64 exec, -1
{La}:""")
    LS2 = e.label("LS2")
    e(f"s_cmp_ge_u32 s{S_WAVE}, 4\ns_cbranch_scc1 {LS2}")

    def wait_start():
        stamp(e, 7, True)
        Lw = e.label("Lws")
        e(f"""s_lshl_b32 s49, s{sG}, 2
v_mov_b32 v12, 0
v_mov_b32 v13, s49
{Lw}:
s_sleep 4
global_load_dword v14, v12, s[{P_DBG}:{P_DBG+1}] offset:{DBG_ARRIVE} sc1
s_add_u32 s{sSpin}, s{sSpin}, 1
s_cmp_gt_u32 s{sSpin}, {SPIN_MAX}
s_cbranch_scc1 {Lfail}
s_waitcnt vmcnt(0)
v_readfirstlane_b32 s48, v14
s_cmp_lt_u32 s48, 128
s_cbranch_scc1 {Lw}
global_load_dword v14, v13, s[{P_DBG}:{P_DBG+1}] offset:{DBG_XCC} sc1
s_waitcnt vmcnt(0)
v_readfirstlane_b32 s48, v14
s_bcnt1_i32_b32 s48, s48
s_sub_u32 s{sMode}, s48, 1""")

    W1 = 64; G = 20; AC = 40
    e(f"""s_lshl_b32 s48, s{sG}, 2
s_lshr_b32 s49, s{sM}, 2
s_add_u32 s48, s48, s49
s_lshl_b32 s48, s48, 8
s_and_b32 s49, s{sM}, 3
s_lshl_b32 s49, s49, 6
s_add_u32 s48, s48, s49
s_lshl_b32 s49, s{sW}, 21
s_add_u32 s52, s48, s49
v_lshrrev_b32 v12, 2, v0
v_lshlrev_b32 v12, 13, v12
v_and_b32 v13, 3, v0
v_lshl_add_u32 v12, v13, 4, v12
s_lshl_b32 s53, s{sW}, 15""")
    e(f"""v_lshrrev_b32 v13, 5, v0
v_lshlrev_b32 v13, 6, v13
v_bfe_u32 v14, v0, 4, 1
v_lshl_add_u32 v13, v14, 3, v13
v_bfe_u32 v14, v0, 2, 2
v_add_u32 v13, v13, v14
v_lshlrev_b32 v13, 6, v13
v_and_b32 v14, 3, v0
v_lshl_add_u32 v13, v14, 3, v13
v_add_u32 v13, s53, v13""")
    def w1_dma(ptr, half):
        make_srd(e, SRD_W, ptr, 52, 0, 8388608)
        L = e.label("Lw1")
        e(f"""s_add_u32 m0, s53, {half*16384}
s_mov_b32 s54, 0
{L}:
buffer_load_dwordx4 v12, s[{SRD_W}:{SRD_W+3}], s54 offen lds
s_add_u32 s54, s54, {16*8192}
s_add_u32 m0, m0, 1024
s_cmp_lt_u32 s54, {256*8192}
s_cbranch_scc1 {L}""")
    def w1_read(mat, half):
        for ch in range(2):
            for i in range(4):
                r = W1 + ((2 * mat + ch) * 4 + i) * 8
                for q in range(2):
                    for h in range(2):
                        e(f"ds_read_b64_tr_b16 v[{r+4*q+2*h}:{r+4*q+2*h+1}], v13 offset:{half*16384 + (128*q + 16*i + 4*h)*64 + 32*ch}")
    w1_dma(P_BWQ, 0); w1_dma(P_BWK, 1)
    e("s_waitcnt vmcnt(16)")
    stamp(e, 8, True)
    w1_read(0, 0)
    e("s_waitcnt lgkmcnt(0)")
    w1_dma(P_BWV, 0)
    e("s_waitcnt vmcnt(16)")
    w1_read(1, 1)
    e("s_waitcnt vmcnt(0)")
    w1_read(2, 0)
    e(f"""s_lshl_b32 s48, s{sW}, 2
v_lshrrev_b32 v1, 4, v0
v_add_u32 v1, s48, v1
v_mul_u32_u24 v1, {5*acc_piece()}, v1
v_and_b32 v14, 15, v0
v_lshl_add_u32 v1, v14, 4, v1
v_lshrrev_b32 v15, 5, v0
v_lshl_add_u32 v14, v15, 4, v14
v_lshrrev_b32 v15, 1, v14
v_mul_u32_u24 v15, 96, v15
v_and_b32 v14, 1, v14
v_lshl_add_u32 v15, v14, 5, v15
v_bfe_u32 v14, v0, 4, 1
v_lshl_add_u32 v15, v14, 4, v15
s_mul_i32 s48, s{sW}, 4608
s_add_u32 s48, s48, {R1}
v_add_u32 v3, s48, v15
s_waitcnt lgkmcnt(0)""")
    make_srd(e, SRD_X, P_WS, None, 0, WS_SIZE)
    e(f"""s_and_b32 s48, s{S_WAVE}, 1
s_mul_i32 s47, s48, 1536
s_add_u32 s54, s47, {PL}
s_mul_i32 s53, s{sW}, 3072
s_sub_u32 s52, s53, s47
s_add_u32 s53, s53, {PL}
s_mul_i32 s49, s{sG}, 12288
s_add_u32 s47, s47, s49
s_add_u32 s47, s47, {WS_PR}
s_lshl_b32 s48, s48, 11
s_lshl_b32 s43, s{S_WG}, 12
s_add_u32 s43, s43, s48
s_lshr_b32 s48, s{S_WAVE}, 1
s_mul_i32 s42, s48, 3072
s_add_u32 s42, s42, {YD}
s_lshl_b32 s48, s48, 10
s_add_u32 s43, s43, s48""")
    wait_start()
    e("s_barrier")
    e("s_barrier")
    e("s_setprio 3\ns_mov_b32 s67, 0x41000000")
    if common.DIAG: e("s_mov_b32 s85, 0")
    stamp(e, 1, True)
    L1, LpA, L1x = e.label("L1"), e.label("LpA"), e.label("L1x")
    assert not SPREAD
    xstore = f"global_store_dwordx4 v15, v[16:19], s[{sKVM}:{sKVM+1}] {LF[XSF]}"
    e("v_lshl_add_u32 v15, v0, 4, s43")
    e(f"{L1}:")
    if not XT: tr(e, 7)
    e(f"{LpA}:")
    tr(e, 0)
    lda = lambda f: "\n".join(f"global_load_dwordx4 v[{G+4*i}:{G+4*i+3}], v1, s[{sACC}:{sACC+1}] offset:{256*i} {f}" for i in (4, 0, 1, 2, 3))
    e(lda(LF[AF]) + f"\n{LpA}_j:")
    if STL == 1: e(xstore)
    if VLATE: e(f"s_lshl_b32 s48, s{sW}, 2\nv_mov_b32 v12, s48\nv_mov_b32 v13, s{sStep}")
    flg = f"ds_write_b32 v12, v13 offset:{FL}" if VLATE else ""
    if VARR < 0: e(flg)
    e(f"s_add_u32 s{sSpin}, s{sSpin}, 1\ns_cmp_gt_u32 s{sSpin}, {SPIN_MAX}\ns_cbranch_scc1 {Lfail}")
    for r in range(0, 24, 2): e(f"v_mov_b64 v[{AC+r}:{AC+r+1}], 0")
    def sm1(c, i):
        w = W1 + (c * 4 + i) * 8
        return f"v_smfmac_f32_16x16x64_bf16 v[{AC+4*c}:{AC+4*c+3}], v[{G+4*i}:{G+4*i+3}], v[{w}:{w+7}], v2"
    def arr(i):
        d3 = G + 4 * i + 3
        e(f"s_waitcnt vmcnt({3-i+(STL == 1)})")
        if i == 3: tr(e, 1)
        if i == VARR: e(flg)
        e(f"v_min_u32 v10, v{d3}, v{G+19 if i == 0 else 10}")
        e(f"v_perm_b32 v{d3}, v{G+16+i//2}, v{d3}, s{sSelO if i & 1 else sSelE}")
    def epi(p):
        a, b = AC + 8 * p, AC + 8 * p + 4
        return [f"v_permlane32_swap_b32 v{a+r}, v{b+r}" for r in range(4)] + [f"v_add_f32 v{a+r}, v{a+r}, v{b+r}" for r in range(4)] + [f"ds_write_b128 v3, v[{a}:{a+3}] offset:{p*1536}"]
    arr(0)
    for c in range(5): e(sm1(c, 0))
    arr(1); e(sm1(5, 0))
    for c in range(3): e(sm1(c, 1))
    arr(2); e(sm1(3, 1))
    e(sm1(0, 2)); arr(3); e(sm1(1, 2))
    e(f"v_cmp_gt_u32 vcc, s67, v10")
    e(sm1(0, 3)); e(f"s_cbranch_vccnz {LpA}_retry"); e(sm1(1, 3))
    for c, i in ((2, 2), (3, 2), (2, 3), (3, 3)): e(sm1(c, i) + "\ns_nop 0")
    f = epi(0) + epi(1) + epi(2)
    for c, i in ((4, 1), (5, 1), (4, 2), (5, 2), (4, 3), (5, 3)):
        e(sm1(c, i)); e(f.pop(0)); e(f.pop(0))
    for x in f: e(x)
    tail.append(f"{LpA}_retry:\ns_nop 7\n" + ("s_add_u32 s85, s85, 1\n" if common.DIAG else "") + lda("sc1") + f"\ns_branch {LpA}_j")
    tr(e, 2)
    e(f"s_setprio {P1B}\ns_waitcnt lgkmcnt(0)\ns_barrier")
    tr(e, 3)
    Lnp = e.label("Lnp")
    e(f"s_cmp_gt_u32 s{S_WAVE}, 1\ns_cbranch_scc1 {Lnp}_o")
    reduce4(e, 4, 5, 18, 24)
    publish_B(e, tail, 24)
    e(f"s_waitcnt vmcnt(0)\n{Lnp}:")
    tail.append(f"""{Lnp}_o:
s_sleep {XW23}
s_lshl_b32 s48, s{S_WG}, 3
s_add_u32 s48, s48, s{S_WAVE}
s_cmp_lg_u32 s48, 2
s_cbranch_scc1 {Lnp}
v_mov_b32 v20, 0
v_mov_b32 v21, s{sStep}
s_mov_b64 exec, 1
global_store_dword v20, v21, s[{P_DBG}:{P_DBG+1}] offset:{DBG_PROG} sc1
s_mov_b64 exec, -1
s_branch {Lnp}""")
    PXr = [40 + 4 * h for h in range(4)]; PMr = [56 + 2 * h for h in range(4)]; XA = 12; YB = [32, 36, 24, 28]
    ldp = "v_lshlrev_b32 v18, 4, v0\nv_lshlrev_b32 v19, 3, v0\n" + "\n".join(
        f"buffer_load_dwordx4 v[{PXr[h]}:{PXr[h]+3}], v18, s[{SRD_X}:{SRD_X+3}], s{44+h//2} offen offset:{(h%2)*3072} sc1\n"
        f"buffer_load_dwordx2 v[{PMr[h]}:{PMr[h]+1}], v19, s[{SRD_X}:{SRD_X+3}], s{40+h//2} offen offset:{(h%2)*3072} sc1" for h in range(4))
    tr_out(e)
    e(f"""{Lnp}_e:
s_xor_b32 s42, s42, {YD ^ YD2}
s_add_u32 s44, s{sStep}, 3
s_and_b32 s44, s44, 3
s_mul_i32 s44, s44, {PR_SLOT}
s_add_u32 s44, s44, s47
s_add_u32 s45, s44, 6144
s_add_u32 s40, s44, 1024
s_add_u32 s41, s45, 1024
v_lshl_add_u32 v20, v0, 4, s42
v_add_u32 v21, 8, v20""")
    e(rn_setup(23, 24))
    if PDMA:
        e(f"s_add_u32 s55, s44, s52\ns_mov_b32 m0, s53\nv_lshlrev_b32 v14, 4, v0\nv_lshl_add_u32 v22, v0, 4, s54\nv_lshl_add_u32 v25, v0, 3, s54\ns_sleep {XW}")
        for x in range(3): e(f"buffer_load_dwordx4 v14, s[{SRD_X}:{SRD_X+3}], s55 offen offset:{x*1024} sc1 lds")
        if STL == 2 and not SFLAG: e(f"s_sleep {XS2}\n" + xstore)
        if STL == 2 and SFLAG:
            e(f"""s_cmp_eq_u32 s{sStep}, 64
s_cbranch_scc1 {Lnp}_g
v_and_b32 v12, 3, v0
v_lshlrev_b32 v12, 2, v12
{Lnp}_w:
s_sleep {FSL}
ds_read_b32 v13, v12 offset:{RL + 256}
s_add_u32 s{sSpin}, s{sSpin}, 1
s_cmp_gt_u32 s{sSpin}, {SPIN_MAX}
s_cbranch_scc1 {Lfail}
s_waitcnt lgkmcnt(0)
v_cmp_ge_u32 vcc, s{sStep}, v13
s_cbranch_vccnz {Lnp}_w
{Lnp}_g:
{xstore}""")
        e(f"s_waitcnt vmcnt({int(STL == 2)})")
    else: e(f"s_sleep {XW}\n{ldp}")
    e(f"s_add_u32 s{sKVM}, s{sKVM}, 524288\ns_addc_u32 s{sKVM+1}, s{sKVM+1}, 0\ns_setprio 3")
    e("s_barrier")
    tr(e, 4)
    reduce4n(e, 23, 24, 12, 28)
    e(f"global_atomic_pk_add_bf16 v10, v9, v12, s[{sACCN}:{sACCN+1}] sc0")
    tr(e, 5)
    rd = [(h, k) for h in (0, 2) for k in range(6)]
    def rdy(i):
        h, k = rd[i]; b = YB[i % 4]
        if k < 4: return f"ds_read_b128 v[{b}:{b+3}], v20 offset:{(h + k//2)*6144 + (k%2)*1024}"
        return f"ds_read2st64_b64 v[{b}:{b+3}], v{20 + k - 4} offset0:{12*h + 4} offset1:{12*h + 16}"
    e(f"s_cmp_eq_u32 s{sStep}, 0\ns_cbranch_scc1 {Lnp}_q")
    if PDMA:
        for h in range(4): e(f"ds_read_b128 v[{PXr[h]}:{PXr[h]+3}], v22 offset:{h*3072}")
        for h in (0, 2): e(f"ds_read2st64_b64 v[{PMr[h]}:{PMr[h]+3}], v25 offset0:{6*h + 2} offset1:{6*h + 8}")
    for i in range(4): e(rdy(i))
    e(f"""s_waitcnt {'lgkmcnt(4)' if PDMA else 'vmcnt(1)'}
{Lnp}_c:
v_max3_u32 v13, v43, v47, v51
v_max3_u32 v14, v55, v57, v59
v_max3_u32 v13, v61, v63, v13
v_max_u32 v13, v13, v14
v_cmp_eq_u32 vcc, -1, v13
s_cbranch_vccnz {Lnp}_r""")
    tail.append(f"{Lnp}_r:\n{ldp}\ns_add_u32 s{sSpin}, s{sSpin}, 1\ns_cmp_gt_u32 s{sSpin}, {SPIN_MAX}\ns_cbranch_scc1 {Lfail}\ns_waitcnt vmcnt(0)\ns_branch {Lnp}_c")
    nxt = 4
    for i, (h, k) in enumerate(rd):
        b = YB[i % 4]; a = XA + 4 * (k % 2); pr = PXr[h + k // 2] if k < 4 else PMr[h]
        e(f"s_waitcnt lgkmcnt({nxt - 1 - i})")
        e(f"v_mfma_f32_16x16x32_bf16 v[{a}:{a+3}], v[{b}:{b+3}], v[{pr}:{pr+3}], " + ("0" if h == 0 and k < 2 else f"v[{a}:{a+3}]"))
        if nxt < len(rd): e(rdy(nxt)); nxt += 1
    for x in (3, 2, 0, 1): e(f"v_cvt_pk_bf16_f32 v{16+x}, v{XA+2*x}, v{XA+2*x+1}")
    e(f"v_permlane16_swap_b32 v16, v18\nv_permlane16_swap_b32 v17, v19\nv_min_u32 v19, -2, v19\n{Lnp}_q:\nv_lshl_add_u32 v15, v0, 4, s43")
    if not STL: e(xstore)
    if XT: tr(e, 7)
    e(f"s_cmp_ge_u32 s{sStep}, 63\ns_cbranch_scc1 {L1x}")
    advance(e)
    e(f"s_waitcnt vmcnt({0 if STL else 1})")
    tr(e, 6)
    Lr = e.label("Lrank")
    e(f"""v_and_b32 v10, 0xffff0000, v10
v_cvt_u32_f32 v10, v10
v_readlane_b32 s48, v10, 3
s_lshl_b32 s48, s48, 2
s_lshr_b32 s48, {hex(RTAB)}, s48
s_and_b32 s48, s48, 15
{Lr}:
s_cbranch_scc0 {L1}
s_sleep 1
s_sub_u32 s48, s48, 1
s_cmp_lg_u32 s48, 0
s_branch {Lr}
{L1x}:
{xstore if STL else ''}
s_setprio 0
s_add_u32 s{sStep}, s{sStep}, 1
s_cmp_eq_u32 s{sStep}, 64
s_cbranch_scc1 {Lnp}_e
s_branch {L_done}""")

    e(f"{LS2}:")
    T, VV, S0, S1_, SM, PX, PM, YM, O, LS, YX, KX, VX, WO = 28, 44, 52, 56, 60, 64, 68, 72, 88, 104, 108, 124, 156, 188
    ON16, ON32 = 22, 24
    DQ, NEG = 252, 253
    e(f"""s_lshl_b32 s48, s{sG}, 2
s_add_u32 s48, s48, s{sW}
s_lshl_b32 s55, s48, 13
s_lshl_b32 s48, s48, 18
s_lshl_b32 s49, s{sM}, 7
s_add_u32 s52, s48, s49
v_lshrrev_b32 v12, 3, v0
v_lshlrev_b32 v12, 11, v12
v_and_b32 v13, 7, v0
v_lshl_add_u32 v12, v13, 4, v12
s_lshl_b32 s53, s{sW}, 13
s_add_u32 s53, s53, 131072
v_lshrrev_b32 v13, 4, v0
v_lshlrev_b32 v13, 3, v13
v_bfe_u32 v14, v0, 2, 2
v_add_u32 v13, v13, v14
v_lshlrev_b32 v13, 7, v13
v_and_b32 v14, 3, v0
v_lshl_add_u32 v13, v14, 3, v13
v_add_u32 v13, s53, v13""")
    make_srd(e, SRD_W, P_BWO, 52, 0, 8388608)
    for rnd in range(2):
        L = e.label("Lwo")
        e(f"""s_mov_b32 m0, s53
s_mov_b32 s54, {rnd*64*2048}
{L}:
buffer_load_dwordx4 v12, s[{SRD_W}:{SRD_W+3}], s54 offen lds
s_add_u32 s54, s54, {8*2048}
s_add_u32 m0, m0, 1024
s_cmp_lt_u32 s54, {(rnd+1)*64*2048}
s_cbranch_scc1 {L}""")
        e("s_waitcnt vmcnt(0)")
        for ct in range(4):
            for jj in range(2):
                r = WO + (ct * 4 + rnd * 2 + jj) * 4
                for h in range(2):
                    e(f"ds_read_b64_tr_b16 v[{r+2*h}:{r+2*h+1}], v13 offset:{(32*jj + 4*h)*128 + 32*ct}")
        e("s_waitcnt lgkmcnt(0)")
    e(f"""s_mul_i32 s48, s{sW}, 6144
v_lshlrev_b32 v14, 4, v0
v_add_u32 v1, s48, v14
v_add_u32 v20, s55, v14
s_lshl_b32 s49, s{sM}, 9
s_add_u32 s55, s55, s49
s_add_u32 s55, s55, {2*KVSTEP}
v_and_b32 v15, 15, v0
v_lshrrev_b32 v16, 2, v15
v_mul_u32_u24 v16, 160, v16
v_and_b32 v15, 3, v15
v_lshl_add_u32 v16, v15, 5, v16
v_bfe_u32 v15, v0, 4, 1
v_lshl_add_u32 v16, v15, 4, v16
s_mul_i32 s48, s{sW}, 2560
s_add_u32 s48, s48, {R2}
v_add_u32 v3, s48, v16
v_mov_b32 v{ON32}, 0x3f803f80
v_mov_b32 v{ON32+1}, 0x3f803f80
v_mov_b32 v{ON32+2}, 0x3f803f80
v_mov_b32 v{ON32+3}, 0x3f803f80
v_cmp_gt_u32 vcc, 32, v0
v_cndmask_b32 v{ON16}, 0, v{ON32}, vcc
v_cndmask_b32 v{ON16+1}, 0, v{ON32}, vcc""")
    e(f"""v_and_b32 v15, 15, v0
v_lshrrev_b32 v16, 4, v0
s_mul_i32 s48, s{sW}, 6144
s_add_u32 s48, s48, {YD}
v_lshl_add_u32 v21, v0, 4, s48
s_and_b32 s48, s{sM}, 3
s_lshl_b32 s49, s48, 3
v_lshlrev_b32 v16, 2, v16
v_sub_u32 v15, v15, v16
v_add_u32 v15, s49, v15
s_mov_b32 s40, 0xff00ff00
s_mov_b32 s41, 0xff00ff00
v_cndmask_b32 v{DQ}, v15, 64, s[40:41]
v_mov_b32 v{NEG}, 0xf149f2ca
s_lshr_b32 s49, s48, 1
s_and_b32 s48, s48, 1
s_lshl_b32 s48, s48, 7
s_lshl_b32 s{sQ}, s49, 12
s_add_u32 s{sQ}, s{sQ}, s48
s_sub_u32 s55, s55, s{sQ}
s_mul_i32 s42, s{sW}, 3072
s_mul_i32 s43, s{sG}, 12288
s_add_u32 s42, s42, s43
s_mul_i32 s43, s49, 1536
s_add_u32 s42, s42, s43
s_add_u32 s43, s42, s48
s_lshr_b32 s48, s48, 1
s_add_u32 s44, s42, s48
s_add_u32 s44, s44, 1024
s_lshr_b32 s45, s{sM}, 2""")
    make_srd(e, SRD_X, P_WS, None, WS_QB, WS_SIZE)
    e(rn_setup(254, 255))
    wait_start()
    e("s_barrier")
    e(f"""s_mul_i32 s48, s{sW}, 2560
s_add_u32 s48, s48, {R2+128}
v_mov_b32 v12, s48
v_mov_b32 v14, 0x3e800000
v_mov_b32 v15, 0
ds_write_b64 v12, v[14:15]""")
    kv_wait(e, Lfail, 0)
    e(f"""s_waitcnt lgkmcnt(0)
s_barrier
s_setprio 2
v_mov_b32 v14, s{sC}
v_cmp_gt_u32 vcc, 32, v0
v_cndmask_b32 v14, v14, 1.0, vcc
v_and_b32 v15, 15, v0
s_lshl_b32 s48, s{sW}, 2
s_add_u32 s48, s48, {RL}
v_lshl_add_u32 v15, v15, 4, s48
v_mov_b32 v16, 0
ds_write_b32 v15, v16 offset:256
v_mov_b32 v16, 1
v_add_u32 v18, 4096, v1
v_add_u32 v19, 4096, v20
s_cmp_eq_u32 s45, s{sW}
s_cselect_b32 s52, 0x00ff00ff, 0
s_mov_b32 s53, s52
s_or_b64 vcc, s[52:53], s[40:41]
v_mov_b32 v17, 0x3c000000
v_cndmask_b32 v17, -1, v17, vcc
s_mov_b32 s46, 0x21800000""")
    def kv_loads(reg, base):
        if NOKV & (1 if reg == KX else 2): return ["s_nop 0"] * 8
        return [f"global_load_dwordx4 v[{reg+4*x}:{reg+4*x+3}], v{20 if x < 4 else 19}, s[{base}:{base+1}] offset:{(x%4)*1024} {LF[KVF]}" for x in range(8)]
    def yacc(ct, tt): return T + (ct * 2 + tt) * 4
    def yx_mf():
        return [f"v_mfma_f32_16x16x32_bf16 v[{yacc(ct,tt)}:{yacc(ct,tt)+3}], v[{VX+(tt*4+ks)*4}:{VX+(tt*4+ks)*4+3}], v[{WO+(ct*4+ks)*4}:{WO+(ct*4+ks)*4+3}], " + ("0" if ks == 0 else f"v[{yacc(ct,tt)}:{yacc(ct,tt)+3}]")
                for ks in range(4) for tt in range(2) for ct in range(4)]
    def yx_cvt():
        return [f"v_cvt_pk_bf16_f32 v{YX+ct*4+x}, v{yacc(ct,0)+2*x}, v{yacc(ct,0)+2*x+1}" for ct in range(4) for x in range(4)] + [f"v_mov_b64 v[{YM+r}:{YM+r+1}], 0" for r in range(0, 16, 2)]
    def q_loads():
        L = [f"buffer_load_dwordx4 v[{O+4*x}:{O+4*x+3}], v20, s[{SRD_X}:{SRD_X+3}], s{sQ} offen offset:{x*1024} {LF[KVF]}" for x in range(4)]
        return ("s_mov_b64 exec, s[52:53]\n" if QONE else "s_not_b64 exec, s[40:41]\n") + "\n".join(L) + f"\ns_mov_b64 exec, -1\ns_add_u32 s{sQ}, s{sQ}, {KVSTEP}"
    def mask_init():
        m = ["vcc", "s[48:49]", "s[50:51]", "s[54:55]"]
        return [x for h in range(2) for x in [f"v_cmp_gt_i32 {m[r]}, {r + 16*h}, v{DQ}" for r in range(4)] + [f"v_cndmask_b32 v{S0+4*h+r}, 0, v{NEG}, {m[r]}" for r in range(4)]]
    kvadv = f"""s_add_u32 s{sV}, s{sV}, {KVSTEP}
s_addc_u32 s{sV+1}, s{sV+1}, 0
s_add_u32 s{sK}, s{sK}, {KVSTEP}
s_addc_u32 s{sK+1}, s{sK+1}, 0"""
    E = T
    def xpart(ld):
        Lp, Lv = e.label("Lxp"), e.label("Lv")
        e(f"s_cmp_eq_u32 s45, s{sW}\ns_cbranch_scc1 {Lp}")
        def pst(f): return f"""buffer_store_dwordx4 v[{PX}:{PX+3}], v12, s[{SRD_X}:{SRD_X+3}], s48 offen {f}
buffer_store_dwordx2 v[{PM}:{PM+1}], v13, s[{SRD_X}:{SRD_X+3}], s48 offen {f}
buffer_store_dwordx4 v[{SM}:{SM+3}], v12, s[{SRD_X}:{SRD_X+3}], s49 offen {f}
buffer_store_dwordx2 v[{SM}:{SM+1}], v13, s[{SRD_X}:{SRD_X+3}], s49 offen {f}
s_mov_b64 exec, -1
{f's_cmp_lg_u32 s{sStep}, 63' if PBL else ''}
{f's_cbranch_scc1 {Lv}_t' if PBL else ''}
s_branch {Lv}"""
        tail.append(f"""{Lp}:
""" + "\n".join(f"v_mul_f32 v{r}, v{r}, v{LS+1}" for r in list(range(E + 8, E + 12)) + list(range(E, E + 8))) + f"""
v_cvt_pk_bf16_f32 v{PM}, v{E+8}, v{E+9}
v_cvt_pk_bf16_f32 v{PM+1}, v{E+10}, v{E+11}
v_cvt_pk_bf16_f32 v{PX}, v{E}, v{E+1}
v_mov_b32 v{PM+2}, v{PM}
v_mov_b32 v{PM+3}, v{PM+1}
v_cvt_pk_bf16_f32 v{PX+1}, v{E+2}, v{E+3}
v_cvt_pk_bf16_f32 v{PX+2}, v{E+4}, v{E+5}
v_permlane32_swap_b32 v{PM}, v{PM+2}
v_permlane32_swap_b32 v{PM+1}, v{PM+3}
v_cvt_pk_bf16_f32 v{PX+3}, v{E+6}, v{E+7}
{f's_cmp_lg_u32 s{sStep}, 63' if PBL else ''}
{f's_cbranch_scc1 {Lv}' if PBL else ''}
{Lp}_t:
v_lshl_add_u32 v12, v0, 4, s43
v_lshl_add_u32 v13, v0, 3, s44
s_and_b32 s48, s{sStep}, 3
s_mul_i32 s48, s48, {PR_SLOT}
s_add_u32 s48, s48, {WS_PR}
s_add_u32 s49, s{sStep}, 1
s_and_b32 s49, s49, 3
s_mul_i32 s49, s49, {PR_SLOT}
s_add_u32 s49, s49, {WS_PR}
v_mov_b64 v[{SM}:{SM+1}], -1
v_mov_b64 v[{SM+2}:{SM+3}], -1
s_not_b64 exec, s[40:41]
s_cmp_lg_u32 s{sMode}, 0
s_cbranch_scc1 {Lp}_s
{pst('')}
{Lp}_s:
{pst('sc1')}""")
        e(f"{Lv}:")
        if XT == 1: tr(e, 0)
        ld = list(ld)
        dump = [f"ds_write_b128 v21, v[{YX+4*x}:{YX+4*x+3}] offset:{(x//2)*3072 + (x%2)*1024}" for x in range(4)] + [f"ds_write_b128 v21, v[{YM+4*x}:{YM+4*x+3}] offset:{2048+3072*x}" for x in range(2)]
        e(f"s_cmp_eq_u32 s{sStep}, 63\ns_cbranch_scc1 {L2x}")
        tail.append(f"{L2x}:\n" + "\n".join(dump) + f"\ns_waitcnt lgkmcnt(0)\ns_barrier\ns_setprio 0\ns_branch {L_done}")
        if KVE == 1: kv_wait(e, Lfail, 1)
        v = kv_loads(VX, sV)
        vv = [(8 * ks + 4 * tt + 3, v[tt * 4 + ks]) for ks in range(4) for tt in range(2)]
        ld = [(0, l) for l in ld] + vv[:8 - VLATE]
        yc = yx_cvt()
        for i, m in enumerate(yx_mf() + yc[16:] + yc[:16] + mask_init()):
            e(m)
            if i >= KLATE and (i - KLATE) % (XLD if i < 32 else 3 * XLD) == 0 and ld and ld[0][0] <= i: e(ld.pop(0)[1])
            if i % 4 == 2 and i > 4 and dump: e(dump.pop(0))
            if XT == 1 and i == 31: tr(e, 1)
            if KVE > 1 and i == KVE: assert not ld; kv_wait(e, Lfail, 1)
        for l in ld: e(l[1])
        if KVE == 0: kv_wait(e, Lfail, 1)
        kv_wait(e, Lfail, 2)
        if XT == 1: tr(e, 2)
        if not VLATE: e("s_waitcnt lgkmcnt(0)")
        if VLATE:
            Lf = e.label("Lfl")
            e(f"""v_and_b32 v12, 3, v0
v_lshlrev_b32 v12, 2, v12
{Lf}:
{f's_sleep {VSL}' if VSL else ''}
ds_read_b32 v13, v12 offset:{FL}
s_add_u32 s{sSpin}, s{sSpin}, 1
s_cmp_gt_u32 s{sSpin}, {SPIN_MAX}
s_cbranch_scc1 {Lfail}
s_waitcnt lgkmcnt(0)
v_cmp_eq_u32 vcc, s{sStep}, v13
s_cbranch_vccnz {Lf}""")
            if PBL: e(f"s_cmp_eq_u32 s45, s{sW}\ns_cbranch_scc1 {Lp}_t\n{Lv}_t:")
            if QL: e(q_loads())
            for l in vv[8 - VLATE:]: e(l[1])
        e("v_add_u32 v16, 1, v16")
        e(kvadv)
        e(f"v_xor_b32 v21, {YD ^ YD2}, v21")
    for l in kv_loads(VX, sV): e(l)
    for l in kv_loads(KX, sK): e(l)
    e(q_loads())
    e("s_waitcnt vmcnt(12) lgkmcnt(0)")
    for x in yx_mf() + yx_cvt() + mask_init(): e(x)
    e(kvadv)
    for l in kv_loads(VX, sV): e(l)
    e(f"s_add_u32 s{sV}, s{sV}, {KVSTEP}\ns_addc_u32 s{sV+1}, s{sV+1}, 0")
    stamp(e, 8, True)
    L2, LpB, L2x = e.label("L2"), e.label("LpB"), e.label("L2x")
    e(f"{L2}:\ns_barrier")
    tr(e, 0)
    reduce4(e, 4, 5, 18, T, 14)
    publish_B(e, tail, T)
    tr(e, 1)
    if DELAY_B >= 0:
        for _ in range(DELAY_B): e("s_nop 7")
    elif ACK_B: e("s_waitcnt vmcnt(0)")
    tr(e, 2)
    e(f"{LpB}:")
    tr(e, 7)
    pieces = [(T + 4 * ks, 1, 1024 * ks) for ks in range(4)] + [(VV + 4 * u, 18, 1024 * u) for u in range(2)]
    ldB = [f"global_load_dwordx4 v[{r}:{r+3}], v{a}, s[{sB}:{sB+1}] offset:{o} sc1" for r, a, o in pieces]
    if LATE_V:
        for l in ldB[:4]: e(l)
        e("s_waitcnt vmcnt(3)")
        for l in ldB[4:]: e(l)
    else:
        for l in ldB: e(l)
    def chk(i, mid=""):
        e(f"{LpB}_c{i}:\ns_waitcnt vmcnt({5-i})\nv_cmp_eq_u32 vcc, -1, v{pieces[i][0]+3}\n{mid}\ns_cbranch_vccnz {LpB}_r{i}")
        rl = ldB[i:] if not RSEL else [ldB[i]] + ([ldB[4 + i // 2]] if i < 4 else [])
        tail.append(f"{LpB}_r{i}:\n" + "\n".join(rl) + f"\ns_add_u32 s{sSpin}, s{sSpin}, 1\ns_cmp_gt_u32 s{sSpin}, {SPIN_MAX}\ns_cbranch_scc1 {Lfail}\n" + ("s_waitcnt vmcnt(0)\n" if RSEL else "") + f"s_branch {LpB}_c{i}")
    def sc(i):
        return [f"v_mfma_f32_16x16x32_bf16 v[{a}:{a+3}], v[{kreg}:{kreg+3}], v[{O+4*i}:{O+4*i+3}], " + ("0" if i == 0 and a == SM else f"v[{a}:{a+3}]")
                for (a, kreg) in ((S0, KX + i * 4), (S1_, KX + (4 + i) * 4), (SM, T + 4 * i))]
    cn = lambda i: [f"v_cndmask_b32 v{O+4*i+r}, v{O+4*i+r}, v{T+4*i+r}, s[40:41]" for r in range(4)]
    if BPIPE:
        chk(0, "\n".join(cn(0)))
        for i in range(4):
            m = sc(i)
            e(m[0])
            if i < 3:
                c = cn(i + 1)
                chk(i + 1, c[0]); e(m[1]); e(c[1]); e(c[2]); e(c[3]); e(m[2])
            else:
                e(m[1]); e(m[2])
    else:
        for i in range(4):
            chk(i, "\n".join(cn(i)))
            for m in sc(i): e(m)
    tr(e, 3)
    ym = [f"v_smfmac_f32_16x16x64_bf16 v[{YM+4*ct}:{YM+4*ct+3}], v[{VV+4*u}:{VV+4*u+3}], v[{WO+(ct*4+2*u)*4}:{WO+(ct*4+2*u)*4+7}], v2" for u in range(2) for ct in range(4)]
    vl = kv_loads(KX, sK)[:KEARLY]
    def V():
        if vl: e(vl.pop(0))
    ex = [f"v_exp_f32 v{E+i}, v{S0+i}" for i in range(12)]
    cp = [f"v_cvt_pk_bf16_f32 v{PX+x}, v{E+2*x}, v{E+2*x+1}" for x in range(6)]
    dup = [f"v_mov_b32 v{PM+2}, v{PM}", f"v_mov_b32 v{PM+3}, v{PM+1}", f"v_permlane32_swap_b32 v{PM}, v{PM+2}", f"v_permlane32_swap_b32 v{PM+1}, v{PM+3}"]
    cy = [f"v_cvt_pk_bf16_f32 v{YM+x}, v{YM+2*x}, v{YM+2*x+1}" for x in range(8)]
    ox = [f"v_mfma_f32_16x16x32_bf16 v[{O+4*ct}:{O+4*ct+3}], v[{PX}:{PX+3}], v[{YX+4*ct}:{YX+4*ct+3}], 0" for ct in range(4)]
    om = [f"v_mfma_f32_16x16x16_bf16 v[{O+4*ct}:{O+4*ct+3}], v[{PM}:{PM+1}], v[{YM+2*ct}:{YM+2*ct+1}], v[{O+4*ct}:{O+4*ct+3}]" for ct in range(4)]
    lx = f"v_mfma_f32_16x16x32_bf16 v[{LS}:{LS+3}], v[{ON32}:{ON32+3}], v[{PX}:{PX+3}], 0"
    lm = f"v_mfma_f32_16x16x16_bf16 v[{LS}:{LS+3}], v[{ON16}:{ON16+1}], v[{PM}:{PM+1}], v[{LS}:{LS+3}]"
    wr = [f"ds_write_b128 v3, v[{O+4*ct}:{O+4*ct+3}] offset:{ct*640}" for ct in range(4)]
    chk(4)
    if XT == 2: tr(e, 0)
    e(ym[0]); e(ym[1]); e(ex[0]); e(ym[2]); e(ex[1]); e(ym[3]); e(ex[2])
    chk(5, ex[3])
    if XT == 2: tr(e, 1)
    Lfb = e.label("Lfb")
    seq = [ym[4], ex[4], ym[5], ex[5], ym[6], ex[6], ym[7], ex[7], cp[0], cp[1], cp[2], cp[3], ex[8],
           ox[0], ex[9], ox[1], ex[10], ox[2], ex[11], ox[3], cp[4], cp[5],
           lx, dup[0], dup[1], cy[0], cy[1], dup[2], dup[3], cy[2], cy[3],
           om[0], cy[4], cy[5], lm, cy[6], cy[7], om[1], om[2], om[3]]
    for i, x in enumerate(seq):
        e(x)
        if KPOS >> i & 1: V()
        if SFLAG == i + 1: e("ds_write_b32 v15, v16 offset:256")
    if True:
        e(f"v_rcp_f32 v{LS+1}, v{LS}\ns_mov_b32 exec_lo, 0")
        for x in wr: e(x)
        e(f"""s_mov_b32 exec_lo, -1
ds_write_b32 v15, v{LS+1}
v_subrev_u32 v10, s46, v{LS}
v_cmp_lt_u32 vcc, v17, v10""")
    while vl: V()
    e(f"s_cbranch_vccn{'z' if not FORCE_FB else 'z'} {Lfb}" if not FORCE_FB else f"s_branch {Lfb}")
    e(f"{Lfb}_b:")
    fb = [f"""{Lfb}:
v_max3_f32 v12, v{S0}, v{S0+1}, v{S0+2}
v_max3_f32 v13, v{S0+3}, v{S1_}, v{S1_+1}
v_max3_f32 v12, v{S1_+2}, v{S1_+3}, v12
v_max_f32 v12, v12, v13
s_mov_b32 exec_hi, 0
v_max3_f32 v12, v{SM}, v{SM+1}, v12
v_max3_f32 v12, v{SM+2}, v{SM+3}, v12
s_mov_b32 exec_hi, -1
v_mov_b32 v13, v12
v_permlane16_swap_b32 v12, v13
v_max_f32 v12, v12, v13
v_mov_b32 v13, v12
v_permlane32_swap_b32 v12, v13
v_max_f32 v12, v12, v13"""]
    fb += [f"v_sub_f32 v{S0+i}, v{S0+i}, v12" for i in range(12)] + ex + cp + dup + [lx] + ox + [lm] + om
    fb += [f"v_rcp_f32 v{LS+1}, v{LS}\ns_mov_b32 exec_lo, 0"] + wr + [f"s_mov_b32 exec_lo, -1\nds_write_b32 v15, v{LS+1}\ns_branch {Lfb}_b"]
    tail.append("\n".join(fb))
    tr(e, 4)
    e("s_waitcnt lgkmcnt(0)\ns_barrier")
    tr(e, 5)
    Lna = e.label("Lna")
    e(f"s_cmp_lg_u32 s{S_WAVE}, 4\ns_cbranch_scc1 {Lna}")
    reduce4n(e, 254, 255, VV, S0)
    e(f"global_atomic_pk_add_bf16 v9, v{VV}, s[{sACCN}:{sACCN+1}]\n{Lna}:")
    xpart(kv_loads(KX, sK)[KEARLY:] + ([] if QL else [q_loads()]))
    tr(e, 6)
    tr_out(e)
    advance(e)
    e(f"s_branch {L2}")
    for t in tail: e(t)
    e(f"""{Lfail}:
s_mov_b64 exec, -1
v_mov_b32 v12, 0
v_mov_b32 v13, 1
global_store_dword v12, v13, s[{P_DBG}:{P_DBG+1}] offset:{DBG_FAIL}
s_endpgm""")

import struct
def f32bits(x): return struct.unpack("<I", struct.pack("<f", x))[0]
```

```python
import common
from common import *
from jobs import *
import chain as ch
from chain import chain

C_KV = 128
C_KVA = 68
C_FIN = 72
C_OA = 192
MAP = 1
FINE = 0
SPIN = 79

def signal(e, off, s_idx=None, val=1):
    L = e.label("Lsig")
    e(f"s_waitcnt vmcnt(0)\ns_barrier\ns_cmp_lg_u32 s{S_WAVE}, 0\ns_cbranch_scc1 {L}")
    if s_idx is None: e("v_mov_b32 v2, 0")
    else: e(f"s_lshl_b32 s48, s{s_idx}, 2\nv_mov_b32 v2, s48")
    e(f"""v_mov_b32 v3, {val}
s_mov_b64 exec, 1
global_atomic_add v2, v3, s[{P_DBG}:{P_DBG+1}] offset:{off}
s_mov_b64 exec, -1
{L}:""")

def poll(e, Lfail, off, s_idx, target, shift=0, mask=None, spin=SPIN, t=2, slp=8):
    L = e.label("Lpoll")
    if s_idx is None: e(f"v_mov_b32 v{t}, 0")
    else: e(f"s_lshl_b32 s48, s{s_idx}, 2\nv_mov_b32 v{t}, s48")
    e(f"""{L}:
global_load_dword v{t+1}, v{t}, s[{P_DBG}:{P_DBG+1}] offset:{off} sc1
s_add_u32 s{spin}, s{spin}, 1
s_cmp_gt_u32 s{spin}, {ch.SPIN_MAX}
s_cbranch_scc1 {Lfail}
s_waitcnt vmcnt(0)
v_readfirstlane_b32 s48, v{t+1}""")
    if shift: e(f"s_lshr_b32 s48, s48, {shift}")
    if mask: e(f"s_and_b32 s48, s48, {mask}")
    Lok = e.label("Lok")
    e(f"s_cmp_ge_u32 s48, {target}\ns_cbranch_scc1 {Lok}\ns_sleep {slp}\ns_branch {L}\n{Lok}:")

def wait(e, Lfail, conds):
    L = e.label("Lwt")
    e(f"s_cmp_lg_u32 s{S_WAVE}, 0\ns_cbranch_scc1 {L}")
    for c in conds: poll(e, Lfail, *c)
    e(f"{L}:\ns_barrier")

KSL = 3
WPF = 1
EXP = 0
PSL = 20
def kv_wait(e, Lfail, phase):
    L = e.label("Lkvw")
    if phase == 0:
        e(f"s_cmp_lg_u32 s{S_WAVE}, 4\ns_cbranch_scc1 {L}\ns_mov_b32 s49, 0")
        poll(e, Lfail, C_KV, 49, 96, spin=ch.sSpin, t=12, slp=KSL)
    elif phase == 1:
        e(f"""s_add_u32 s63, s{ch.sStep}, {2 if ch.VLATE == 8 else 3}
s_and_b32 s63, s63, 63
s_and_b32 s48, s63, 3
s_cbranch_scc1 {L}
v_mov_b32 v10, s63
global_load_dword v10, v10, s[{P_DBG}:{P_DBG+1}] offset:{C_KV} sc1""")
    else:
        e(f"""s_and_b32 s48, s63, 3
s_cbranch_scc1 {L}
s_waitcnt vmcnt({20 - ch.KEARLY - ch.VLATE - 4 * ch.QL if ch.KVE == 1 else 0})
v_readfirstlane_b32 s48, v10
s_cmp_ge_u32 s48, 96
s_cbranch_scc1 {L}
s_lshr_b32 s49, s63, 2""")
        poll(e, Lfail, C_KV, 49, 96, spin=ch.sSpin, t=12, slp=4)
    e(f"{L}:")

def sig_hook(off, s_idx, val, n=1):
    def h(e):
        L = e.label("Lsig")
        e(f"""s_cmp_lg_u32 s{S_WAVE}, 0
s_cbranch_scc1 {L}
s_lshl_b32 s58, s{s_idx}, {1 + n}
v_lshl_add_u32 v{EA}, v0, 2, s58
v_mov_b32 v{EA+1}, {val}
s_mov_b64 exec, {2*n - 1}
global_atomic_add v{EA}, v{EA+1}, s[{P_DBG}:{P_DBG+1}] offset:{off}
s_mov_b64 exec, -1
{L}:""")
    return h

CODE_KB = 40
SCHED = 2
J_END, J_G128, J_G256, J_AKV, J_ATT, J_AOUT, J_G64, J_SENT, J_PF = range(9)
PFJ = 0
PF0 = 8
H2G = 8
def schedule():
    T = [[] for _ in range(128)]
    def g256(blocks):
        return [[(J_G256, b, 2 * (12 * xq + c)) for b in blocks for c in range(12)] for xq in range(4)]
    for xq in range(4):
        W = lambda j: T[xq * 32 + j]
        c0 = 24 * xq
        H1, H2 = list(range(16)), list(range(16, 32))
        if SCHED == 0:
            P1, P2, P3 = range(0, 8), range(8, 16), range(16, 32)
            for j in range(24): W(8 + j).append((J_G128, 0, c0 + j))
            for j in P1: W(j).append((J_G256, 1, c0 + 2 * j))
            for j in P2: W(j).append((J_G128, 1, c0 + 16 + j - 8))
            ng = 16
        elif SCHED == 2:
            for r in range(2):
                for j in range(24): W(8 + j).append((J_G64, r, c0 + j))
            if PFJ:
                for j in range(24): W(j // 3).append((J_PF, (8 + j) & 15, c0 + j))
            for j in range(8): W(j).append((J_G256, 1, c0 + 2 * j))
            for j in H2: W(j).append((J_G64, 2 + (j & 1), c0 + 16 + (j - 16) // 2))
            ng = H2G
            H1 = H1[8:] + H1[:8]
        else:
            for j in range(24): W(8 + j).append((J_G64, 0, c0 + j))
            for j in range(8): W(j).append((J_G64, 1, c0 + j))
            for j in H2: W(j).append((J_G64, 1, c0 + j - 8))
            for j in H1: W(j).append((J_G128, 1, c0 + j))
            for j in H2: W(j).append((J_G64, 2 + (j & 1), c0 + 16 + (j - 16) // 2))
            ng = H2G
        for j in H2: W(j).append((J_AKV, 16 * xq + j - 16, 0))
        rest = g256(range(2, 8))[xq]
        first = H1 + H2[16 - ng:] if SCHED else H2
        assert SCHED == 2 and ng == 8
        for i, j in enumerate(H1[:8] + H2[8:]): W(j).append((J_SENT, 16 * xq + i, 0))
        for j in first: W(j).append(rest.pop(0))
        k = 0
        while rest:
            W(H1[k % 16]).append(rest.pop(0)); k += 1
        free = H1[k % 16:] if k % 16 else []
        units = [(J_ATT, 4 * xq + m, n) for m in range(4) for n in range(8)]
        order = H2 + free + H2[:16 - len(free)]
        for j, u in zip(order, units): W(j).append(u)
        outs = [(J_AOUT, 4 * xq + m, n) for m in range(4) for n in range(4)]
        order = H2[16 - len(free):] + H1[:16 - len(free)]
        for j, u in zip(order, outs): W(j).append(u)
    if EXP == 3: T = [[x for x in jl if x[0] not in (J_ATT, J_AOUT)] for jl in T]
    return T

def k_fused(e):
    e("s_cmp_ge_u32 s2, 256\ns_cbranch_scc1 Lend")
    e("""s_getpc_b64 s[48:49]
Lpc:
s_and_b32 s50, s2, 3
s_lshl_b32 s50, s50, 5
s_lshr_b32 s51, s2, 3
s_add_u32 s70, s50, s51
s_lshl_b32 s50, s70, 6
s_add_u32 s50, s50, Ltab-Lpc
v_and_b32 v2, 15, v0
v_lshl_add_u32 v2, v2, 2, s50
global_load_dword v90, v2, s[48:49]""")
    if CODE_KB:
        e("""v_lshlrev_b32 v2, 7, v0
v_min_u32 v2, Lend-Lpc, v2
global_load_dword v91, v2, s[48:49]""")
    load_args(e)
    e("""s_and_b32 s48, s2, 3
s_lshl_b32 s48, s48, 1
s_lshr_b32 s49, s2, 7
s_add_u32 s48, s48, s49
s_bfe_u32 s49, s2, 0x40003
s_lshl_b32 s49, s49, 3
s_add_u32 s35, s48, s49""")
    stamp(e, 0, True); stamp(e, 14)
    F = "Lwfail"
    e("s_bitcmp1_b32 s2, 2\ns_cbranch_scc1 Lworker")
    if EXP == 1: e("s_sleep 127\n" * 5)
    chain(e, "Lchain_done", kv_wait, None)
    e("Lchain_done:")
    e("s_waitcnt vmcnt(0)")
    stamp(e, 2, True); stamp(e, 15)
    if common.DIAG: e("s_mov_b32 s84, s65")
    stamps_out(e, 16)
    e("s_endpgm")
    W, J, TY = 70, 71, 76
    M = [72, 74]; N = [73, 75]
    def fetch(e):
        e(f"""v_readlane_b32 s{N[0]}, v1, s{J}
s_add_u32 s{J}, s{J}, 1
s_lshr_b32 s{TY}, s{N[0]}, 16
s_bfe_u32 s{M[0]}, s{N[0]}, 0x80008
s_and_b32 s{N[0]}, s{N[0]}, 255""")
    def jstamp(e, d=0):
        if common.DIAG: e(f"s_memrealtime s[98:99]\ns_add_u32 m0, s{J}, {16+d}\ns_waitcnt lgkmcnt(0)\nv_writelane_b32 v1, s98, m0")
    e(f"Lworker:\ns_add_u32 s35, s{W}, 128\ns_mov_b32 s{SPIN}, 0\ns_mov_b32 s{J}, 0\ns_waitcnt vmcnt({1 if CODE_KB else 0})\nv_mov_b32 v1, v90")
    if WPF:
        e(f"""s_and_b32 s48, s{W}, 31
s_lshl_b32 s48, s48, 2
s_lshr_b32 s49, s{S_WAVE}, 1
s_add_u32 s48, s48, s49
s_lshl_b32 s48, s48, 16
v_lshrrev_b32 v2, 3, v0
v_lshlrev_b32 v2, 13, v2
v_and_b32 v3, 7, v0
v_lshl_add_u32 v2, v3, 4, v2
v_add_u32 v2, s48, v2
s_lshr_b32 s50, s{W}, 5
s_mul_i32 s50, s50, 6
s_and_b32 s49, s{S_WAVE}, 1
s_add_u32 s50, s50, s49""")
        for t in range(3):
            e(f"""s_lshr_b32 s53, s50, 3
s_and_b32 s54, s50, 7
s_lshl_b32 s54, s54, 10
s_cmp_eq_u32 s53, 1
s_cselect_b32 s56, s{P_BWK}, s{P_BWQ}
s_cselect_b32 s57, s{P_BWK+1}, s{P_BWQ+1}
s_cmp_eq_u32 s53, 2
s_cselect_b32 s56, s{P_BWV}, s56
s_cselect_b32 s57, s{P_BWV+1}, s57
s_add_u32 s56, s56, s54
s_addc_u32 s57, s57, 0
global_load_dwordx4 v[88:91], v2, s[56:57] offset:384""")
            if WPF > 1: e("global_load_dwordx4 v[88:91], v2, s[56:57] offset:896")
            e("s_add_u32 s50, s50, 2")
    if EXP == 2: e("s_sleep 127\n" * 5)
    e("Lnext:")
    jstamp(e)
    fetch(e)
    e("Ldisp:")
    for t in (J_G128, J_G256, J_AKV, J_ATT, J_AOUT, J_SENT, J_PF, J_END): e(f"s_cmp_eq_u32 s{TY}, {t}\ns_cbranch_scc1 Ljob{t}")
    for t, G, val, nc in ((J_G64, G64, 1, 1), (J_G128, G128, 1, 2), (J_G256, G256, 2, 2)):
        e(f"Ljob{t}:")
        js = QKV(G(), M[0], N[0])
        js.pre(e)
        def switch(e):
            L = e.label("Lsw")
            e(f"s_mov_b32 s{M[1]}, s{M[0]}\ns_mov_b32 s{N[1]}, s{N[0]}")
            fetch(e); js.srds(e)
            e(f"s_cmp_eq_u32 s{TY}, {t}\ns_cbranch_scc1 {L}\ns_mov_b32 s{SRD_X+2}, 0\ns_mov_b32 s{SRD_W+2}, 0\n{L}:")
        def tile_end(e, Ln):
            js.post(e, M[1], N[1])
            jstamp(e, -1)
            js.g.zero_acc(e)
            e(f"""s_mov_b32 s61, s{M[1]}
s_mov_b32 s{js.g.sPh}, {js.g.sigj}
s_cmp_eq_u32 s{TY}, {t}
s_cbranch_scc1 {Ln}""")
        js.g.run(e, js.nstores(), sig_hook(C_KV, 61, val, nc), switch, tile_end)
        e("s_barrier")
        sig_hook(C_KV, 61, val, nc)(e)
        e("s_branch Ldisp")
    e(f"""Ljob{J_SENT}:
s_add_u32 s52, s{M[0]}, 960
s_lshl_b32 s52, s52, 3
s_add_u32 s52, s52, s{S_WAVE}
s_lshl_b32 s52, s52, 12
v_lshlrev_b32 v2, 4, v0
v_mov_b64 v[4:5], -1
v_mov_b64 v[6:7], -1""")
    make_srd(e, SRD_O, P_WS, 52, WS_OP, WS_SIZE)
    for x in range(4): e(f"buffer_store_dwordx4 v[4:7], v2, s[{SRD_O}:{SRD_O+3}], 0 offen offset:{1024*x} sc1")
    e("s_nop 1\ns_branch Lnext")
    e(f"Ljob{J_PF}:")
    js.srds(e)
    e(f"""v_lshrrev_b32 v2, 1, v0
v_lshlrev_b32 v2, 13, v2
v_and_b32 v3, 1, v0
v_lshl_add_u32 v2, v3, 7, v2
s_lshl_b32 s52, s{M[0]}, 1
s_add_u32 s52, s52, s{S_WAVE}
s_add_u32 s52, s52, {PF0}""")
    for r in range(3):
        e(f"s_and_b32 s53, s52, 31\ns_lshl_b32 s53, s53, 18\nbuffer_load_dword v88, v2, s[{SRD_W}:{SRD_W+3}], s53 offen\ns_add_u32 s52, s52, 8")
    e("s_branch Lnext")
    e(f"Ljob{J_AKV}:")
    job_a_kv(e, M[0], "sc1")
    signal(e, C_KVA)
    e(f"s_branch Lnext\nLjob{J_ATT}:")
    j5 = AAttn(M[0], N[0], lambda e: wait(e, F, [(C_KVA, None, 64)]))
    j5.pre(e); j5.main(e); j5.post(e)
    signal(e, C_OA, M[0], 1)
    e(f"s_branch Lnext\nLjob{J_AOUT}:")
    wait(e, F, [(C_OA, M[0], 8)])
    j6 = Out("A", M[0], N[0], 256); j6.pre(e); j6.main(e); j6.post(e)
    e(f"s_barrier\ns_branch Lnext\nLjob{J_END}:")
    U, PC, PE = 72, 73, 74
    e(f"""v_lshlrev_b32 v2, 4, v0
v_and_b32 v3, 15, v0
v_lshlrev_b32 v3, 12, v3
v_bfe_u32 v4, v0, 4, 1
v_lshl_add_u32 v3, v4, 5, v3
v_lshrrev_b32 v4, 5, v0
v_lshl_add_u32 v3, v4, 4, v3
s_mov_b32 s54, 0xffff0000
s_cmp_eq_u32 s{S_WAVE}, 7
s_cbranch_scc1 Lrdone
s_lshl_b32 s{U}, s{S_WAVE}, 7
s_add_u32 s{U}, s{U}, s{W}
s_mov_b32 s{PC}, 0
s_mov_b32 s{PE}, 4
Lrunit:
s_lshr_b32 s76, s{U}, 4
s_lshl_b32 s53, s76, 17
s_add_u32 s76, s76, 4
s_min_u32 s76, s76, 63""")
    poll(e, F, ch.DBG_PROG, None, "s76", t=4, slp=PSL)
    stamp(e, 10, True)
    e(f"""s_and_b32 s52, s{U}, 15
s_lshl_b32 s52, s52, 7
s_add_u32 s53, s53, s52
s_lshl_b32 s52, s{U}, 15""")
    make_srd(e, SRD_X, P_WS, 52, WS_OP, WS_SIZE)
    make_srd(e, SRD_O, P_OUT, 53, 2048, 8388608)
    e(f"Lrpiece:\ns_lshl_b32 s55, s{PC}, 10")
    for g in range(8): e(f"buffer_load_dwordx4 v[{16+4*g}:{19+4*g}], v2, s[{SRD_X}:{SRD_X+3}], s55 offen sc1\ns_add_u32 s55, s55, 4096")
    e(f"""s_add_u32 s{SPIN}, s{SPIN}, 1
s_cmp_gt_u32 s{SPIN}, {ch.SPIN_MAX}
s_cbranch_scc1 {F}
s_lshr_b32 s55, s{PC}, 1
s_lshl_b32 s55, s55, 16
s_and_b32 s56, s{PC}, 1
s_lshl_b32 s56, s56, 6
s_add_u32 s55, s55, s56
s_waitcnt vmcnt(0)
v_max3_u32 v4, v19, v23, v27
v_max3_u32 v5, v31, v35, v39
v_max3_u32 v4, v43, v47, v4
v_max_u32 v4, v4, v5
v_cmp_eq_u32 vcc, -1, v4
s_cbranch_vccnz Lrpiece""")
    A = 48
    for g in range(8):
        for r in range(4):
            d = 16 + 4 * g + r
            if g == 0: e(f"v_lshlrev_b32 v{A+2*r}, 16, v{d}\nv_and_b32 v{A+2*r+1}, s54, v{d}")
            else: e(f"v_lshlrev_b32 v{8+2*r}, 16, v{d}\nv_and_b32 v{9+2*r}, s54, v{d}\nv_pk_add_f32 v[{A+2*r}:{A+2*r+1}], v[{A+2*r}:{A+2*r+1}], v[{8+2*r}:{9+2*r}]")
    for r in range(4): e(f"v_cvt_pk_bf16_f32 v{56+r}, v{A+2*r}, v{A+2*r+1}")
    e(f"""buffer_store_dwordx4 v[56:59], v3, s[{SRD_O}:{SRD_O+3}], s55 offen
s_add_u32 s{PC}, s{PC}, 1
s_cmp_lt_u32 s{PC}, s{PE}
s_cbranch_scc1 Lrpiece
s_cmp_ge_u32 s{U}, 512
s_cbranch_scc1 Lrdone
s_add_u32 s{U}, s{W}, 896
s_mov_b32 s{PC}, s{S_WAVE}
s_add_u32 s{PE}, s{S_WAVE}, 1
s_branch Lrunit
Lrdone:""")
    stamp(e, 11, True); stamp(e, 15)
    if common.DIAG:
        for i in range(1, 10): e(f"v_readlane_b32 s{80+i}, v1, {16+i}")
    stamps_out(e, 16)
    e(f"""Lend:
s_endpgm
{F}:
v_mov_b32 v2, 0
v_mov_b32 v3, 2
global_store_dword v2, v3, s[{P_DBG}:{P_DBG+1}] offset:{ch.DBG_FAIL - 4}
s_endpgm
.p2align 6
Ltab:""")
    for jl in schedule():
        assert len(jl) < 16
        e(".long " + ", ".join(str(t << 16 | m << 8 | n) for t, m, n in jl + [(0, 0, 0)] * (16 - len(jl))))
```

```python
from common import *

SIGJ = 1
ROT = 1
ROT64 = 1
class Gemm:
    def __init__(self, BM, BN, WM, WN, K, NST, xmode, xstride, wstride, acc0=128, ld="", mf=32, MH=1):
        assert WM * WN == 8
        self.BM, self.BN, self.WM, self.WN, self.K, self.NST = BM, BN, WM, WN, K, NST
        self.xmode, self.xstride, self.wstride, self.mf, self.MH = xmode, xstride, wstride, mf, MH
        self.TM, self.TN = BM // WM // mf, BN // WN // mf
        self.wrows = BM // WM
        self.NSUB = 4 if mf == 32 else 2 * MH
        self.TMS = self.TM if mf == 32 else self.TM // MH
        self.nX, self.nW = BM // 64, BN // 64
        assert self.nX >= 1 and self.nW >= 1 and (mf == 32 or BN >= 128)
        self.XS, self.WS = BM * 128, BN * 128
        self.WBASE = NST * self.XS
        self.lds = NST * (self.XS + self.WS)
        self.acc0 = acc0
        self.ld = ld
        self.rotm = ROT64 if (BM, wstride) == (128, 8192) else K // 64 - 1
        self.sigj = min(SIGJ, NST - 1)
        r = 2
        self.vX = list(range(r, r + self.nX)); r += self.nX
        self.vW = list(range(r, r + self.nW)); r += self.nW
        self.nxa = (4 if mf == 32 else 2) if xmode == "rm" else 1
        self.aX = list(range(r, r + self.nxa)); r += self.nxa
        self.aW = list(range(r, r + self.TN)); r += self.TN
        assert r <= 20
        self.tmp = 20; r = 24
        self.fX = [[r + 4 * (p * self.TMS + i) for i in range(self.TMS)] for p in range(2)]; r += 8 * self.TMS
        self.fW = [[r + 4 * (p * self.TN + i) for i in range(self.TN)] for p in range(2)]; r += 8 * self.TN
        self.vend = r
        assert r <= 92
        self.sXo, self.sWo, self.sCnt, self.sMX, self.sMW, self.sBuf, self.sPh = 64, 65, 66, 67, 68, 69, 77
    def acc(self, nt, mt):
        return self.acc0 + (16 if self.mf == 32 else 4) * (nt * self.TM + mt)
    def wave_ids(self, e, sm, sn):
        lg = self.WN.bit_length() - 1
        e(f"s_lshr_b32 s{sm}, s{S_WAVE}, {lg}\ns_and_b32 s{sn}, s{S_WAVE}, {self.WN-1}")

    def setup(self, e):
        t0, t1, t2, t3 = self.tmp, self.tmp + 1, self.tmp + 2, self.tmp + 3
        BM, BN, m16 = self.BM, self.BN, self.mf == 16
        self.wave_ids(e, 48, 49)
        if self.xmode == "rm":
            e(f"""s_mul_i32 s50, s{S_WAVE}, {BM//8}
v_lshrrev_b32 v{t0}, 3, v0
v_add_u32 v{t0}, s50, v{t0}
v_lshrrev_b32 v{t1}, 1, v{t0}
v_xor_b32 v{t1}, v{t1}, v0
v_and_b32 v{t1}, 7, v{t1}
v_lshlrev_b32 v{t1}, 4, v{t1}
v_mul_u32_u24 v{t0}, {self.xstride}, v{t0}
v_add_u32 v{self.vX[0]}, v{t0}, v{t1}""")
            if self.nX > 1:
                e(f"v_xor_b32 v{t1}, 64, v{t1}\nv_add_u32 v{t1}, v{t0}, v{t1}")
            for j in range(1, self.nX):
                e(f"v_add_u32 v{self.vX[j]}, {j*(8*self.xstride - 1024)}, v{t1 if j & 1 else self.vX[0]}")
        else:
            assert self.nX in (1, 2, 4)
            e(f"""s_mul_i32 s50, s{S_WAVE}, {self.nX}
s_lshr_b32 s51, s50, 2
s_and_b32 s50, s50, 3
s_mul_i32 s51, s51, {self.xstride}
s_lshl_b32 s50, s50, 10
s_add_u32 s50, s50, s51
v_lshlrev_b32 v{t0}, 4, v0
v_add_u32 v{self.vX[0]}, s50, v{t0}""")
            for j in range(1, self.nX): e(f"v_mov_b32 v{self.vX[j]}, v{self.vX[0]}")
        rpi = 512 // BN
        lpr = 64 // rpi
        lgl = lpr.bit_length() - 1
        for j in range(self.nW):
            e(f"""s_lshl_b32 s50, s{S_WAVE}, 3
s_add_u32 s50, s50, {rpi*j}
v_lshrrev_b32 v{t0}, {lgl}, v0
v_add_u32 v{t0}, s50, v{t0}""")
            if BN >= 128:
                e(f"v_and_b32 v{t1}, 3, v{t0}\nv_lshlrev_b32 v{t1}, 2, v{t1}")
                if m16:
                    e(f"v_bfe_u32 v{t2}, v{t0}, {3 if self.xmode == 'rm' else 2}, 1\nv_lshl_or_b32 v{t1}, v{t2}, 1, v{t1}")
            else:
                e(f"v_and_b32 v{t1}, 2, v{t0}\nv_lshlrev_b32 v{t1}, 1, v{t1}")
            e(f"""v_and_b32 v{t2}, {lpr-1}, v0
v_xor_b32 v{t1}, v{t1}, v{t2}
v_mul_u32_u24 v{t0}, {self.wstride}, v{t0}
v_lshl_add_u32 v{t0}, v{t1}, 4, v{t0}
v_subrev_u32 v{self.vW[j]}, {1024*j}, v{t0}""")
        e(f"s_mul_i32 s{self.sMX}, s{S_WAVE}, {1024*self.nX}\ns_mul_i32 s{self.sMW}, s{S_WAVE}, {1024*self.nW}\ns_add_u32 s{self.sMW}, s{self.sMW}, {self.WBASE}")

    def setup2(self, e):
        t0, t1, t2, t3 = self.tmp, self.tmp + 1, self.tmp + 2, self.tmp + 3
        BM, BN, m16 = self.BM, self.BN, self.mf == 16
        self.wave_ids(e, 48, 49)
        e(f"s_mul_i32 s50, s48, {self.wrows*128}")
        if self.xmode == "rm":
            e(f"""v_and_b32 v{t0}, {self.mf-1}, v0
v_bfe_u32 v{t1}, v0, 1, 3
v_lshrrev_b32 v{t2}, {4 if m16 else 5}, v0
v_xor_b32 v{t1}, v{t1}, v{t2}
v_lshlrev_b32 v{t1}, 4, v{t1}
v_lshlrev_b32 v{t0}, 7, v{t0}
v_add_u32 v{t0}, s50, v{t0}""")
            for ks in range(self.nxa):
                e(f"v_xor_b32 v{t2}, {ks*(64 if m16 else 32)}, v{t1}\nv_add_u32 v{self.aX[ks]}, v{t0}, v{t2}")
        elif m16:
            e(f"""v_and_b32 v{t0}, 15, v0
v_lshlrev_b32 v{t0}, 4, v{t0}
v_lshrrev_b32 v{t1}, 4, v0
v_lshl_add_u32 v{t0}, v{t1}, 9, v{t0}
v_add_u32 v{self.aX[0]}, s50, v{t0}""")
        else:
            e(f"v_lshlrev_b32 v{t0}, 4, v0\nv_add_u32 v{self.aX[0]}, s50, v{t0}")
        P = 2 * BN
        e(f"v_bfe_u32 v{t0}, v0, 2, 2")
        if m16:
            if self.xmode == "rm":
                e(f"v_lshrrev_b32 v{t1}, 4, v0\nv_lshl_add_u32 v{t1}, v{t1}, 3, v{t0}")
            else:
                e(f"v_lshrrev_b32 v{t1}, 5, v0\nv_lshl_add_u32 v{t1}, v{t1}, 4, v{t0}\nv_bfe_u32 v{t2}, v0, 4, 1\nv_lshl_add_u32 v{t1}, v{t2}, 2, v{t1}")
            e(f"""v_mul_u32_u24 v{t1}, {P}, v{t1}
v_and_b32 v{t2}, 3, v0
v_lshl_add_u32 v{t1}, v{t2}, 3, v{t1}
v_add_u32 v{t1}, {self.WBASE}, v{t1}
v_bfe_u32 v{t2}, v0, 4, 1
v_lshl_or_b32 v{t0}, v{t0}, 1, v{t2}""")
            sh = 5
        else:
            himul = 3 if self.xmode == "rm" else 2
            e(f"""v_lshrrev_b32 v{t1}, 5, v0
v_lshl_add_u32 v{t1}, v{t1}, {himul}, v{t0}
v_mul_u32_u24 v{t1}, {P}, v{t1}
v_and_b32 v{t2}, 3, v0
v_lshl_add_u32 v{t1}, v{t2}, 3, v{t1}
v_bfe_u32 v{t2}, v0, 4, 1
v_lshl_add_u32 v{t1}, v{t2}, 5, v{t1}
v_add_u32 v{t1}, {self.WBASE}, v{t1}""")
            if BN < 128: e(f"v_lshrrev_b32 v{t0}, 1, v{t0}")
            sh = 6
        e(f"s_mul_i32 s50, s49, {self.TN}")
        for nt in range(self.TN):
            e(f"""s_add_u32 s51, s50, {nt}
v_xor_b32 v{t2}, s51, v{t0}
v_lshl_add_u32 v{self.aW[nt]}, v{t2}, {sh}, v{t1}""")

    def dma_list(self):
        L = []
        for j in range(self.nX):
            pre = f"s_mov_b32 m0, s{self.sMX}\n" if j == 0 else ""
            L.append(pre + f"buffer_load_dwordx4 v{self.vX[j]}, s[{SRD_X}:{SRD_X+3}], s{self.sXo} offen offset:{1024*j} {self.ld} lds")
        for j in range(self.nW):
            pre = f"s_mov_b32 m0, s{self.sMW}\n" if j == 0 else ""
            L.append(pre + f"buffer_load_dwordx4 v{self.vW[j]}, s[{SRD_W}:{SRD_W+3}], s{self.sWo} offen offset:{1024*j} lds")
        xadv = 128 if self.xmode == "rm" else 4096
        L[self.nX - 1] += f"\ns_add_u32 s{self.sXo}, s{self.sXo}, {xadv}\ns_add_u32 s{self.sMX}, s{self.sMX}, s62"
        L[-1] += f"\ns_add_u32 s{self.sWo}, s{self.sWo}, {64*self.wstride}\ns_add_u32 s{self.sMW}, s{self.sMW}, s63"
        if ROT:
            L[self.nX - 1] += f"\ns_bitset0_b32 s{self.sXo}, {(xadv * self.K // 64).bit_length() - 1}"
            L[-1] += f"\ns_bitset0_b32 s{self.sWo}, {(self.wstride * self.K).bit_length() - 1}"
        return L
    def next_buf(self):
        m = lambda v: v & 0xffffffff
        return f"""s_add_u32 s{self.sBuf}, s{self.sBuf}, 1
s_cmp_eq_u32 s{self.sBuf}, {self.NST}
s_cselect_b32 s{self.sBuf}, 0, s{self.sBuf}
s_mov_b32 s62, {self.XS}
s_cselect_b32 s62, {hex(m(-(self.NST-1)*self.XS))}, s62
s_mov_b32 s63, {self.WS}
s_cselect_b32 s63, {hex(m(-(self.NST-1)*self.WS))}, s63"""

    def sub(self, i):
        if self.mf == 32: return i, 0, i & 1, i & 1
        kk, mh = divmod(i, self.MH)
        return kk, mh, kk & 1, i & 1

    def read_list(self, i):
        kk, mh, pw, px = self.sub(i)
        P = 2 * self.BN
        hstep = 4 if self.xmode == "rm" else 8
        kw = 16 if self.mf == 32 else 32
        order = []
        if mh == 0:
            for nt in range(self.TN):
                f = self.fW[pw][nt]
                for h in range(2):
                    order.append((nt * self.TMS + h * 0.1, f"ds_read_b64_tr_b16 v[{f+2*h}:{f+2*h+1}], v{self.aW[nt]} offset:{(kw*kk + hstep*h)*P}"))
        ax = self.aX
        for m in range(self.TMS):
            f = self.fX[px][m]; mt = mh * self.TMS + m
            if self.xmode == "rm": a, off = ax[kk], mt * self.mf * 128
            elif self.mf == 32: a, off = ax[0], mt * 4096 + kk * 1024
            else: a, off = ax[0], (mt // 2) * 4096 + kk * 2048 + (mt % 2) * 256
            order.append((m + 0.2, f"ds_read_b128 v[{f}:{f+3}], v{a} offset:{off}"))
        order.sort(key=lambda x: x[0])
        return [o[1] for o in order]

    def mfma_list(self, i):
        kk, mh, pw, px = self.sub(i)
        n = 15 if self.mf == 32 else 3
        op = "v_mfma_f32_32x32x16_bf16" if self.mf == 32 else "v_mfma_f32_16x16x32_bf16"
        L = []
        for nt in range(self.TN):
            for m in range(self.TMS):
                a = self.acc(nt, mh * self.TMS + m); w = self.fW[pw][nt]; x = self.fX[px][m]
                c = f"v[{a}:{a+n}]"
                L.append(f"{op} v[{a}:{a+n}], v[{w}:{w+3}], v[{x}:{x+3}], {c}")
        return L

    @staticmethod
    def weave(e, mf, fill):
        n = len(mf)
        per = -(-len(fill) // n) if fill else 0
        fi = 0
        for m in mf:
            e(m)
            for _ in range(per):
                if fi < len(fill): e(fill[fi]); fi += 1
        assert fi == len(fill)

    @staticmethod
    def merge(fill, extra):
        if not extra: return fill
        out = []; k = max(1, len(fill) // len(extra)); pi = 0
        for i, x in enumerate(fill):
            out.append(x)
            if (i + 1) % k == 0 and pi < len(extra): out.append(extra[pi]); pi += 1
        return out + extra[pi:]

    def prologue(self, e):
        L, Lx = e.label("Lpro"), e.label("Lprox")
        d = self.dma_list()
        if ROT:
            xadv = 128 if self.xmode == "rm" else 4096
            e(f"s_mul_i32 s{self.sWo}, s{S_WG}, {ROT}\ns_and_b32 s{self.sWo}, s{self.sWo}, {self.rotm}\ns_mul_i32 s{self.sXo}, s{self.sWo}, {xadv}\ns_mul_i32 s{self.sWo}, s{self.sWo}, {64 * self.wstride}")
        else: e(f"s_mov_b32 s{self.sXo}, 0\ns_mov_b32 s{self.sWo}, 0")
        e(f"s_mov_b32 s{self.sBuf}, 0\n{L}:")
        e(self.next_buf())
        for g in d[:self.nX]: e(g)
        e(f"s_cmp_eq_u32 s{self.sBuf}, 0\ns_cbranch_scc1 {Lx}")
        for g in d[self.nX:]: e(g)
        e(f"s_branch {L}\n{Lx}:")
    def zero_acc(self, e):
        n = self.TM * self.TN * (16 if self.mf == 32 else 4)
        for r in range(self.acc0, self.acc0 + n, 2): e(f"v_mov_b64 v[{r}:{r+1}], 0")

    def run(self, e, extra=0, hook=None, switch=None, tile_end=None):
        NS = self.K // 64; NST = self.NST; nper = self.nX + self.nW
        vm = (NST - 2) * nper
        L, Lb, Lh, Ls, Lsb, Ln, Lx = [e.label(x) for x in ("Lg", "Lgb", "Lgh", "Lgs", "Lgsb", "Lgn", "Lgx")]
        self.setup2(e)
        self.zero_acc(e)
        first_extra = 0 if tile_end else extra
        d = self.dma_list()
        e(f"s_mov_b32 s{self.sPh}, {NST-1 if first_extra or (hook and not tile_end) else 0}")
        e(f"s_waitcnt vmcnt({min(63, (NST-2)*nper + self.nX + first_extra)})\ns_barrier")
        for r in self.read_list(0): e(r)
        Le = e.label("Lge")
        e(f"s_mov_b32 s{self.sCnt}, 0\ns_branch {Ln}")
        e(f".p2align 6\n{L}:\ns_waitcnt vmcnt({vm}) lgkmcnt(0)\ns_barrier\n{Lb}:")
        fill = self.merge(self.read_list(0), d[:self.nX]) + [f"s_add_u32 s{self.sCnt}, s{self.sCnt}, 1\ns_cmp_eq_u32 s{self.sCnt}, {NS}"]
        self.weave(e, self.mfma_list(self.NSUB - 1), fill)
        e(f"s_cbranch_scc1 {Le}\n{Ln}:")
        for i in range(self.NSUB - 1):
            e("s_waitcnt lgkmcnt(0)")
            fill = self.read_list(i + 1)
            if i == 0: fill = self.merge(fill, d[self.nX:])
            if i == self.NSUB - 2:
                fill = fill + [self.next_buf()] + [f"v_add_u32 v{a}, s62, v{a}" for a in self.aX] + [f"v_add_u32 v{a}, s63, v{a}" for a in self.aW]
            self.weave(e, self.mfma_list(i), fill)
        e(f"""s_cmp_eq_u32 s{self.sCnt}, {NS - NST}
s_cbranch_scc1 {Ls}
{Lsb}:
s_cmp_eq_u32 s{self.sPh}, 0
s_cbranch_scc1 {L}
s_branch {Lh}
{Le}:
s_mov_b32 s{self.sCnt}, 0""")
        if tile_end: tile_end(e, Ln)
        e(f"s_branch {Lx}")
        e(f"{Ls}:")
        if switch:
            switch(e)
            if not ROT: e(f"s_mov_b32 s{self.sXo}, 0\ns_mov_b32 s{self.sWo}, 0")
        else:
            e(f"s_mov_b32 s{SRD_X+2}, 0\ns_mov_b32 s{SRD_W+2}, 0")
        e(f"s_branch {Lsb}")
        Lst = e.label("Lgst")
        e(f"""{Lh}:
s_sub_u32 s{self.sPh}, s{self.sPh}, 1
s_cmp_eq_u32 s{self.sPh}, 0
s_cbranch_scc1 {Lst}
s_waitcnt vmcnt({min(63, vm + extra)}) lgkmcnt(0)
s_barrier
s_branch {Lb}
{Lst}:
s_waitcnt vmcnt({min(vm, self.nW + (self.sigj - 1) * nper)}) lgkmcnt(0)
s_barrier""")
        if hook: hook(e)
        e(f"s_branch {Lb}\n{Lx}:\ns_waitcnt vmcnt(0) lgkmcnt(0)")
```

```python
import common
from common import *
from gemm import Gemm

def pack_tile(e, a, dst, swap=True):
    for i in range(8):
        e(f"v_cvt_pk_bf16_f32 v{dst+i}, v{a+2*i}, v{a+2*i+1}")
    if swap:
        for j in range(2):
            e(f"v_permlane32_swap_b32 v{dst+4*j}, v{dst+4*j+2}\nv_permlane32_swap_b32 v{dst+4*j+1}, v{dst+4*j+3}")

FINEA = 0
OUTM = 0
OUTF = ['', 'sc1', 'nt', 'sc0 sc1', 'sc1 nt']
PRE = 3
BIAS = 64.0
LMAX = 2.0 ** 100
MF = 16
EA, ET = 92, 96

def tiles32(e, g):
    k = 0
    if g.mf == 32:
        for mt in range(g.TM):
            for nt in range(g.TN):
                d = ET + 8 * (k % 4); k += 1
                pack_tile(e, g.acc(nt, mt), d)
                yield nt, mt * 32, [(d, 0), (d + 4, 1)]
    else:
        for mt in range(g.TM):
            for n2 in range(g.TN // 2):
                d = ET + 4 * (k % 8); k += 1
                a, b = g.acc(2 * n2, mt), g.acc(2 * n2 + 1, mt)
                e(f"""v_cvt_pk_bf16_f32 v{d}, v{a}, v{a+1}
v_cvt_pk_bf16_f32 v{d+1}, v{a+2}, v{a+3}
v_cvt_pk_bf16_f32 v{d+2}, v{b}, v{b+1}
v_cvt_pk_bf16_f32 v{d+3}, v{b+2}, v{b+3}
v_permlane16_swap_b32 v{d}, v{d+2}
v_permlane16_swap_b32 v{d+1}, v{d+3}""")
                yield n2, mt * 16, [(d, 0)]

class QKV:
    def __init__(self, g, s_m, s_n): self.g, self.m, self.n = g, s_m, s_n
    def pre(self, e):
        self.srds(e); self.g.setup(e); self.g.prologue(e)
    def srds(self, e):
        g = self.g
        e(f"s_mul_i32 s52, s{self.m}, {g.BM*2048}")
        make_srd(e, SRD_X, P_BX, 52, 0, 4194304)
        e(f"""s_lshr_b32 s53, s{self.n}, 5
s_and_b32 s54, s{self.n}, 31
s_cmp_eq_u32 s53, 1
s_cselect_b32 s56, s{P_BWK}, s{P_BWQ}
s_cselect_b32 s57, s{P_BWK+1}, s{P_BWQ+1}
s_cmp_eq_u32 s53, 2
s_cselect_b32 s56, s{P_BWV}, s56
s_cselect_b32 s57, s{P_BWV+1}, s57
s_lshl_b32 s52, s54, 8""")
        make_srd(e, SRD_W, 56, 52, 0, 8388608)
    def main(self, e, extra=0, hook=None): self.g.run(e, extra, hook)
    def nstores(self): return self.g.BM * self.g.BN // 4096
    def post(self, e, m=None, n=None):
        g = self.g
        m = m or self.m; n = n or self.n
        n32w = g.BN // g.WN // 32
        L = e.label("Lqs")
        e(f"s_cmp_ge_u32 s{n}, 32\ns_cbranch_scc1 {L}\ns_mov_b32 s58, {hex(f32bits(128 ** -0.5 * math.log2(math.e)))}\ns_nop 7")
        for r in range(g.acc0, g.acc0 + g.BM * g.BN // 512, 2): e(f"v_pk_mul_f32 v[{r}:{r+1}], v[{r}:{r+1}], s[58:59] op_sel_hi:[1,0]")
        e(f"{L}:")
        e(f"""s_lshr_b32 s58, s{n}, 5
s_lshl_b32 s58, s58, 24
s_mul_i32 s59, s{m}, {g.BM*8192}
s_add_u32 s58, s58, s59
s_and_b32 s59, s{n}, 31
s_lshl_b32 s59, s59, 13
s_add_u32 s58, s58, s59""")
        make_srd(e, SRD_O, P_WS, 58, WS_QB, WS_SIZE)
        g.wave_ids(e, 60, 61)
        e(f"""s_mul_i32 s58, s61, {n32w}
s_lshr_b32 s59, s58, 2
s_lshl_b32 s59, s59, 13
s_and_b32 s58, s58, 3
s_lshl_b32 s58, s58, 10
s_add_u32 s58, s58, s59
s_mul_i32 s59, s60, {g.wrows*8192}
s_add_u32 s58, s58, s59
v_and_b32 v{EA}, 15, v0
v_lshlrev_b32 v{EA}, 4, v{EA}
v_bfe_u32 v{EA+1}, v0, 4, 1
v_lshl_add_u32 v{EA}, v{EA+1}, {12 if g.mf == 32 else 9}, v{EA}
v_lshrrev_b32 v{EA+1}, 5, v0
v_lshl_add_u32 v{EA}, v{EA+1}, 8, v{EA}""")
        cur = 0; n = 0
        for n32, row, quads in tiles32(e, g):
            so = (row // 32) * 262144 + ((row % 32) // 16) * 4096
            if so != cur: e(f"s_add_u32 s58, s58, {so - cur}"); cur = so
            for d, j in quads:
                e(f"buffer_store_dwordx4 v[{d}:{d+3}], v{EA}, s[{SRD_O}:{SRD_O+3}], s58 offen offset:{n32*1024 + j*512} sc1"); n += 1
        return n

def G256(): return Gemm(256, 256, 2, 4, 1024, 2, "rm", 2048, 8192, mf=MF, MH=2)
def G128(): return Gemm(256, 128, 4, 2, 1024, 3, "rm", 2048, 8192, mf=MF)
def G64(): return Gemm(128, 128, 2, 4, 1024, 5, "rm", 2048, 8192, mf=MF)

import math, struct
def f32bits(x): return struct.unpack("<I", struct.pack("<f", x))[0]

def job_a_kv(e, s_t, st=""):
    X, WF, AK, AV = 16, 48, 64, 80
    e(f"s_lshl_b32 s52, s{s_t}, 16")
    make_srd(e, SRD_X, P_AX, 52, 0, 4194304)
    e(f"s_lshl_b32 s52, s{S_WAVE}, 13")
    make_srd(e, SRD_W, P_AWK, 52, 0, 65536)
    make_srd(e, SRD_O, P_AWV, 52, 0, 65536)
    e(f"""v_lshlrev_b32 v2, 4, v0
s_lshl_b32 s53, s{S_WAVE}, 14
s_mov_b32 m0, s53
s_mov_b32 s54, 4096""")
    for x in range(4): e(f"buffer_load_dwordx4 v2, s[{SRD_W}:{SRD_W+3}], 0 offen offset:{x*1024} lds")
    e("s_add_u32 m0, s53, 4096")
    for x in range(4): e(f"buffer_load_dwordx4 v2, s[{SRD_W}:{SRD_W+3}], s54 offen offset:{x*1024} lds")
    e("s_add_u32 m0, s53, 8192")
    for x in range(4): e(f"buffer_load_dwordx4 v2, s[{SRD_O}:{SRD_O+3}], 0 offen offset:{x*1024} lds")
    e("s_add_u32 m0, s53, 12288")
    for x in range(4): e(f"buffer_load_dwordx4 v2, s[{SRD_O}:{SRD_O+3}], s54 offen offset:{x*1024} lds")
    e(f"""v_and_b32 v3, 31, v0
v_lshlrev_b32 v3, 11, v3
v_lshrrev_b32 v4, 5, v0
v_lshl_add_u32 v3, v4, 4, v3
s_lshl_b32 s55, s{S_WAVE}, 8""")
    for ks in range(8): e(f"buffer_load_dwordx4 v[{X+4*ks}:{X+4*ks+3}], v3, s[{SRD_X}:{SRD_X+3}], s55 offen offset:{32*ks}")
    e(f"""v_bfe_u32 v5, v0, 2, 2
v_lshl_add_u32 v5, v4, 3, v5
v_lshlrev_b32 v5, 6, v5
v_bfe_u32 v6, v0, 4, 1
v_lshl_add_u32 v5, v6, 5, v5
v_and_b32 v6, 3, v0
v_lshl_add_u32 v5, v6, 3, v5
v_add_u32 v5, s53, v5
s_waitcnt vmcnt(0)""")
    for ks in range(8):
        p = WF + 8 * (ks & 1)
        for m in range(2):
            for h in range(2):
                e(f"ds_read_b64_tr_b16 v[{p+4*m+2*h}:{p+4*m+2*h+1}], v5 offset:{m*8192 + (16*ks + 4*h)*64}")
        e("s_waitcnt lgkmcnt(0)")
        c1 = "0" if ks == 0 else f"v[{AK}:{AK+15}]"; c2 = "0" if ks == 0 else f"v[{AV}:{AV+15}]"
        e(f"v_mfma_f32_32x32x16_bf16 v[{AK}:{AK+15}], v[{p}:{p+3}], v[{X+4*ks}:{X+4*ks+3}], {c1}")
        e(f"v_mfma_f32_32x32x16_bf16 v[{AV}:{AV+15}], v[{X+4*ks}:{X+4*ks+3}], v[{p+4}:{p+7}], {c2}")
    e(f"v_add_u32 v6, s53, v2")
    for q in range(8): e(f"ds_write_b128 v6, v[{AK+4*q}:{AK+4*q+3}] offset:{q*1024}")
    Ls = e.label("Lakv")
    e(f"""s_waitcnt lgkmcnt(0)
s_barrier
s_cmp_gt_u32 s{S_WAVE}, 3
s_cbranch_scc1 {Ls}
s_lshl_b32 s53, s{S_WAVE}, 11
v_add_u32 v6, s53, v2
v_add_u32 v7, 65536, v6""")
    for w in range(8):
        for q in range(2):
            e(f"ds_read_b128 v[{16+8*w+4*q}:{16+8*w+4*q+3}], v{6 if w < 4 else 7} offset:{(w%4)*16384 + q*1024}")
    e("s_waitcnt lgkmcnt(0)")
    for w in range(1, 8):
        for r in range(8): e(f"v_add_f32 v{16+r}, v{16+r}, v{16+8*w+r}")
    for r in range(4): e(f"v_cvt_pk_bf16_f32 v{16+r}, v{16+2*r}, v{17+2*r}")
    e(f"""s_lshr_b32 s52, s{S_WAVE}, 1
s_lshl_b32 s52, s52, 17
s_and_b32 s53, s{S_WAVE}, 1
s_lshl_b32 s53, s53, 10
s_add_u32 s52, s52, s53
s_lshl_b32 s53, s{s_t}, 11
s_add_u32 s52, s52, s53""")
    make_srd(e, SRD_O, P_WS, 52, WS_KA, WS_SIZE)
    e(f"buffer_store_dwordx4 v[16:19], v2, s[{SRD_O}:{SRD_O+3}], 0 offen {st}\n{Ls}:")

class AAttn:
  def __init__(self, s_m, s_n, before_kv):
    self.m, self.n, self.before_kv = s_m, s_n, before_kv
    self.g = Gemm(128, 128, 2, 4, 1024, 5, "rm", 2048, 2048, acc0=128)
  def pre(self, e):
    e(f"s_lshl_b32 s52, s{self.m}, 18")
    make_srd(e, SRD_X, P_AX, 52, 0, 4194304)
    e(f"s_lshl_b32 s52, s{self.n}, 8")
    make_srd(e, SRD_W, P_AWQ, 52, 0, 2097152)
    self.g.setup(e); self.g.prologue(e)
  def main(self, e, extra=0, hook=None):
    g = self.g; ld = "sc1"; before_kv = self.before_kv
    if FINEA: stamp(e, 6)
    g.run(e, extra, hook)
    if FINEA: stamp(e, 7)
    Q = [8, 16]; P = [24, 32]; KF = [40, 48]; VF = [56, 64]; ONE = 72
    S = [80, 96]; NM = [112, 160]; O = [176, 192]; L = [208, 224]
    e(f"s_mov_b32 s50, {hex(f32bits(32 ** -0.5 * math.log2(math.e)))}")
    e("s_barrier")
    if before_kv: before_kv(e)
    make_srd(e, SRD_X, P_WS, None, WS_KA, WS_KA + 262144)
    e(f"""v_lshlrev_b32 v2, 4, v0
s_lshl_b32 s53, s{S_WAVE}, 12""")
    Lk = e.label("Lkld")
    e(f"s_mov_b32 s54, s53\n{Lk}:\ns_mov_b32 m0, s54")
    for x in range(4): e(f"buffer_load_dwordx4 v2, s[{SRD_X}:{SRD_X+3}], s54 offen offset:{x*1024} {ld} lds")
    e(f"s_add_u32 s54, s54, 32768\ns_cmp_lt_u32 s54, 131072\ns_cbranch_scc1 {Lk}")
    vdma = f"""s_mov_b32 m0, s55
s_xor_b32 s55, s55, 16384
buffer_load_dwordx4 v2, s[{SRD_X}:{SRD_X+3}], s56 offen {ld} lds
buffer_load_dwordx4 v2, s[{SRD_X}:{SRD_X+3}], s56 offen offset:1024 {ld} lds
s_add_u32 s56, s56, 16384"""
    for t in range(2):
        a = g.acc(0, t)
        for r in range(16): e(f"v_mul_f32 v{a+r}, s50, v{a+r}")
        pack_tile(e, a, Q[t], swap=False)
    for r in range(4): e(f"v_mov_b32 v{ONE+r}, 0x3f803f80")
    Lredo = e.label("Lredo")
    e(f"s_mov_b32 s59, {PRE}\n{Lredo}:")
    e(f"s_lshl_b32 s55, s{S_WAVE}, 11\ns_add_u32 s55, s55, 131072\ns_mov_b32 s56, s55")
    e(vdma)
    e("v_mov_b32 v4, 0xff800000\nv_mov_b32 v5, 0xff800000")
    e("v_mov_b32 v3, v2\ns_waitcnt vmcnt(2)\ns_barrier")
    def kread(set_, off): return [f"ds_read_b128 v[{KF[set_]+4*j}:{KF[set_]+4*j+3}], v3 offset:{off + 1024*j}" for j in range(2)]
    def qk(t, set_, dst, c):
        return [f"v_mfma_f32_32x32x16_bf16 v[{dst}:{dst+15}], v[{KF[set_]}:{KF[set_]+3}], v[{Q[t]}:{Q[t]+3}], {c}",
                f"v_mfma_f32_32x32x16_bf16 v[{dst}:{dst+15}], v[{KF[set_]+4}:{KF[set_]+7}], v[{Q[t]+4}:{Q[t]+7}], v[{dst}:{dst+15}]"]
    if FINEA: stamp(e, 8)
    SB = [[S[0], S[1]], [O[0], O[1]]]
    def mx(t, src): return [f"v_max3_f32 v{4+t}, v{src+2*i}, v{src+2*i+1}, v{4+t}" for i in range(8)]
    for x in kread(0, 0): e(x)
    for t in range(2):
        for r in range(16): e(f"v_mov_b32 v{SB[1][t]+r}, 0xff800000")
    L1 = e.label("Lp1")
    e(f"s_mov_b32 s57, s59\n{L1}:")
    for p in range(2):
        e("s_waitcnt lgkmcnt(0)")
        mf = qk(0, p, SB[p][0], "0") + qk(1, p, SB[p][1], "0")
        fill = kread(p ^ 1, (p + 1) * 2048) + (["v_add_u32 v3, 4096, v3"] if p else []) + mx(0, SB[p ^ 1][0]) + mx(1, SB[p ^ 1][1])
        Gemm.weave(e, mf, fill)
    e(f"s_sub_u32 s57, s57, 1\ns_cmp_lg_u32 s57, 0\ns_cbranch_scc1 {L1}")
    e("s_nop 7\ns_nop 3")
    for x in mx(0, SB[1][0]) + mx(1, SB[1][1]): e(x)
    for t in range(2):
        e(f"v_mov_b32 v6, v{4+t}\nv_permlane32_swap_b32 v{4+t}, v6\nv_max_f32 v{4+t}, v{4+t}, v6\nv_add_f32 v{4+t}, {hex(f32bits(BIAS))}, v{4+t}")
        for r in range(16): e(f"v_mul_f32 v{NM[t]+r}, -1.0, v{4+t}")
        for r in range(0, 16, 2): e(f"v_mov_b64 v[{O[t]+r}:{O[t]+r+1}], 0\nv_mov_b64 v[{L[t]+r}:{L[t]+r+1}], 0")
    for r in range(0, 8, 2): e(f"v_mov_b64 v[{P[1]+r}:{P[1]+r+1}], 0\nv_mov_b64 v[{VF[1]+r}:{VF[1]+r+1}], 0")
    if FINEA: stamp(e, 9)
    e("s_waitcnt lgkmcnt(0)\nv_mov_b32 v3, v2\nv_add_u32 v7, 131072, v2")
    for x in kread(0, 0) + kread(1, 2048): e(x)
    e("s_waitcnt lgkmcnt(0)")
    for x in qk(0, 0, S[0], f"v[{NM[0]}:{NM[0]+15}]"): e(x)
    def pv(t, set_):
        r = []
        for j in range(2):
            r.append(f"v_mfma_f32_32x32x16_bf16 v[{O[t]}:{O[t]+15}], v[{VF[set_]+4*j}:{VF[set_]+4*j+3}], v[{P[t]+4*j}:{P[t]+4*j+3}], v[{O[t]}:{O[t]+15}]")
            r.append(f"v_mfma_f32_32x32x16_bf16 v[{L[t]}:{L[t]+15}], v[{ONE}:{ONE+3}], v[{P[t]+4*j}:{P[t]+4*j+3}], v[{L[t]}:{L[t]+15}]")
        return r
    def sm(t):
        r = []
        for i in range(8):
            r.append(f"v_exp_f32 v{S[t]+2*i}, v{S[t]+2*i}")
            r.append(f"v_exp_f32 v{S[t]+2*i+1}, v{S[t]+2*i+1}")
            if i >= 1: r.append(f"v_cvt_pk_bf16_f32 v{P[t]+i-1}, v{S[t]+2*i-2}, v{S[t]+2*i-1}")
        r.append(f"s_nop 0\nv_cvt_pk_bf16_f32 v{P[t]+7}, v{S[t]+14}, v{S[t]+15}")
        return r
    L2, L2c, L2b, L2x = e.label("Lp2"), e.label("Lp2c"), e.label("Lp2b"), e.label("Lp2x")
    e(f"s_mov_b32 s57, 0\ns_mov_b32 s51, 0x27fff\n{L2}:\ns_and_b32 s52, s57, 3\ns_cbranch_scc0 {L2c}\n{L2b}:")
    for p in range(2):
        vread = [f"ds_read_b128 v[{VF[p]+4*j}:{VF[p]+4*j+3}], v7 offset:{p*2048 + 1024*j}" for j in range(2)]
        if p: vread += ["v_add_u32 v7, 4096, v7", "v_and_b32 v7, s51, v7"]
        Gemm.weave(e, qk(1, p, S[1], f"v[{NM[1]}:{NM[1]+15}]") + pv(1, p ^ 1), vread + sm(0))
        e("s_waitcnt lgkmcnt(0)")
        f = sm(1)
        f = f[:10] + kread(p, (p + 2) * 2048) + (["v_add_u32 v3, 4096, v3"] if p else []) + f[10:]
        Gemm.weave(e, qk(0, p ^ 1, S[0], f"v[{NM[0]}:{NM[0]+15}]") + pv(0, p), f)
    e(f"""s_add_u32 s57, s57, 1
s_cmp_lg_u32 s57, 32
s_cbranch_scc1 {L2}
s_branch {L2x}
{L2c}:
s_waitcnt vmcnt(0) lgkmcnt(0)
s_barrier
{vdma}
s_branch {L2b}
{L2x}:""")
    for x in pv(1, 1): e(x)
    Lok = e.label("Laok")
    e(f"""s_waitcnt vmcnt(0) lgkmcnt(0)
s_mov_b32 s52, {hex(f32bits(LMAX))}
s_lshl_b32 s55, s{S_WAVE}, 11
v_and_b32 v7, 7, v0
v_lshlrev_b32 v7, 11, v7
v_add_u32 v7, 131072, v7
s_add_u32 s55, s55, 131072
v_mov_b32 v6, s55
v_cmp_ngt_f32 vcc, s52, v{L[0]}
v_cmp_ngt_f32 s[56:57], s52, v{L[1]}
s_or_b64 vcc, vcc, s[56:57]
s_cselect_b32 s52, 1, 0
v_mov_b32 v4, s52
ds_write_b32 v6, v4
s_waitcnt lgkmcnt(0)
s_barrier
ds_read_b32 v4, v7
s_waitcnt lgkmcnt(0)
v_cmp_ne_u32 vcc, 0, v4
s_cbranch_vccz {Lok}
s_cmp_eq_u32 s59, 32
s_cbranch_scc1 {Lok}
s_mov_b32 s59, 32""")
    if common.DIAG: e(f"v_mov_b32 v4, 0\nv_mov_b32 v5, 1\ns_mov_b64 exec, 1\nglobal_atomic_add v4, v5, s[{P_DBG}:{P_DBG+1}] offset:84\ns_mov_b64 exec, -1\ns_waitcnt vmcnt(0)")
    e(f"s_barrier\ns_branch {Lredo}\n{Lok}:")
    if FINEA: stamp(e, 10)
  def post(self, e):
    O = [176, 192]; L = [208, 224]
    self.g.wave_ids(e, 60, 61)
    e(f"""s_lshl_b32 s58, s{self.m}, 2
s_lshl_b32 s59, s60, 1
s_add_u32 s58, s58, s59
s_lshl_b32 s58, s58, 16
s_lshl_b32 s59, s{self.n}, 2
s_add_u32 s59, s59, s61
s_lshl_b32 s59, s59, 11
s_add_u32 s58, s58, s59
s_mov_b32 s59, 65536
v_lshlrev_b32 v{EA}, 4, v0""")
    make_srd(e, SRD_O, P_WS, 58, WS_OA, WS_SIZE)
    for t in range(2):
        e(f"v_rcp_f32 v{EA+1}, v{L[t]}")
        for r in range(16): e(f"v_mul_f32 v{O[t]+r}, v{O[t]+r}, v{EA+1}")
        pack_tile(e, O[t], ET + 8 * t, swap=False)
        for j in range(2):
            e(f"buffer_store_dwordx4 v[{ET+8*t+4*j}:{ET+8*t+4*j+3}], v{EA}, s[{SRD_O}:{SRD_O+3}], {'s59' if t else '0'} offen offset:{1024*j} sc1")
    return 4

class Out:
    def __init__(self, part, s_m, s_n, BN=128):
        self.part, self.m, self.n, self.sh = part, s_m, s_n, BN.bit_length()
        self.K = 1024 if part == "A" else 4096
        self.g = Gemm(128, BN, 2, 4, self.K, 5 if BN == 128 else 3, "frag", self.K * 64, 2048, ld="sc1", mf=MF)
    def pre(self, e):
        A = self.part == "A"
        e(f"s_mul_i32 s52, s{self.m}, {4*self.K*64}")
        make_srd(e, SRD_X, P_WS, 52, WS_OA if A else WS_OB, WS_SIZE)
        e(f"s_lshl_b32 s52, s{self.n}, {self.sh}")
        make_srd(e, SRD_W, P_AWO if A else P_BWO, 52, 0, self.K * 2048)
        self.g.setup(e); self.g.prologue(e)
    def main(self, e, extra=0, hook=None): self.g.run(e, extra, hook)
    def post(self, e):
        g = self.g
        e(f"s_lshl_b32 s58, s{self.n}, {self.sh}\ns_lshl_b32 s59, s{self.m}, 19\ns_add_u32 s58, s58, s59")
        make_srd(e, SRD_O, P_OUT, 58, 0 if self.part == "A" else 2048, 8388608)
        g.wave_ids(e, 60, 61)
        e(f"""s_mul_i32 s58, s60, {g.wrows*4096}
s_mul_i32 s59, s61, {g.BN//g.WN*2}
s_add_u32 s58, s58, s59
v_and_b32 v{EA}, {g.mf-1}, v0
v_lshlrev_b32 v{EA}, 12, v{EA}
v_lshrrev_b32 v{EA+1}, 5, v0
v_lshl_add_u32 v{EA}, v{EA+1}, 4, v{EA}""")
        if g.mf == 16: e(f"v_bfe_u32 v{EA+1}, v0, 4, 1\nv_lshl_add_u32 v{EA}, v{EA+1}, 5, v{EA}")
        cur = 0; n = 0
        for n32, row, quads in tiles32(e, g):
            so = row * 4096
            if so != cur: e(f"s_add_u32 s58, s58, {so - cur}"); cur = so
            for d, j in quads:
                e(f"buffer_store_dwordx4 v[{d}:{d+3}], v{EA}, s[{SRD_O}:{SRD_O+3}], s58 offen offset:{n32*64 + j*32} {OUTF[OUTM]}"); n += 1
        return n

def b_attn_setup(e):
    e(f"""v_bfe_u32 v2, v0, 4, 1
v_lshlrev_b32 v2, 12, v2
v_and_b32 v3, 15, v0
v_lshl_add_u32 v2, v3, 4, v2
v_lshrrev_b32 v4, 5, v0
v_lshl_add_u32 v2, v4, 8, v2
v_and_b32 v3, 7, v0
v_lshlrev_b32 v3, 4, v3
v_lshl_add_u32 v3, v4, 7, v3
v_lshlrev_b32 v5, 4, v0
s_mul_i32 s58, s{S_WAVE}, 10240""")
    e("""v_bfe_u32 v6, v0, 2, 2
v_lshl_add_u32 v6, v4, 2, v6
v_lshlrev_b32 v6, 4, v6
v_bfe_u32 v7, v0, 4, 1
v_lshlrev_b32 v7, 1, v7
v_bfe_u32 v8, v0, 1, 1
v_add_u32 v7, v7, v8
v_and_b32 v8, 1, v0
v_lshl_add_u32 v6, v8, 3, v6
v_lshl_add_u32 v9, v7, 7, v6
v_lshl_add_u32 v6, v7, 8, v6
v_add_u32 v6, s58, v6
s_add_u32 s59, s58, 8192
v_add_u32 v9, s59, v9""")
    e("""v_lshrrev_b32 v7, 4, v0
v_lshlrev_b32 v7, 8, v7
v_and_b32 v8, 7, v0
v_lshl_add_u32 v7, v8, 4, v7
v_bfe_u32 v8, v0, 3, 1
v_lshl_add_u32 v7, v8, 2, v7
v_add_u32 v7, s59, v7
v_and_b32 v8, 31, v0
v_lshlrev_b32 v10, 2, v4
v_sub_u32 v8, v8, v10
v_mov_b32 v10, 0xff800000""")
    e(f"s_mov_b32 s57, {hex(f32bits(128 ** -0.5 * math.log2(math.e)))}")
    make_srd(e, SRD_X, P_WS, None, 0, WS_SIZE)

def b_attn_unit(e, s_u, ld="", st=""):
    Q, K, KM, VM, SX, SM, P, VT, O = 16, 48, 80, 112, 120, 136, 152, 164, 176
    X = f"s[{SRD_X}:{SRD_X+3}]"
    e(f"""s_lshl_b32 s50, s{s_u}, 13
s_add_u32 s51, s50, {WS_KB}
s_add_u32 s52, s50, {WS_VB}
s_add_u32 s53, s52, 4096
s_lshl_b32 s54, s{s_u}, 12
s_add_u32 s54, s54, {WS_KVM}
s_add_u32 s55, s50, {WS_OB}
s_add_u32 s56, s55, 4096""")
    for ks in range(8):
        e(f"buffer_load_dwordx4 v[{Q+4*ks}:{Q+4*ks+3}], v2, {X}, s50 offen offset:{(ks//2)*1024 + (ks%2)*512} {ld}")
        e(f"buffer_load_dwordx4 v[{K+4*ks}:{K+4*ks+3}], v2, {X}, s51 offen offset:{(ks//2)*1024 + (ks%2)*512} {ld}")
        e(f"buffer_load_dwordx4 v[{KM+4*ks}:{KM+4*ks+3}], v3, {X}, s54 offen offset:{ks*256} {ld}")
    for u in range(2): e(f"buffer_load_dwordx4 v[{VM+4*u}:{VM+4*u+3}], v5, {X}, s54 offen offset:{2048+1024*u} {ld}")
    e("s_mov_b32 m0, s58")
    for x in range(4): e(f"buffer_load_dwordx4 v5, {X}, s52 offen offset:{x*1024} {ld} lds")
    e("s_add_u32 m0, s58, 4096")
    for x in range(4): e(f"buffer_load_dwordx4 v5, {X}, s53 offen offset:{x*1024} {ld} lds")
    for ks in range(8):
        e(f"s_waitcnt vmcnt({10 + 3*(7-ks)})")
        e(f"v_mfma_f32_32x32x16_bf16 v[{SX}:{SX+15}], v[{K+4*ks}:{K+4*ks+3}], v[{Q+4*ks}:{Q+4*ks+3}], {'0' if ks == 0 else f'v[{SX}:{SX+15}]'}")
        e(f"v_mfma_f32_32x32x16_bf16 v[{SM}:{SM+15}], v[{KM+4*ks}:{KM+4*ks+3}], v[{Q+4*ks}:{Q+4*ks+3}], {'0' if ks == 0 else f'v[{SM}:{SM+15}]'}")
    e("s_waitcnt vmcnt(8)")
    for u in range(2):
        for q in range(4):
            e(f"ds_write_b32 v7, v{VM+4*u+q} offset:{(8*u + q//2)*128 + (q%2)*8}")
    for r in range(16):
        e(f"v_cmp_le_i32 vcc, {8*(r//4) + r%4}, v8\nv_cndmask_b32 v{SX+r}, v10, v{SX+r}, vcc")
    e(f"v_max3_f32 v11, v{SM}, v{SM+1}, v{SM+2}\nv_max_f32 v11, v11, v{SM+3}")
    for i in range(8): e(f"v_max3_f32 v11, v{SX+2*i}, v{SX+2*i+1}, v11")
    e("v_mov_b32 v12, v11\nv_permlane32_swap_b32 v11, v12\nv_max_f32 v11, v11, v12\nv_mul_f32 v11, s57, v11")
    regs = [SX + i for i in range(20)]
    for r in regs: e(f"v_fma_f32 v{r}, v{r}, s57, -v11")
    for r in regs: e(f"v_exp_f32 v{r}, v{r}")
    e(f"v_add_f32 v11, v{regs[0]}, v{regs[1]}\nv_add_f32 v12, v{regs[2]}, v{regs[3]}")
    for i in range(4, 20, 2): e(f"v_add_f32 v11, v11, v{regs[i]}\nv_add_f32 v12, v12, v{regs[i+1]}")
    e("v_add_f32 v11, v11, v12\nv_mov_b32 v12, v11\nv_permlane32_swap_b32 v11, v12\nv_add_f32 v11, v11, v12\nv_rcp_f32 v11, v11")
    for r in regs: e(f"v_mul_f32 v{r}, v{r}, v11")
    for i in range(10): e(f"v_cvt_pk_bf16_f32 v{P+i}, v{regs[2*i]}, v{regs[2*i+1]}")
    e("s_waitcnt vmcnt(0) lgkmcnt(0)")
    for et in range(4):
        vt = Q + 12 * et
        for j in range(2):
            for h in range(2):
                e(f"ds_read_b64_tr_b16 v[{vt+4*j+2*h}:{vt+4*j+2*h+1}], v6 offset:{j*4096 + et*1024 + h*128}")
        e(f"ds_read_b64_tr_b16 v[{vt+8}:{vt+9}], v9 offset:{et*512}")
    for et in range(4):
        vt = Q + 12 * et; o = O + 16 * et
        e(f"s_waitcnt lgkmcnt({5*(3-et)})")
        e(f"v_mfma_f32_32x32x16_bf16 v[{o}:{o+15}], v[{vt}:{vt+3}], v[{P}:{P+3}], 0")
        e(f"v_mfma_f32_32x32x16_bf16 v[{o}:{o+15}], v[{vt+4}:{vt+7}], v[{P+4}:{P+7}], v[{o}:{o+15}]")
        e(f"v_mfma_f32_32x32x8_bf16 v[{o}:{o+15}], v[{vt+8}:{vt+9}], v[{P+8}:{P+9}], v[{o}:{o+15}]")
    for et in range(4):
        d = KM + 8 * et
        pack_tile(e, O + 16 * et, d, swap=False)
        for j in range(2):
            e(f"buffer_store_dwordx4 v[{d+4*j}:{d+4*j+3}], v5, {X}, s{55 + et//2} offen offset:{(et%2)*2048 + j*1024} {st}")
```

```python
import common
from common import *
import math

SPREAD = 0
def acc_step(): return 256 if SPREAD else 20480
def acc_piece(): return 65 * 256 if SPREAD else 256
KLATE = 8
DELAY_B = -1
CANARY = 1
CGAP = 2
CTHR = 8
FIX_A = -1
WS_CAN = WS_ACC + 0x180000
BR_G = 24576
WS_PR = WS_BR + 0x80000
PR_SLOT = 98304
BR_SLOT = 8 * 32768
HS = 6144
GS = 24576
R1 = 0
R2 = 18432
RL = 28672
YD2 = 65536
YD = 32768
SPIN_MAX = 400000
ACK_B = 1
KVSTEP = 262144
NOKV = 0
LATE_V = 0
XT = 0
XW = 3
STL = 2
PDMA = 1
QL = 0
PPRE = 1
SPLIT = 0
VORD = 0
ACK1 = 1
RLATE = 0
ASL = 0
ARF = 1
VPF = 1
DUMP0 = 6
DUMPS = 4
SFLAG = 1
XS2 = 10
PBL = 0
KPOS = 0xe000001000
PL = 98304
VSL = 1
QONE = 1
KVE = 1
VARR = -1
VPOST = 0
AF = 1
KVF = 1
LF = ['', 'sc1', 'nt', 'sc0', 'sc1 nt', 'sc0 sc1']
XSF = 1
RTAB = 0x023579bd
FL2 = 29440
FSL = 2
KPRE = 6
FPOS = 1
OOB = 131072
P1B = 1
BPIPE = 1
FINR = 0
VLATE = 8
FL3 = RL + 256 + 240
FL = 29248
XW23 = 9
RSEL = 0
FORCE_FB = 0
VEARLY = 8
EARLY = -1
EGAP = 2
EADD = 0
EW0 = 1
EPRE = 2
EDLY = 0
XST = 0
XSL = 8
XLD = 2
KEARLY = 8
PLATE = 24
NOQ = 0
PREF = 0
RANK_A = 2
PACE_A = 0
DBG_ARRIVE = 0
DBG_XCC = 4
DBG_PROG = 64
DBG_FAIL = 252 - 172

sStep, sSpin, sMode = 64, 65, 66
sACC, sACCN, sB, sBO, sK, sV, sKVM = 68, 70, 72, 74, 76, 78, 60
sSelE, sSelO, sC, sG, sM, sW = 62, 63, 59, 56, 57, 58
sQ, sQL = 60, 61

TRACE = False
WS_TRACE = WS_DIAG + (1 << 20)
def tr(e, i):
    if TRACE: e(f"s_memrealtime s[{86+2*i}:{87+2*i}]")
def tr_out(e):
    if not TRACE: return
    e(f"""s_waitcnt lgkmcnt(0)
s_lshl_b32 s48, s{S_WG}, 3
s_add_u32 s48, s48, s{S_WAVE}
s_lshl_b32 s48, s48, 6
s_add_u32 s48, s48, s{sStep}
s_lshl_b32 s48, s48, 5
s_add_u32 s48, s48, {WS_TRACE}
v_lshlrev_b32 v13, 2, v0
v_add_u32 v13, s48, v13""")
    for i in range(8): e(f"v_writelane_b32 v12, s{86+2*i}, {i}")
    e(f"s_mov_b64 exec, 0xff\nglobal_store_dword v13, v12, s[{P_WS}:{P_WS+1}]\ns_mov_b64 exec, -1")

def reduce4(e, alo, ahi, st, t=12, scale=None):
    e(f"""ds_read2st64_b32 v[{t}:{t+1}], v{alo} offset0:0 offset1:{st}
ds_read2st64_b32 v[{t+2}:{t+3}], v{ahi} offset0:0 offset1:{st}
ds_read2st64_b32 v[{t+4}:{t+5}], v{alo} offset0:{2*st} offset1:{3*st}
ds_read2st64_b32 v[{t+6}:{t+7}], v{ahi} offset0:{2*st} offset1:{3*st}
s_cmp_lg_u32 s{sMode}, 0
s_waitcnt lgkmcnt(2)
v_add_f32 v{t}, v{t}, v{t+1}
v_add_f32 v{t+2}, v{t+2}, v{t+3}""")
    if scale: e(f"v_mul_f32 v{t}, v{t}, v{scale}\nv_mul_f32 v{t+2}, v{t+2}, v{scale}")
    e(f"""s_waitcnt lgkmcnt(0)
v_add_f32 v{t+4}, v{t+4}, v{t+5}
v_add_f32 v{t+6}, v{t+6}, v{t+7}""")
    if scale: e(f"v_fmac_f32 v{t}, v{t+4}, v{scale}\nv_fmac_f32 v{t+2}, v{t+6}, v{scale}")
    else: e(f"v_add_f32 v{t}, v{t}, v{t+4}\nv_add_f32 v{t+2}, v{t+2}, v{t+6}")
    e(f"v_cvt_pk_bf16_f32 v{t}, v{t}, v{t+2}")

def reduce4n(e, ar, one, t, r):
    e(f"""ds_read_b128 v[{r}:{r+3}], v{ar}
ds_read2st64_b32 v[{t}:{t+1}], v7 offset0:0 offset1:10
ds_read2st64_b32 v[{t+2}:{t+3}], v8 offset0:0 offset1:10
ds_read2st64_b32 v[{t+4}:{t+5}], v7 offset0:20 offset1:30
ds_read2st64_b32 v[{t+6}:{t+7}], v8 offset0:20 offset1:30
s_waitcnt lgkmcnt(2)
v_mul_f32 v{t}, v{t}, v{r}
v_fma_f32 v{t+2}, v{t+2}, v{r}, v{one}
v_fmac_f32 v{t}, v{t+1}, v{r+1}
v_fmac_f32 v{t+2}, v{t+3}, v{r+1}
s_waitcnt lgkmcnt(0)
v_fmac_f32 v{t}, v{t+4}, v{r+2}
v_fmac_f32 v{t+2}, v{t+6}, v{r+2}
v_fmac_f32 v{t}, v{t+5}, v{r+3}
v_fmac_f32 v{t+2}, v{t+7}, v{r+3}
v_cvt_pk_bf16_f32 v{t}, v{t}, v{t+2}""")
def rn_setup(ar, one):
    return f"""v_bfe_u32 v{ar}, v0, 2, 3
v_lshlrev_b32 v{ar}, 4, v{ar}
v_add_u32 v{ar}, {RL + 128}, v{ar}
v_and_b32 v{one}, 3, v0
v_cmp_eq_u32 vcc, 3, v{one}
v_cndmask_b32 v{one}, 0, 1.0, vcc"""

def publish_B(e, tail, d=12):
    ls, lb = e.label("Lslow"), e.label("Lback")
    rs = lambda f: "" if RLATE else f"global_store_dword v6, v11, s[{sBO}:{sBO+1}] {f}"
    e(f"""v_min_u32 v{d}, -2, v{d}
s_cbranch_scc1 {ls}
global_store_dword v6, v{d}, s[{sB}:{sB+1}]
{rs('')}
{lb}:""")
    tail.append(f"""{ls}:
global_store_dword v6, v{d}, s[{sB}:{sB+1}] sc1
{rs('sc1')}
s_branch {lb}""")
def reset_B(e, tail):
    if not RLATE: return
    ls, lb = e.label("Lslow"), e.label("Lback")
    e(f"s_cmp_lg_u32 s{sMode}, 0\ns_cbranch_scc1 {ls}\nglobal_store_dword v6, v11, s[{sBO}:{sBO+1}]\n{lb}:")
    tail.append(f"{ls}:\nglobal_store_dword v6, v11, s[{sBO}:{sBO+1}] sc1\ns_branch {lb}")

def advance(e):
    e(f"""s_add_u32 s{sStep}, s{sStep}, 1
s_mov_b64 s[{sACC}:{sACC+1}], s[{sACCN}:{sACCN+1}]
s_add_u32 s{sACCN}, s{sACCN}, {acc_step()}
s_addc_u32 s{sACCN+1}, s{sACCN+1}, 0
s_mov_b64 s[50:51], s[{sB}:{sB+1}]
s_mov_b64 s[{sB}:{sB+1}], s[{sBO}:{sBO+1}]
s_mov_b64 s[{sBO}:{sBO+1}], s[50:51]""")

def chain(e, L_done, kv_wait=None, arrive_hook=None):
    tail = []
    Lfail = e.label("Lcfail")
    e(f"""s_and_b32 s{sG}, s{S_WG}, 7
s_lshr_b32 s{sM}, s{S_WG}, 3
s_and_b32 s{sW}, s{S_WAVE}, 3
s_mov_b32 s{sStep}, 0
s_mov_b32 s{sSpin}, 0
s_mov_b32 s{sSelE}, 0x05040100
s_mov_b32 s{sSelO}, 0x07060100
s_mov_b32 s{sC}, {hex(f32bits(128 ** -0.5 * math.log2(math.e)))}
s_add_u32 s{sACC}, s{P_WS}, {WS_ACC}
s_addc_u32 s{sACC+1}, s{P_WS+1}, 0
s_add_u32 s{sACCN}, s{sACC}, {acc_step()}
s_addc_u32 s{sACCN+1}, s{sACC+1}, 0
s_mul_i32 s48, s{sG}, {GS}
s_add_u32 s48, s48, {WS_BR}
s_add_u32 s{sB}, s{P_WS}, s48
s_addc_u32 s{sB+1}, s{P_WS+1}, 0
s_add_u32 s{sBO}, s{sB}, {BR_SLOT}
s_addc_u32 s{sBO+1}, s{sB+1}, 0
s_add_u32 s{sK}, s{P_WS}, {WS_KB}
s_addc_u32 s{sK+1}, s{P_WS+1}, 0
s_add_u32 s{sV}, s{P_WS}, {WS_VB}
s_addc_u32 s{sV+1}, s{P_WS+1}, 0
s_add_u32 s{sKVM}, s{P_WS}, {WS_OP - 2*524288}
s_addc_u32 s{sKVM+1}, s{P_WS+1}, 0
v_mov_b32 v11, -1""")
    e("""v_and_b32 v12, 3, v0
v_bfe_u32 v13, v0, 2, 3
v_lshrrev_b32 v14, 5, v0""")
    e("""v_mov_b32 v2, 0x4444
v_mov_b32 v15, 0xeeee
v_and_b32 v16, 8, v0
v_cmp_ne_u32 vcc, 0, v16
v_cndmask_b32 v2, v2, v15, vcc""")
    e(f"""s_lshl_b32 s48, s{S_WAVE}, 4
v_lshlrev_b32 v15, 2, v12
v_lshlrev_b32 v16, 1, v14
v_add3_u32 v15, v15, v16, s48
v_add_u32 v16, 1, v15
v_lshlrev_b32 v17, 5, v12
v_lshl_add_u32 v17, v14, 1, v17
v_add_u32 v17, 13, v17
v_add_u32 v18, 16, v17
s_cmp_eq_u32 s{S_WAVE}, 4
s_cselect_b64 s[48:49], -1, 0
v_cndmask_b32 v15, v15, v17, s[48:49]
v_cndmask_b32 v16, v16, v18, s[48:49]""")
    e("""v_cmp_le_u32 s[50:51], 2, v12
s_and_b64 s[50:51], s[50:51], s[48:49]
v_cmp_eq_u32 s[52:53], 2, v12
s_and_b64 s[52:53], s[52:53], s[48:49]
v_cmp_eq_u32 s[54:55], 3, v12""")
    for col, dst in ((15, 7), (16, 8)):
        e(f"""v_lshrrev_b32 v17, 2, v{col}
v_mul_u32_u24 v17, 160, v17
v_and_b32 v18, 3, v{col}
v_lshlrev_b32 v18, 5, v18
v_add_u32 v17, v17, v18
v_lshl_add_u32 v17, v13, 2, v17
v_add_u32 v{dst}, {R2}, v17""")
    e(f"""v_mov_b32 v17, {R2+132}
v_mov_b32 v18, {R2+132}
v_cndmask_b32 v7, v7, v18, s[50:51]
v_cndmask_b32 v8, v8, v18, s[52:53]
v_cndmask_b32 v8, v8, v17, s[54:55]""")
    e(f"""s_mul_i32 s67, s{sM}, 5
s_add_u32 s67, s67, s{S_WAVE}
s_mul_i32 s67, s67, {acc_piece()}
v_lshlrev_b32 v9, 2, v0
v_add_u32 v9, s67, v9""")
    Ln0 = e.label("Lnomem0")
    e(f"""s_cmp_lg_u32 s{sG}, 0
s_cbranch_scc1 {Ln0}
s_cmp_gt_u32 s{S_WAVE}, 4
s_cbranch_scc1 {Ln0}
s_lshl_b32 s48, s{sM}, 7
v_lshlrev_b32 v17, 11, v13
v_add_u32 v17, s48, v17
v_and_b32 v15, 63, v15
v_and_b32 v16, 63, v16
v_lshl_add_u32 v15, v15, 1, v17
v_lshl_add_u32 v16, v16, 1, v17
global_load_ushort v24, v15, s[{P_MEM0}:{P_MEM0+1}]
global_load_ushort v25, v16, s[{P_MEM0}:{P_MEM0+1}]
v_cndmask_b32 v26, -1, 0, s[50:51]
s_or_b64 s[52:53], s[52:53], s[54:55]
v_cndmask_b32 v27, -1, 0, s[52:53]
v_mov_b32 v17, 0x41000000
v_cndmask_b32 v28, 0, v17, s[54:55]
{Ln0}:""")
    Lz = e.label("Lz")
    e(f"""s_mul_i32 s48, s{S_WG}, 640
s_lshl_b32 s49, s{S_WAVE}, 6
s_add_u32 s48, s48, s49
v_mov_b64 v[16:17], 0
v_mov_b64 v[18:19], 0""")
    for rep in range(2):
        if rep: e(f"s_cmp_gt_u32 s{S_WAVE}, 1\ns_cbranch_scc1 {Lz}\ns_add_u32 s48, s48, 512")
        e("v_add_u32 v15, s48, v0")
        if SPREAD: e("v_lshrrev_b32 v20, 10, v15\nv_lshlrev_b32 v15, 4, v15\nv_lshl_add_u32 v15, v20, 8, v15")
        else: e("v_lshlrev_b32 v15, 4, v15")
        e(f"global_store_dwordx4 v15, v[16:19], s[{sACCN}:{sACCN+1}] sc1")
    e(f"{Lz}:")
    LS2i, Lji = e.label("LS2i"), e.label("Lji")
    e(f"""s_lshr_b32 s48, s{sM}, 2
s_mul_i32 s48, s48, {HS}
s_and_b32 s49, s{sM}, 3
s_cmp_ge_u32 s{S_WAVE}, 4
s_cbranch_scc1 {LS2i}""")
    e(f"""s_and_b32 s50, s{S_WAVE}, 1
s_lshl_b32 s51, s50, 3
v_lshl_add_u32 v15, v12, 1, v14
v_add_u32 v15, s51, v15
v_mul_u32_u24 v15, 96, v15
v_lshl_add_u32 v15, v13, 2, v15
v_add_u32 v4, {R1 + 2*1536}, v15
v_add_u32 v5, 32, v4
s_lshl_b32 s49, s49, 9
s_lshl_b32 s50, s50, 8
s_add_u32 s48, s48, s49
s_add_u32 s48, s48, s50
s_add_u32 s48, s48, 4096
s_branch {Lji}
{LS2i}:""")
    e(f"""s_lshl_b32 s51, s{sW}, 2
v_add_u32 v15, s51, v12
v_mul_u32_u24 v15, 96, v15
v_lshl_add_u32 v15, v13, 2, v15
v_xor_b32 v16, 1, v14
v_mul_u32_u24 v16, 1536, v16
v_add3_u32 v4, v15, v16, {R1}
v_add_u32 v5, 32, v4
s_lshl_b32 s49, s49, 10
s_lshl_b32 s50, s{sW}, 8
s_add_u32 s48, s48, s49
s_add_u32 s48, s48, s50
{Lji}:
v_lshlrev_b32 v6, 2, v0
v_add_u32 v6, s48, v6""")
    e(f"""global_store_dword v6, v11, s[{sB}:{sB+1}] sc1
global_store_dword v6, v11, s[{sBO}:{sBO+1}] sc1
s_min_u32 s48, s{S_WAVE}, 2
s_mul_i32 s49, s{S_WG}, 3
s_add_u32 s48, s48, s49
s_lshl_b32 s48, s48, 8
s_add_u32 s48, s48, {WS_PR}
v_lshl_add_u32 v15, v0, 2, s48
global_store_dword v15, v11, s[{P_WS}:{P_WS+1}] sc1
""")
    def arrive(n):
        La = e.label("La")
        e(f"""s_waitcnt vmcnt({n})
s_cmp_lg_u32 s{sG}, 0
s_cbranch_scc1 {La}_n
s_cmp_gt_u32 s{S_WAVE}, 4
s_cbranch_scc1 {La}_n
v_and_b32 v24, v24, v26
v_and_b32 v25, v25, v27
v_lshl_or_b32 v24, v25, 16, v24
v_or_b32 v24, v24, v28
global_store_dword v9, v24, s[{sACC}:{sACC+1}] sc1
s_waitcnt vmcnt(0)
{La}_n:
s_barrier""")
        stamp(e, 6, True)
        e(f"""s_cmp_lg_u32 s{S_WAVE}, 7
s_cbranch_scc1 {La}
s_getreg_b32 s48, hwreg(HW_REG_XCC_ID)
s_and_b32 s48, s48, 15
s_mul_i32 s49, s48, s48
s_lshl_b32 s49, s49, 8
s_add_u32 s48, s48, s49
s_lshl_b32 s48, s48, 8
s_add_u32 s48, s48, 1
s_lshl_b32 s49, s{sG}, 2
s_mov_b64 exec, 1
v_mov_b32 v15, s49
v_mov_b32 v16, s48
global_atomic_add v15, v16, s[{P_DBG}:{P_DBG+1}] offset:{DBG_XCC}
s_mov_b64 exec, -1
{La}:""")
    LS2 = e.label("LS2")
    e(f"s_cmp_ge_u32 s{S_WAVE}, 4\ns_cbranch_scc1 {LS2}")

    def wait_start():
        stamp(e, 7, True)
        Lw = e.label("Lws")
        e(f"""v_and_b32 v12, 7, v0
v_lshlrev_b32 v12, 2, v12
{Lw}:
s_sleep 4
global_load_dword v14, v12, s[{P_DBG}:{P_DBG+1}] offset:{DBG_XCC} sc1
s_add_u32 s{sSpin}, s{sSpin}, 1
s_cmp_gt_u32 s{sSpin}, {SPIN_MAX}
s_cbranch_scc1 {Lfail}
s_waitcnt vmcnt(0)
v_and_b32 v13, 255, v14
v_cmp_ne_u32 vcc, 16, v13
s_cbranch_vccnz {Lw}
v_readlane_b32 s48, v14, s{sG}
s_bfe_u32 s49, s48, 0x80008
s_mul_i32 s49, s49, s49
s_lshr_b32 s48, s48, 16
s_lshl_b32 s48, s48, 4
s_sub_u32 s{sMode}, s48, s49""")
    nextrow = f"""s_add_u32 s54, s54, {16*8192}
s_bitcmp1_b32 s54, 19
s_cselect_b32 s55, {192*8192}, 0
s_add_u32 s54, s54, s55"""

    W1 = 64; G = 20; AC = 40
    e(f"""s_lshl_b32 s48, s{sG}, 2
s_lshr_b32 s49, s{sM}, 2
s_add_u32 s48, s48, s49
s_lshl_b32 s48, s48, 8
s_and_b32 s49, s{sM}, 3
s_lshl_b32 s49, s49, 6
s_add_u32 s48, s48, s49
s_lshl_b32 s49, s{sW}, 19
s_add_u32 s52, s48, s49
v_lshrrev_b32 v12, 2, v0
v_lshlrev_b32 v12, 13, v12
v_and_b32 v13, 3, v0
v_lshl_add_u32 v12, v13, 4, v12
s_lshl_b32 s53, s{sW}, 15""")
    e(f"""v_lshrrev_b32 v13, 5, v0
v_lshlrev_b32 v13, 6, v13
v_bfe_u32 v14, v0, 4, 1
v_lshl_add_u32 v13, v14, 3, v13
v_bfe_u32 v14, v0, 2, 2
v_add_u32 v13, v13, v14
v_lshlrev_b32 v13, 6, v13
v_and_b32 v14, 3, v0
v_lshl_add_u32 v13, v14, 3, v13
v_add_u32 v13, s53, v13""")
    def w1_dma(both):
        L = e.label("Lw1")
        e(f"""s_mov_b32 m0, s53
s_mov_b32 s54, 0
{L}:
buffer_load_dwordx4 v12, s[{SRD_W}:{SRD_W+3}], s54 offen lds""")
        if both: e(f"s_add_u32 m0, m0, 16384\nbuffer_load_dwordx4 v12, s[{SRD_O}:{SRD_O+3}], s54 offen lds")
        e(f"""s_add_u32 m0, m0, {hex((1024 - 16384 * both) & 0xffffffff)}
{nextrow}
s_cmp_lt_u32 s54, {1024*8192}
s_cbranch_scc1 {L}""")
    def w1_read(mat, half):
        for ch in range(2):
            for i in range(4):
                r = W1 + ((2 * mat + ch) * 4 + i) * 8
                for q in range(2):
                    for h in range(2):
                        e(f"ds_read_b64_tr_b16 v[{r+4*q+2*h}:{r+4*q+2*h+1}], v13 offset:{half*16384 + (128*q + 16*i + 4*h)*64 + 32*ch}")
    make_srd(e, SRD_W, P_BWQ, 52, 0, 8388608); make_srd(e, SRD_O, P_BWK, 52, 0, 8388608)
    w1_dma(1)
    arrive(32)
    make_srd(e, SRD_W, P_BWV, 52, 0, 8388608)
    e("s_waitcnt vmcnt(0)")
    stamp(e, 8, True)
    w1_read(0, 0)
    e("s_waitcnt lgkmcnt(0)")
    w1_dma(0)
    w1_read(1, 1)
    e("s_waitcnt vmcnt(0)")
    w1_read(2, 0)
    e(f"""v_lshrrev_b32 v1, 4, v0
v_lshl_add_u32 v1, v1, 2, s{sW}
v_mul_u32_u24 v1, {5*acc_piece()}, v1
v_and_b32 v14, 15, v0
v_lshl_add_u32 v1, v14, 4, v1
v_lshrrev_b32 v15, 5, v0
v_lshl_add_u32 v14, v15, 4, v14
v_lshrrev_b32 v15, 1, v14
v_mul_u32_u24 v15, 96, v15
v_and_b32 v14, 1, v14
v_lshl_add_u32 v15, v14, 5, v15
v_bfe_u32 v14, v0, 4, 1
v_lshl_add_u32 v15, v14, 4, v15
s_mul_i32 s48, s{sW}, 4608
s_add_u32 s48, s48, {R1}
v_add_u32 v3, s48, v15
s_waitcnt lgkmcnt(0)""")
    make_srd(e, SRD_X, P_WS, None, 0, WS_SIZE)
    e(f"""s_and_b32 s48, s{S_WAVE}, 1
s_mul_i32 s47, s48, 1536
s_add_u32 s54, s47, {PL}
s_mul_i32 s53, s{sW}, 3072
s_sub_u32 s52, s53, s47
s_add_u32 s53, s53, {PL}
s_mul_i32 s49, s{sG}, 12288
s_add_u32 s47, s47, s49
s_add_u32 s47, s47, {WS_PR}
s_lshl_b32 s48, s48, 11
s_lshl_b32 s43, s{S_WG}, 12
s_add_u32 s43, s43, s48
s_lshr_b32 s48, s{S_WAVE}, 1
s_mul_i32 s42, s48, 3072
s_add_u32 s42, s42, {YD}
s_lshl_b32 s48, s48, 10
s_add_u32 s43, s43, s48""")
    wait_start()
    e("s_barrier")
    e("s_barrier")
    e("s_setprio 3\ns_mov_b32 s67, 0x41000000")
    if common.DIAG: e("s_mov_b32 s85, 0\ns_mov_b32 s83, 0")
    stamp(e, 1, True)
    L1, LpA, L1x = e.label("L1"), e.label("LpA"), e.label("L1x")
    assert not SPREAD
    xstore = f"global_store_dwordx4 v15, v[16:19], s[{sKVM}:{sKVM+1}] {LF[XSF]}"
    e("v_lshl_add_u32 v15, v0, 4, s43")
    e(f"{L1}:")
    if not XT: tr(e, 7)
    e(f"{LpA}:")
    tr(e, 0)
    lda = lambda f: "\n".join(f"global_load_dwordx4 v[{G+4*i}:{G+4*i+3}], v1, s[{sACC}:{sACC+1}] offset:{256*i} {f}" for i in (4, 0, 1, 2, 3))
    e(lda(LF[AF]) + f"\n{LpA}_j:")
    if STL == 1: e(xstore)
    if VLATE: e(f"s_lshl_b32 s48, s{sW}, 2\nv_mov_b32 v12, s48\nv_mov_b32 v13, s{sStep}")
    flg = f"ds_write_b32 v12, v13 offset:{FL}" if VLATE else ""
    if VARR < 0: e(flg)
    e(f"s_add_u32 s{sSpin}, s{sSpin}, 1\ns_cmp_gt_u32 s{sSpin}, {SPIN_MAX}\ns_cbranch_scc1 {Lfail}")
    for r in range(0, 24, 2): e(f"v_mov_b64 v[{AC+r}:{AC+r+1}], 0")
    def sm1(c, i):
        w = W1 + (c * 4 + i) * 8
        return f"v_smfmac_f32_16x16x64_bf16 v[{AC+4*c}:{AC+4*c+3}], v[{G+4*i}:{G+4*i+3}], v[{w}:{w+7}], v2"
    def arr(i):
        d3 = G + 4 * i + 3
        e(f"s_waitcnt vmcnt({3-i+(STL == 1)})")
        if i == 3: tr(e, 1)
        if i == VARR: e(flg)
        e(f"v_min_u32 v10, v{d3}, v{G+19 if i == 0 else 10}")
        e(f"v_perm_b32 v{d3}, v{G+16+i//2}, v{d3}, s{sSelO if i & 1 else sSelE}")
    def epi(p):
        a, b = AC + 8 * p, AC + 8 * p + 4
        return [f"v_permlane32_swap_b32 v{a+r}, v{b+r}" for r in range(4)] + [f"v_add_f32 v{a+r}, v{a+r}, v{b+r}" for r in range(4)] + [f"ds_write_b128 v3, v[{a}:{a+3}] offset:{p*1536}"]
    chkA = f"v_cmp_gt_u32 vcc, s67, v10"
    if SPLIT:
        arr(0); e(sm1(0, 0)); e(sm1(1, 0)); e(sm1(2, 0))
        arr(1); e(sm1(3, 0)); e(sm1(0, 1))
        arr(2); e(sm1(1, 1)); e(sm1(0, 2))
        arr(3); e(sm1(1, 2))
        e(chkA); e(sm1(0, 3)); e(f"s_cbranch_vccnz {LpA}_retry"); e(sm1(1, 3))
        e(sm1(2, 1) + "\ns_nop 1"); e(sm1(3, 1) + "\ns_nop 1"); e(sm1(2, 2) + "\ns_nop 0")
        f = epi(0)
        for c, i in ((3, 2), (2, 3), (3, 3), (4, 0)):
            e(sm1(c, i)); e(f.pop(0)); e(f.pop(0))
        e(f.pop(0)); e(sm1(5, 0))
        for x in epi(1): e(x)
        e(f"s_setprio {P1B}")
        e(sm1(4, 1)); e(sm1(5, 1))
        tr(e, 2)
        e("s_waitcnt lgkmcnt(0)\ns_barrier")
        for c, i in ((4, 2), (5, 2), (4, 3), (5, 3)): e(sm1(c, i))
        for x in epi(2): e(x)
    else:
        f = epi(0) + epi(1) + epi(2)
        arr(0)
        for c in range(5): e(sm1(c, 0))
        arr(1); e(sm1(5, 0))
        for c in range(3): e(sm1(c, 1))
        arr(2); e(sm1(3, 1))
        e(sm1(0, 2)); arr(3); e(sm1(1, 2))
        e(chkA); e(sm1(0, 3)); e(f"s_cbranch_vccnz {LpA}_retry"); e(sm1(1, 3))
        for c, i in ((2, 2), (3, 2), (2, 3), (3, 3)): e(sm1(c, i) + "\ns_nop 0")
        for c, i in ((4, 1), (5, 1), (4, 2), (5, 2), (4, 3), (5, 3)):
            e(sm1(c, i)); e(f.pop(0)); e(f.pop(0))
        for x in f: e(x)
        tr(e, 2)
    tail.append(f"{LpA}_retry:\ns_nop 7\ns_sleep {ASL}\n" + ("s_add_u32 s85, s85, 1\n" if common.DIAG else "") + lda(LF[ARF]) + f"\ns_branch {LpA}_j")
    e(f"s_setprio {P1B}\ns_waitcnt lgkmcnt(0)\ns_barrier")
    tr(e, 3)
    Lnp = e.label("Lnp")
    e(f"s_cmp_gt_u32 s{S_WAVE}, 1\ns_cbranch_scc1 {Lnp}_o")
    reduce4(e, 4, 5, 18, 24)
    publish_B(e, tail, 24)
    e(f"{'s_waitcnt vmcnt(0)' if ACK1 else ''}\n{Lnp}:")
    tail.append(f"""{Lnp}_o:
s_sleep {XW23}
s_lshl_b32 s48, s{S_WG}, 3
s_add_u32 s48, s48, s{S_WAVE}
s_cmp_lg_u32 s48, 2
s_cbranch_scc1 {Lnp}
v_mov_b32 v20, 0
v_mov_b32 v21, s{sStep}
s_mov_b64 exec, 1
global_store_dword v20, v21, s[{P_DBG}:{P_DBG+1}] offset:{DBG_PROG} sc1
s_mov_b64 exec, -1
s_branch {Lnp}""")
    PXr = [40 + 4 * h for h in range(4)]; PMr = [56 + 2 * h for h in range(4)]; XA = 12; YB = [32, 36, 24, 28]
    ldp = "v_lshlrev_b32 v18, 4, v0\nv_lshlrev_b32 v19, 3, v0\n" + "\n".join(
        f"buffer_load_dwordx4 v[{PXr[h]}:{PXr[h]+3}], v18, s[{SRD_X}:{SRD_X+3}], s{44+h//2} offen offset:{(h%2)*3072} sc1\n"
        f"buffer_load_dwordx2 v[{PMr[h]}:{PMr[h]+1}], v19, s[{SRD_X}:{SRD_X+3}], s{40+h//2} offen offset:{(h%2)*3072} sc1" for h in range(4))
    tr_out(e)
    if common.DIAG and not TRACE:
        e(f"s_cmp_lg_u32 s{sStep}, 16\ns_cbranch_scc1 {Lnp}_s16"); stamp(e, 9, True); e(f"{Lnp}_s16:")
    e(f"""{Lnp}_e:
s_xor_b32 s42, s42, {YD ^ YD2}
s_add_u32 s44, s{sStep}, 3
s_and_b32 s44, s44, 3
s_mul_i32 s44, s44, {PR_SLOT}
s_add_u32 s44, s44, s47
s_add_u32 s45, s44, 6144
s_add_u32 s40, s44, 1024
s_add_u32 s41, s45, 1024
v_lshl_add_u32 v20, v0, 4, s42
v_add_u32 v21, 8, v20""")
    e(rn_setup(23, 24))
    rd = [(h, k) for h in (0, 2) for k in range(6)]
    def rdy(i):
        h, k = rd[i]; b = YB[i % 4]
        if k < 4: return f"ds_read_b128 v[{b}:{b+3}], v20 offset:{(h + k//2)*6144 + (k%2)*1024}"
        return f"ds_read2st64_b64 v[{b}:{b+3}], v{20 + k - 4} offset0:{12*h + 4} offset1:{12*h + 16}"
    rdp = [f"ds_read_b128 v[{PXr[h]}:{PXr[h]+3}], v22 offset:{h*3072}" for h in range(4)] + [f"ds_read2st64_b64 v[{PMr[h]}:{PMr[h]+3}], v25 offset0:{6*h + 2} offset1:{6*h + 8}" for h in (0, 2)]
    e(f"""s_cmp_eq_u32 s{sStep}, 64
s_cbranch_scc1 {Lnp}_f
s_add_u32 s55, s44, s52
s_mov_b32 m0, s53
v_lshlrev_b32 v14, 4, v0
v_lshl_add_u32 v22, v0, 4, s54
v_lshl_add_u32 v25, v0, 3, s54
s_lshl_b32 s48, s{sW}, 2
s_add_u32 s49, s{sStep}, 1
v_mov_b32 v26, s48
v_mov_b32 v27, s49
v_and_b32 v12, {7 if PPRE else 3}, v0
v_lshlrev_b32 v12, 2, v12
s_sleep {XW}""")
    for x in range(3): e(f"buffer_load_dwordx4 v14, s[{SRD_X}:{SRD_X+3}], s55 offen offset:{x*1024} sc1 lds")
    if RLATE:
        e(f"s_cmp_gt_u32 s{S_WAVE}, 1\ns_cbranch_scc1 {Lnp}_rs"); reset_B(e, tail); e(f"{Lnp}_rs:")
    e(f"""s_waitcnt vmcnt(0)
ds_write_b32 v26, v27 offset:{FL3 + 16}
{Lnp}_w:
s_sleep {FSL}
ds_read_b32 v13, v12 offset:{FL3}
s_add_u32 s{sSpin}, s{sSpin}, 1
s_cmp_gt_u32 s{sSpin}, {SPIN_MAX}
s_cbranch_scc1 {Lfail}
s_waitcnt lgkmcnt(0)
v_cmp_ge_u32 vcc, s{sStep}, v13
s_cbranch_vccnz {Lnp}_w
{xstore}""")
    if PPRE:
        for x in rdp + [rdy(i) for i in range(PPRE - 1)]: e(x)
    e(f"{Lnp}_g:")
    tail.append(f"{Lnp}_f:\ns_barrier\ns_add_u32 s{sKVM}, s{sKVM}, 524288\ns_addc_u32 s{sKVM+1}, s{sKVM+1}, 0\n" + "\n".join(rdy(i) for i in range(4)) + f"\ns_branch {Lnp}_r")
    e(f"s_add_u32 s{sKVM}, s{sKVM}, 524288\ns_addc_u32 s{sKVM+1}, s{sKVM+1}, 0\ns_setprio 3")
    e("s_barrier")
    tr(e, 4)
    reduce4n(e, 23, 24, 12, 28)
    e(f"global_atomic_pk_add_bf16 v10, v9, v12, s[{sACCN}:{sACCN+1}] sc0")
    tr(e, 5)
    e(f"s_cmp_eq_u32 s{sStep}, 0\ns_cbranch_scc1 {Lnp}_q")
    if not PPRE:
        for x in rdp: e(x)
    for i in range(max(0, PPRE - 1), 4): e(rdy(i))
    e(f"""s_waitcnt lgkmcnt(4)
{Lnp}_c:
v_max3_u32 v13, v43, v47, v51
v_max3_u32 v14, v55, v57, v59
v_max3_u32 v13, v61, v63, v13
v_max_u32 v13, v13, v14
v_cmp_eq_u32 vcc, -1, v13
s_cbranch_vccnz {Lnp}_r""")
    tail.append(f"{Lnp}_r:\n{ldp}\ns_add_u32 s{sSpin}, s{sSpin}, 1\ns_cmp_gt_u32 s{sSpin}, {SPIN_MAX}\ns_cbranch_scc1 {Lfail}\n" + ("s_add_u32 s83, s83, 1\n" if common.DIAG else "") + f"s_waitcnt vmcnt(0)\ns_branch {Lnp}_c")
    nxt = 4
    for i, (h, k) in enumerate(rd):
        b = YB[i % 4]; a = XA + 4 * (k % 2); pr = PXr[h + k // 2] if k < 4 else PMr[h]
        e(f"s_waitcnt lgkmcnt({nxt - 1 - i})")
        e(f"v_mfma_f32_16x16x32_bf16 v[{a}:{a+3}], v[{b}:{b+3}], v[{pr}:{pr+3}], " + ("0" if h == 0 and k < 2 else f"v[{a}:{a+3}]"))
        if nxt < len(rd): e(rdy(nxt)); nxt += 1
    for x in (3, 2, 0, 1): e(f"v_cvt_pk_bf16_f32 v{16+x}, v{XA+2*x}, v{XA+2*x+1}")
    e(f"v_permlane16_swap_b32 v16, v18\nv_permlane16_swap_b32 v17, v19\nv_min_u32 v19, -2, v19\n{Lnp}_q:\nv_lshl_add_u32 v15, v0, 4, s43")
    if not STL: e(xstore)
    if XT: tr(e, 7)
    e(f"s_cmp_ge_u32 s{sStep}, 63\ns_cbranch_scc1 {L1x}")
    advance(e)
    e(f"s_waitcnt vmcnt({0 if STL else 1})")
    tr(e, 6)
    Lr = e.label("Lrank")
    e(f"""v_and_b32 v10, 0xffff0000, v10
v_cvt_u32_f32 v10, v10
v_readlane_b32 s48, v10, 3
s_lshl_b32 s48, s48, 2
s_lshr_b32 s48, {hex(RTAB)}, s48
s_and_b32 s48, s48, 15
{Lr}:
s_cbranch_scc0 {L1}
s_sleep 1
s_sub_u32 s48, s48, 1
s_cmp_lg_u32 s48, 0
s_branch {Lr}
{L1x}:
{xstore if STL else ''}
s_setprio 0
s_add_u32 s{sStep}, s{sStep}, 1
s_cmp_eq_u32 s{sStep}, 64
s_cbranch_scc1 {Lnp}_e
s_branch {L_done}""")

    e(f"{LS2}:")
    T, VV, S0, S1_, SM, PX, PM, YM, O, LS, YX, KX, VX, WO = 28, 44, 52, 56, 60, 64, 68, 72, 88, 104, 108, 124, 156, 188
    ON16, ON32 = 22, 24
    DQ, NEG = 252, 253
    e(f"""s_lshl_b32 s48, s{sG}, 2
s_add_u32 s48, s48, s{sW}
s_lshl_b32 s55, s48, 13
s_lshl_b32 s48, s48, 18
s_lshl_b32 s49, s{sM}, 7
s_add_u32 s52, s48, s49
v_lshrrev_b32 v12, 3, v0
v_lshlrev_b32 v12, 11, v12
v_and_b32 v13, 7, v0
v_lshl_add_u32 v12, v13, 4, v12
s_lshl_b32 s53, s{sW}, 13
s_add_u32 s53, s53, 131072
v_lshrrev_b32 v13, 4, v0
v_lshlrev_b32 v13, 3, v13
v_bfe_u32 v14, v0, 2, 2
v_add_u32 v13, v13, v14
v_lshlrev_b32 v13, 7, v13
v_and_b32 v14, 3, v0
v_lshl_add_u32 v13, v14, 3, v13
v_add_u32 v13, s53, v13""")
    make_srd(e, SRD_W, P_BWO, 52, 0, 8388608)
    def vpf():
        e(f"""s_lshl_b32 s48, s{sG}, 2
s_lshr_b32 s49, s{sM}, 2
s_add_u32 s48, s48, s49
s_lshl_b32 s48, s48, 8
s_and_b32 s49, s{sM}, 3
s_lshl_b32 s49, s49, 6
s_add_u32 s48, s48, s49
s_lshl_b32 s49, s{sW}, 19
s_add_u32 s48, s48, s49
v_lshrrev_b32 v14, 2, v0
v_lshlrev_b32 v14, 13, v14
v_and_b32 v15, 3, v0
v_lshl_add_u32 v14, v15, 4, v14""")
        make_srd(e, SRD_X, P_BWV, 48, 0, 8388608)
        L = e.label("Lvpf")
        e(f"s_mov_b32 s54, 0\n{L}:\nbuffer_load_dwordx4 v[64:67], v14, s[{SRD_X}:{SRD_X+3}], s54 offen\n{nextrow.replace('s55', 's49')}\ns_cmp_lt_u32 s54, {1024*8192}\ns_cbranch_scc1 {L}")
    vpf()
    for rnd in range(2):
        L = e.label("Lwo")
        e(f"""s_mov_b32 m0, s53
s_mov_b32 s54, {rnd*64*2048}
{L}:
buffer_load_dwordx4 v12, s[{SRD_W}:{SRD_W+3}], s54 offen lds
s_add_u32 s54, s54, {8*2048}
s_add_u32 m0, m0, 1024
s_cmp_lt_u32 s54, {(rnd+1)*64*2048}
s_cbranch_scc1 {L}""")
        if rnd == 0: arrive(24)
        e("s_waitcnt vmcnt(0)")
        for ct in range(4):
            for jj in range(2):
                r = WO + (ct * 4 + rnd * 2 + jj) * 4
                for h in range(2):
                    e(f"ds_read_b64_tr_b16 v[{r+2*h}:{r+2*h+1}], v13 offset:{(32*jj + 4*h)*128 + 32*ct}")
        e("s_waitcnt lgkmcnt(0)")
    e(f"""s_mul_i32 s48, s{sW}, {HS}
v_lshlrev_b32 v14, 4, v0
v_add_u32 v1, s48, v14
v_add_u32 v20, s55, v14
s_lshl_b32 s49, s{sM}, 9
s_add_u32 s55, s55, s49
s_add_u32 s55, s55, {2*KVSTEP}
v_and_b32 v15, 15, v0
v_lshrrev_b32 v16, 2, v15
v_mul_u32_u24 v16, 160, v16
v_and_b32 v15, 3, v15
v_lshl_add_u32 v16, v15, 5, v16
v_bfe_u32 v15, v0, 4, 1
v_lshl_add_u32 v16, v15, 4, v16
s_mul_i32 s48, s{sW}, 2560
s_add_u32 s48, s48, {R2}
v_add_u32 v3, s48, v16
v_mov_b32 v{ON32}, 0x3f803f80
v_mov_b32 v{ON32+1}, 0x3f803f80
v_mov_b32 v{ON32+2}, 0x3f803f80
v_mov_b32 v{ON32+3}, 0x3f803f80
v_cmp_gt_u32 vcc, 32, v0
v_cndmask_b32 v{ON16}, 0, v{ON32}, vcc
v_cndmask_b32 v{ON16+1}, 0, v{ON32}, vcc""")
    e(f"""v_and_b32 v15, 15, v0
v_lshrrev_b32 v16, 4, v0
s_mul_i32 s48, s{sW}, 6144
s_add_u32 s48, s48, {YD}
v_lshl_add_u32 v21, v0, 4, s48
s_and_b32 s48, s{sM}, 3
s_lshl_b32 s49, s48, 3
v_lshlrev_b32 v16, 2, v16
v_sub_u32 v15, v15, v16
v_add_u32 v15, s49, v15
s_mov_b32 s40, 0xff00ff00
s_mov_b32 s41, 0xff00ff00
v_cndmask_b32 v{DQ}, v15, 64, s[40:41]
v_mov_b32 v{NEG}, 0xf149f2ca
s_lshr_b32 s49, s48, 1
s_and_b32 s48, s48, 1
s_lshl_b32 s48, s48, 7
s_lshl_b32 s{sQ}, s49, 12
s_add_u32 s{sQ}, s{sQ}, s48
s_sub_u32 s55, s55, s{sQ}
s_mul_i32 s42, s{sW}, 3072
s_mul_i32 s43, s{sG}, 12288
s_add_u32 s42, s42, s43
s_mul_i32 s43, s49, 1536
s_add_u32 s42, s42, s43
s_add_u32 s43, s42, s48
s_lshr_b32 s48, s48, 1
s_add_u32 s44, s42, s48
s_add_u32 s44, s44, 1024
s_lshr_b32 s45, s{sM}, 2""")
    make_srd(e, SRD_X, P_WS, None, WS_QB, WS_SIZE)
    e(rn_setup(254, 255))
    wait_start()
    e("s_barrier")
    e(f"""s_mul_i32 s48, s{sW}, 2560
s_add_u32 s48, s48, {R2+128}
v_mov_b32 v12, s48
v_mov_b32 v14, 0x3e800000
v_mov_b32 v15, 0
ds_write_b64 v12, v[14:15]""")
    kv_wait(e, Lfail, 0)
    e(f"""s_waitcnt lgkmcnt(0)
s_barrier
s_setprio 2
v_mov_b32 v14, s{sC}
v_cmp_gt_u32 vcc, 32, v0
v_cndmask_b32 v14, v14, 1.0, vcc
v_and_b32 v15, 15, v0
s_lshl_b32 s48, s{sW}, 2
s_add_u32 s48, s48, {RL}
v_lshl_add_u32 v15, v15, 4, s48
v_mov_b32 v16, 0
ds_write_b32 v15, v16 offset:256
ds_write_b32 v15, v16 offset:272
v_mov_b32 v16, 1
v_add_u32 v18, 4096, v1
v_add_u32 v19, 4096, v20
s_cmp_eq_u32 s45, s{sW}
s_cselect_b32 s52, 0x00ff00ff, 0
s_mov_b32 s53, s52
s_or_b64 vcc, s[52:53], s[40:41]
v_mov_b32 v17, 0x3c000000
v_cndmask_b32 v17, -1, v17, vcc
s_mov_b32 s46, 0x21800000""")
    def kv_loads(reg, base):
        if NOKV & (1 if reg == KX else 2): return ["s_nop 0"] * 8
        return [f"global_load_dwordx4 v[{reg+4*x}:{reg+4*x+3}], v{20 if x < 4 else 19}, s[{base}:{base+1}] offset:{(x%4)*1024} {LF[KVF]}" for x in range(8)]
    def yacc(ct, tt): return T + (ct * 2 + tt) * 4
    def yx_mf():
        return [f"v_mfma_f32_16x16x32_bf16 v[{yacc(ct,tt)}:{yacc(ct,tt)+3}], v[{VX+(tt*4+ks)*4}:{VX+(tt*4+ks)*4+3}], v[{WO+(ct*4+ks)*4}:{WO+(ct*4+ks)*4+3}], " + ("0" if ks == 0 else f"v[{yacc(ct,tt)}:{yacc(ct,tt)+3}]")
                for ks in range(4) for tt in range(2) for ct in range(4)]
    def yx_cvt():
        return [f"v_cvt_pk_bf16_f32 v{YX+ct*4+x}, v{yacc(ct,0)+2*x}, v{yacc(ct,0)+2*x+1}" for ct in range(4) for x in range(4)] + [f"v_mov_b64 v[{YM+r}:{YM+r+1}], 0" for r in range(0, 16, 2)]
    def q_loads():
        L = [f"buffer_load_dwordx4 v[{O+4*x}:{O+4*x+3}], v20, s[{SRD_X}:{SRD_X+3}], s{sQ} offen offset:{x*1024} {LF[KVF]}" for x in range(4)]
        return ("s_mov_b64 exec, s[52:53]\n" if QONE else "s_not_b64 exec, s[40:41]\n") + "\n".join(L) + f"\ns_mov_b64 exec, -1\ns_add_u32 s{sQ}, s{sQ}, {KVSTEP}"
    def mask_init():
        m = ["vcc", "s[48:49]", "s[50:51]", "s[54:55]"]
        return [x for h in range(2) for x in [f"v_cmp_gt_i32 {m[r]}, {r + 16*h}, v{DQ}" for r in range(4)] + [f"v_cndmask_b32 v{S0+4*h+r}, 0, v{NEG}, {m[r]}" for r in range(4)]]
    kvadv = f"""s_add_u32 s{sV}, s{sV}, {KVSTEP}
s_addc_u32 s{sV+1}, s{sV+1}, 0
s_add_u32 s{sK}, s{sK}, {KVSTEP}
s_addc_u32 s{sK+1}, s{sK+1}, 0"""
    E = T
    def xpart(ld):
        Lp, Lv = e.label("Lxp"), e.label("Lv")
        e(f"s_cmp_eq_u32 s45, s{sW}\ns_cbranch_scc1 {Lp}")
        def pst(f): return f"""buffer_store_dwordx4 v[{PX}:{PX+3}], v12, s[{SRD_X}:{SRD_X+3}], s48 offen {f}
buffer_store_dwordx2 v[{PM}:{PM+1}], v13, s[{SRD_X}:{SRD_X+3}], s48 offen {f}
buffer_store_dwordx4 v[{SM}:{SM+3}], v12, s[{SRD_X}:{SRD_X+3}], s49 offen {f}
buffer_store_dwordx2 v[{SM}:{SM+1}], v13, s[{SRD_X}:{SRD_X+3}], s49 offen {f}
s_mov_b64 exec, -1
{f's_cmp_lg_u32 s{sStep}, 63' if PBL else ''}
{f's_cbranch_scc1 {Lv}_t' if PBL else ''}
s_branch {Lv}"""
        tail.append(f"""{Lp}:
""" + "\n".join(f"v_mul_f32 v{r}, v{r}, v{LS+1}" for r in list(range(E + 8, E + 12)) + list(range(E, E + 8))) + f"""
v_cvt_pk_bf16_f32 v{PM}, v{E+8}, v{E+9}
v_cvt_pk_bf16_f32 v{PM+1}, v{E+10}, v{E+11}
v_cvt_pk_bf16_f32 v{PX}, v{E}, v{E+1}
v_mov_b32 v{PM+2}, v{PM}
v_mov_b32 v{PM+3}, v{PM+1}
v_cvt_pk_bf16_f32 v{PX+1}, v{E+2}, v{E+3}
v_cvt_pk_bf16_f32 v{PX+2}, v{E+4}, v{E+5}
v_permlane32_swap_b32 v{PM}, v{PM+2}
v_permlane32_swap_b32 v{PM+1}, v{PM+3}
v_cvt_pk_bf16_f32 v{PX+3}, v{E+6}, v{E+7}
{f's_cmp_lg_u32 s{sStep}, 63' if PBL else ''}
{f's_cbranch_scc1 {Lv}' if PBL else ''}
{Lp}_t:
v_lshl_add_u32 v12, v0, 4, s43
v_lshl_add_u32 v13, v0, 3, s44
s_and_b32 s48, s{sStep}, 3
s_mul_i32 s48, s48, {PR_SLOT}
s_add_u32 s48, s48, {WS_PR}
s_add_u32 s49, s{sStep}, 1
s_and_b32 s49, s49, 3
s_mul_i32 s49, s49, {PR_SLOT}
s_add_u32 s49, s49, {WS_PR}
v_mov_b64 v[{SM}:{SM+1}], -1
v_mov_b64 v[{SM+2}:{SM+3}], -1
s_not_b64 exec, s[40:41]
s_cmp_lg_u32 s{sMode}, 0
s_cbranch_scc1 {Lp}_s
{pst('')}
{Lp}_s:
{pst('sc1')}""")
        e(f"{Lv}:")
        if XT == 1: tr(e, 0)
        ld = list(ld)
        dump = [f"ds_write_b128 v21, v[{YX+4*x}:{YX+4*x+3}] offset:{(x//2)*3072 + (x%2)*1024}" for x in range(4)] + [f"ds_write_b128 v21, v[{YM+4*x}:{YM+4*x+3}] offset:{2048+3072*x}" for x in range(2)]
        e(f"s_cmp_eq_u32 s{sStep}, 63\ns_cbranch_scc1 {L2x}")
        tail.append(f"{L2x}:\n" + "\n".join(dump) + f"\ns_waitcnt lgkmcnt(0)\ns_barrier\ns_setprio 0\ns_branch {L_done}")
        if KVE == 1: kv_wait(e, Lfail, 1)
        v = kv_loads(VX, sV)
        vv = [(8 * ks + 4 * tt + 3, v[tt * 4 + ks]) for ks in range(4) for tt in range(2)]
        ld = [(0, l) for l in ld] + vv[:8 - VLATE]
        yc = yx_cvt()
        for i, m in enumerate(yx_mf() + yc[16:] + yc[:16] + mask_init()):
            e(m)
            if i >= KLATE and (i - KLATE) % (XLD if i < 32 else 3 * XLD) == 0 and ld and ld[0][0] <= i: e(ld.pop(0)[1])
            if i >= DUMP0 and (i - DUMP0) % DUMPS == 0 and dump: assert i < 32; e(dump.pop(0))
            if XT == 1 and i == 31: tr(e, 1)
            if KVE > 1 and i == KVE: assert not ld; kv_wait(e, Lfail, 1)
        for l in ld: e(l[1])
        if KVE == 0: kv_wait(e, Lfail, 1)
        kv_wait(e, Lfail, 2)
        if XT == 1: tr(e, 2)
        if not VLATE: e("s_waitcnt lgkmcnt(0)")
        if VLATE:
            Lf = e.label("Lfl")
            e(f"""v_and_b32 v12, 3, v0
v_lshlrev_b32 v12, 2, v12
{Lf}:
{f's_sleep {VSL}' if VSL else ''}
ds_read_b32 v13, v12 offset:{FL}
s_add_u32 s{sSpin}, s{sSpin}, 1
s_cmp_gt_u32 s{sSpin}, {SPIN_MAX}
s_cbranch_scc1 {Lfail}
s_waitcnt lgkmcnt(0)
v_cmp_eq_u32 vcc, s{sStep}, v13
s_cbranch_vccnz {Lf}""")
            if PBL: e(f"s_cmp_eq_u32 s45, s{sW}\ns_cbranch_scc1 {Lp}_t\n{Lv}_t:")
            if QL: e(q_loads())
            for l in vv[8 - VLATE:]: e(l[1])
        e("v_add_u32 v16, 1, v16")
        e(kvadv)
        e(f"v_xor_b32 v21, {YD ^ YD2}, v21")
    for l in kv_loads(VX, sV): e(l)
    for l in kv_loads(KX, sK): e(l)
    e(q_loads())
    e("s_waitcnt vmcnt(12) lgkmcnt(0)")
    for x in yx_mf() + yx_cvt() + mask_init(): e(x)
    e(kvadv)
    for l in kv_loads(VX, sV): e(l)
    e(f"s_add_u32 s{sV}, s{sV}, {KVSTEP}\ns_addc_u32 s{sV+1}, s{sV+1}, 0")
    stamp(e, 8, True)
    L2, LpB, L2x = e.label("L2"), e.label("LpB"), e.label("L2x")
    e(f"{L2}:\ns_barrier")
    tr(e, 0)
    reduce4(e, 4, 5, 18, T, 14)
    publish_B(e, tail, T)
    tr(e, 1)
    if SPLIT: e("s_barrier")
    if DELAY_B >= 0:
        for _ in range(DELAY_B): e("s_nop 7")
    elif ACK_B: e("s_waitcnt vmcnt(0)")
    tr(e, 2)
    e(f"{LpB}:")
    tr(e, 7)
    pieces = [(T + 4 * ks, 1, 1024 * ks) for ks in range(4)] + [(VV + 4 * u, 18, 1024 * u) for u in range(2)]
    ldB = [f"global_load_dwordx4 v[{r}:{r+3}], v{a}, s[{sB}:{sB+1}] offset:{o} sc1" for r, a, o in pieces]
    if LATE_V:
        for l in ldB[:4]: e(l)
        e("s_waitcnt vmcnt(3)" if LATE_V == 1 else f"s_sleep {LATE_V - 1}")
        for l in ldB[4:]: e(l)
    else:
        for l in ldB: e(l)
    def chk(i, mid=""):
        e(f"{LpB}_c{i}:\ns_waitcnt vmcnt({5-i})\nv_cmp_eq_u32 vcc, -1, v{pieces[i][0]+3}\n{mid}\ns_cbranch_vccnz {LpB}_r{i}")
        if RSEL:
            rl = [f"s_mov_b64 exec, vcc\n{ldB[i]}\ns_waitcnt vmcnt(1)"] + [f"s_mov_b64 exec, -1\nv_cmpx_eq_u32 vcc, -1, v{pieces[j][0]+3}\n{ldB[j]}" for j in range(i + 1, 6)] + ["s_mov_b64 exec, -1"]
        else: rl = ldB[i:]
        tail.append(f"{LpB}_r{i}:\n" + "\n".join(rl) + f"\ns_add_u32 s{sSpin}, s{sSpin}, 1\ns_cmp_gt_u32 s{sSpin}, {SPIN_MAX}\ns_cbranch_scc1 {Lfail}\ns_branch {LpB}_c{i}")
    def sc(i):
        return [f"v_mfma_f32_16x16x32_bf16 v[{a}:{a+3}], v[{kreg}:{kreg+3}], v[{O+4*i}:{O+4*i+3}], " + ("0" if i == 0 and a == SM else f"v[{a}:{a+3}]")
                for (a, kreg) in ((S0, KX + i * 4), (S1_, KX + (4 + i) * 4), (SM, T + 4 * i))]
    cn = lambda i: [f"v_cndmask_b32 v{O+4*i+r}, v{O+4*i+r}, v{T+4*i+r}, s[40:41]" for r in range(4)]
    if BPIPE:
        chk(0, "\n".join(cn(0)))
        for i in range(4):
            m = sc(i)
            e(m[0])
            if i < 3:
                c = cn(i + 1)
                chk(i + 1, c[0]); e(m[1]); e(c[1]); e(c[2]); e(c[3]); e(m[2])
            else:
                e(m[1]); e(m[2])
    else:
        for i in range(4):
            chk(i, "\n".join(cn(i)))
            for m in sc(i): e(m)
    tr(e, 3)
    ym = [f"v_smfmac_f32_16x16x64_bf16 v[{YM+4*ct}:{YM+4*ct+3}], v[{VV+4*u}:{VV+4*u+3}], v[{WO+(ct*4+2*u)*4}:{WO+(ct*4+2*u)*4+7}], v2" for u in range(2) for ct in range(4)]
    vl = kv_loads(KX, sK)[:KEARLY]
    def V():
        if vl: e(vl.pop(0))
    ex = [f"v_exp_f32 v{E+i}, v{S0+i}" for i in range(12)]
    cp = [f"v_cvt_pk_bf16_f32 v{PX+x}, v{E+2*x}, v{E+2*x+1}" for x in range(6)]
    dup = [f"v_mov_b32 v{PM+2}, v{PM}", f"v_mov_b32 v{PM+3}, v{PM+1}", f"v_permlane32_swap_b32 v{PM}, v{PM+2}", f"v_permlane32_swap_b32 v{PM+1}, v{PM+3}"]
    cy = [f"v_cvt_pk_bf16_f32 v{YM+x}, v{YM+2*x}, v{YM+2*x+1}" for x in range(8)]
    ox = [f"v_mfma_f32_16x16x32_bf16 v[{O+4*ct}:{O+4*ct+3}], v[{PX}:{PX+3}], v[{YX+4*ct}:{YX+4*ct+3}], 0" for ct in range(4)]
    om = [f"v_mfma_f32_16x16x16_bf16 v[{O+4*ct}:{O+4*ct+3}], v[{PM}:{PM+1}], v[{YM+2*ct}:{YM+2*ct+1}], v[{O+4*ct}:{O+4*ct+3}]" for ct in range(4)]
    lx = f"v_mfma_f32_16x16x32_bf16 v[{LS}:{LS+3}], v[{ON32}:{ON32+3}], v[{PX}:{PX+3}], 0"
    lm = f"v_mfma_f32_16x16x16_bf16 v[{LS}:{LS+3}], v[{ON16}:{ON16+1}], v[{PM}:{PM+1}], v[{LS}:{LS+3}]"
    wr = [f"ds_write_b128 v3, v[{O+4*ct}:{O+4*ct+3}] offset:{ct*640}" for ct in range(4)]
    Lfb = e.label("Lfb")
    if VORD == 0:
        chk(4)
        e(ym[0]); e(ym[1]); e(ex[0]); e(ym[2]); e(ex[1]); e(ym[3]); e(ex[2])
        chk(5, ex[3])
        seq = [ym[4], ex[4], ym[5], ex[5], ym[6], ex[6], ym[7], ex[7], cp[0], cp[1], cp[2], cp[3], ex[8],
               ox[0], ex[9], ox[1], ex[10], ox[2], ex[11], ox[3], cp[4], cp[5],
               lx, dup[0], dup[1], cy[0], cy[1], dup[2], dup[3], cy[2], cy[3],
               om[0], cy[4], cy[5], lm, cy[6], cy[7], om[1], om[2], om[3]]
    else:
        for x in ex[:8] + cp[:4]: e(x)
        chk(4, ex[8])
        e(ym[0]); e(ex[9]); e(ym[1]); e(ex[10]); e(ym[2]); e(ex[11]); e(ym[3])
        chk(5, cp[4])
        seq = [ym[4], cp[5], ym[5], dup[0], dup[1], ym[6], ym[7], dup[2], dup[3], lx, ox[0], ox[1], cy[0], cy[1], ox[2], cy[2], cy[3], ox[3], cy[4], cy[5],
               lm, cy[6], cy[7], om[0], om[1], om[2], om[3]]
    for i, x in enumerate(seq):
        e(x)
        if KPOS >> i & 1: V()
        if SFLAG == i + 1: e("ds_write_b32 v15, v16 offset:256")
        if RLATE == i + 1: reset_B(e, tail)
    if True:
        e(f"v_rcp_f32 v{LS+1}, v{LS}\ns_mov_b32 exec_lo, 0")
        for x in wr: e(x)
        e(f"""s_mov_b32 exec_lo, -1
ds_write_b32 v15, v{LS+1}
v_subrev_u32 v10, s46, v{LS}
v_cmp_lt_u32 vcc, v17, v10""")
    while vl: V()
    e(f"s_cbranch_vccn{'z' if not FORCE_FB else 'z'} {Lfb}" if not FORCE_FB else f"s_branch {Lfb}")
    e(f"{Lfb}_b:")
    fb = [f"""{Lfb}:
v_max3_f32 v12, v{S0}, v{S0+1}, v{S0+2}
v_max3_f32 v13, v{S0+3}, v{S1_}, v{S1_+1}
v_max3_f32 v12, v{S1_+2}, v{S1_+3}, v12
v_max_f32 v12, v12, v13
s_mov_b32 exec_hi, 0
v_max3_f32 v12, v{SM}, v{SM+1}, v12
v_max3_f32 v12, v{SM+2}, v{SM+3}, v12
s_mov_b32 exec_hi, -1
v_mov_b32 v13, v12
v_permlane16_swap_b32 v12, v13
v_max_f32 v12, v12, v13
v_mov_b32 v13, v12
v_permlane32_swap_b32 v12, v13
v_max_f32 v12, v12, v13"""]
    fb += [f"v_sub_f32 v{S0+i}, v{S0+i}, v12" for i in range(12)] + ex + cp + dup + [lx] + ox + [lm] + om
    fb += [f"v_rcp_f32 v{LS+1}, v{LS}\ns_mov_b32 exec_lo, 0"] + wr + [f"s_mov_b32 exec_lo, -1\nds_write_b32 v15, v{LS+1}\ns_branch {Lfb}_b"]
    tail.append("\n".join(fb))
    tr(e, 4)
    e(f"s_waitcnt {f'vmcnt({KEARLY}) ' if RLATE else ''}lgkmcnt(0)\ns_barrier")
    tr(e, 5)
    Lna = e.label("Lna")
    e(f"s_cmp_lg_u32 s{S_WAVE}, 4\ns_cbranch_scc1 {Lna}")
    reduce4n(e, 254, 255, VV, S0)
    e(f"global_atomic_pk_add_bf16 v9, v{VV}, s[{sACCN}:{sACCN+1}]\n{Lna}:")
    xpart(kv_loads(KX, sK)[KEARLY:] + ([] if QL else [q_loads()]))
    tr(e, 6)
    tr_out(e)
    advance(e)
    e(f"s_branch {L2}")
    for t in tail: e(t)
    e(f"""{Lfail}:
s_mov_b64 exec, -1
v_mov_b32 v12, 0
v_mov_b32 v13, 1
global_store_dword v12, v13, s[{P_DBG}:{P_DBG+1}] offset:{DBG_FAIL}
s_endpgm""")

import struct
def f32bits(x): return struct.unpack("<I", struct.pack("<f", x))[0]
```

```python
import common
from common import *
import math

SPREAD = 0
def acc_step(): return 256 if SPREAD else 20480
def acc_piece(): return 65 * 256 if SPREAD else 256
KLATE = 8
DELAY_B = -1
CANARY = 1
CGAP = 2
CTHR = 8
FIX_A = -1
WS_CAN = WS_ACC + 0x180000
BR_G = 24576
WS_PR = WS_BR + 0x80000
PR_SLOT = 98304
BR_SLOT = 8 * BR_G
R1 = 0
R2 = 18432
RL = 28672
YD2 = 65536
YD = 32768
SPIN_MAX = 400000
ACK_B = 1
KVSTEP = 262144
NOKV = 0
LATE_V = 0
XT = 0
XW = 3
STL = 2
PDMA = 1
QL = 0
PPRE = 1
VPF = 1
DUMP0 = 6
DUMPS = 4
SFLAG = 1
XS2 = 10
PBL = 0
KPOS = 0xe000001000
PL = 98304
VSL = 1
QONE = 1
KVE = 1
VARR = -1
VPOST = 0
AF = 1
KVF = 1
LF = ['', 'sc1', 'nt', 'sc0', 'sc1 nt', 'sc0 sc1']
XSF = 1
RTAB = 0x023579bd
FL2 = 29440
FSL = 2
KPRE = 6
FPOS = 1
OOB = 131072
P1B = 1
BPIPE = 1
FINR = 0
VLATE = 8
FL3 = RL + 256 + 240
FL = 29248
XW23 = 9
RSEL = 0
FORCE_FB = 0
VEARLY = 8
EARLY = -1
EGAP = 2
EADD = 0
EW0 = 1
EPRE = 2
EDLY = 0
XST = 0
XSL = 8
XLD = 2
KEARLY = 8
PLATE = 24
NOQ = 0
PREF = 0
RANK_A = 2
PACE_A = 0
DBG_ARRIVE = 0
DBG_XCC = 4
DBG_PROG = 64
DBG_FAIL = 252 - 172

sStep, sSpin, sMode = 64, 65, 66
sACC, sACCN, sB, sBO, sK, sV, sKVM = 68, 70, 72, 74, 76, 78, 60
sSelE, sSelO, sC, sG, sM, sW = 62, 63, 59, 56, 57, 58
sQ, sQL = 60, 61

TRACE = False
WS_TRACE = WS_DIAG + (1 << 20)
def tr(e, i):
    if TRACE: e(f"s_memrealtime s[{86+2*i}:{87+2*i}]")
def tr_out(e):
    if not TRACE: return
    e(f"""s_waitcnt lgkmcnt(0)
s_lshl_b32 s48, s{S_WG}, 3
s_add_u32 s48, s48, s{S_WAVE}
s_lshl_b32 s48, s48, 6
s_add_u32 s48, s48, s{sStep}
s_lshl_b32 s48, s48, 5
s_add_u32 s48, s48, {WS_TRACE}
v_lshlrev_b32 v13, 2, v0
v_add_u32 v13, s48, v13""")
    for i in range(8): e(f"v_writelane_b32 v12, s{86+2*i}, {i}")
    e(f"s_mov_b64 exec, 0xff\nglobal_store_dword v13, v12, s[{P_WS}:{P_WS+1}]\ns_mov_b64 exec, -1")

def reduce4(e, alo, ahi, st, t=12, scale=None):
    e(f"""ds_read2st64_b32 v[{t}:{t+1}], v{alo} offset0:0 offset1:{st}
ds_read2st64_b32 v[{t+2}:{t+3}], v{ahi} offset0:0 offset1:{st}
ds_read2st64_b32 v[{t+4}:{t+5}], v{alo} offset0:{2*st} offset1:{3*st}
ds_read2st64_b32 v[{t+6}:{t+7}], v{ahi} offset0:{2*st} offset1:{3*st}
s_cmp_lg_u32 s{sMode}, 0
s_waitcnt lgkmcnt(2)
v_add_f32 v{t}, v{t}, v{t+1}
v_add_f32 v{t+2}, v{t+2}, v{t+3}""")
    if scale: e(f"v_mul_f32 v{t}, v{t}, v{scale}\nv_mul_f32 v{t+2}, v{t+2}, v{scale}")
    e(f"""s_waitcnt lgkmcnt(0)
v_add_f32 v{t+4}, v{t+4}, v{t+5}
v_add_f32 v{t+6}, v{t+6}, v{t+7}""")
    if scale: e(f"v_fmac_f32 v{t}, v{t+4}, v{scale}\nv_fmac_f32 v{t+2}, v{t+6}, v{scale}")
    else: e(f"v_add_f32 v{t}, v{t}, v{t+4}\nv_add_f32 v{t+2}, v{t+2}, v{t+6}")
    e(f"v_cvt_pk_bf16_f32 v{t}, v{t}, v{t+2}")

def reduce4n(e, ar, one, t, r):
    e(f"""ds_read_b128 v[{r}:{r+3}], v{ar}
ds_read2st64_b32 v[{t}:{t+1}], v7 offset0:0 offset1:10
ds_read2st64_b32 v[{t+2}:{t+3}], v8 offset0:0 offset1:10
ds_read2st64_b32 v[{t+4}:{t+5}], v7 offset0:20 offset1:30
ds_read2st64_b32 v[{t+6}:{t+7}], v8 offset0:20 offset1:30
s_waitcnt lgkmcnt(2)
v_mul_f32 v{t}, v{t}, v{r}
v_fma_f32 v{t+2}, v{t+2}, v{r}, v{one}
v_fmac_f32 v{t}, v{t+1}, v{r+1}
v_fmac_f32 v{t+2}, v{t+3}, v{r+1}
s_waitcnt lgkmcnt(0)
v_fmac_f32 v{t}, v{t+4}, v{r+2}
v_fmac_f32 v{t+2}, v{t+6}, v{r+2}
v_fmac_f32 v{t}, v{t+5}, v{r+3}
v_fmac_f32 v{t+2}, v{t+7}, v{r+3}
v_cvt_pk_bf16_f32 v{t}, v{t}, v{t+2}""")
def rn_setup(ar, one):
    return f"""v_bfe_u32 v{ar}, v0, 2, 3
v_lshlrev_b32 v{ar}, 4, v{ar}
v_add_u32 v{ar}, {RL + 128}, v{ar}
v_and_b32 v{one}, 3, v0
v_cmp_eq_u32 vcc, 3, v{one}
v_cndmask_b32 v{one}, 0, 1.0, vcc"""

def publish_B(e, tail, d=12):
    ls, lb = e.label("Lslow"), e.label("Lback")
    e(f"""v_min_u32 v{d}, -2, v{d}
s_cbranch_scc1 {ls}
global_store_dword v6, v{d}, s[{sB}:{sB+1}]
global_store_dword v6, v11, s[{sBO}:{sBO+1}]
{lb}:""")
    tail.append(f"""{ls}:
global_store_dword v6, v{d}, s[{sB}:{sB+1}] sc1
global_store_dword v6, v11, s[{sBO}:{sBO+1}] sc1
s_branch {lb}""")

def advance(e):
    e(f"""s_add_u32 s{sStep}, s{sStep}, 1
s_mov_b64 s[{sACC}:{sACC+1}], s[{sACCN}:{sACCN+1}]
s_add_u32 s{sACCN}, s{sACCN}, {acc_step()}
s_addc_u32 s{sACCN+1}, s{sACCN+1}, 0
s_mov_b64 s[50:51], s[{sB}:{sB+1}]
s_mov_b64 s[{sB}:{sB+1}], s[{sBO}:{sBO+1}]
s_mov_b64 s[{sBO}:{sBO+1}], s[50:51]""")

def chain(e, L_done, kv_wait=None, arrive_hook=None):
    tail = []
    Lfail = e.label("Lcfail")
    e(f"""s_and_b32 s{sG}, s{S_WG}, 7
s_lshr_b32 s{sM}, s{S_WG}, 3
s_and_b32 s{sW}, s{S_WAVE}, 3
s_mov_b32 s{sStep}, 0
s_mov_b32 s{sSpin}, 0
s_mov_b32 s{sSelE}, 0x05040100
s_mov_b32 s{sSelO}, 0x07060100
s_mov_b32 s{sC}, {hex(f32bits(128 ** -0.5 * math.log2(math.e)))}
s_add_u32 s{sACC}, s{P_WS}, {WS_ACC}
s_addc_u32 s{sACC+1}, s{P_WS+1}, 0
s_add_u32 s{sACCN}, s{sACC}, {acc_step()}
s_addc_u32 s{sACCN+1}, s{sACC+1}, 0
s_mul_i32 s48, s{sG}, {BR_G}
s_add_u32 s48, s48, {WS_BR}
s_add_u32 s{sB}, s{P_WS}, s48
s_addc_u32 s{sB+1}, s{P_WS+1}, 0
s_add_u32 s{sBO}, s{sB}, {BR_SLOT}
s_addc_u32 s{sBO+1}, s{sB+1}, 0
s_add_u32 s{sK}, s{P_WS}, {WS_KB}
s_addc_u32 s{sK+1}, s{P_WS+1}, 0
s_add_u32 s{sV}, s{P_WS}, {WS_VB}
s_addc_u32 s{sV+1}, s{P_WS+1}, 0
s_add_u32 s{sKVM}, s{P_WS}, {WS_OP - 2*524288}
s_addc_u32 s{sKVM+1}, s{P_WS+1}, 0
v_mov_b32 v11, -1""")
    e("""v_and_b32 v12, 3, v0
v_bfe_u32 v13, v0, 2, 3
v_lshrrev_b32 v14, 5, v0""")
    e("""v_mov_b32 v2, 0x4444
v_mov_b32 v15, 0xeeee
v_and_b32 v16, 8, v0
v_cmp_ne_u32 vcc, 0, v16
v_cndmask_b32 v2, v2, v15, vcc""")
    e(f"""s_lshl_b32 s48, s{S_WAVE}, 4
v_lshlrev_b32 v15, 2, v12
v_lshlrev_b32 v16, 1, v14
v_add3_u32 v15, v15, v16, s48
v_add_u32 v16, 1, v15
v_lshlrev_b32 v17, 5, v12
v_lshl_add_u32 v17, v14, 1, v17
v_add_u32 v17, 13, v17
v_add_u32 v18, 16, v17
s_cmp_eq_u32 s{S_WAVE}, 4
s_cselect_b64 s[48:49], -1, 0
v_cndmask_b32 v15, v15, v17, s[48:49]
v_cndmask_b32 v16, v16, v18, s[48:49]""")
    e("""v_cmp_le_u32 s[50:51], 2, v12
s_and_b64 s[50:51], s[50:51], s[48:49]
v_cmp_eq_u32 s[52:53], 2, v12
s_and_b64 s[52:53], s[52:53], s[48:49]
v_cmp_eq_u32 s[54:55], 3, v12""")
    for col, dst in ((15, 7), (16, 8)):
        e(f"""v_lshrrev_b32 v17, 2, v{col}
v_mul_u32_u24 v17, 160, v17
v_and_b32 v18, 3, v{col}
v_lshlrev_b32 v18, 5, v18
v_add_u32 v17, v17, v18
v_lshl_add_u32 v17, v13, 2, v17
v_add_u32 v{dst}, {R2}, v17""")
    e(f"""v_mov_b32 v17, {R2+132}
v_mov_b32 v18, {R2+132}
v_cndmask_b32 v7, v7, v18, s[50:51]
v_cndmask_b32 v8, v8, v18, s[52:53]
v_cndmask_b32 v8, v8, v17, s[54:55]""")
    e(f"""s_mul_i32 s67, s{sM}, 5
s_add_u32 s67, s67, s{S_WAVE}
s_mul_i32 s67, s67, {acc_piece()}
v_lshlrev_b32 v9, 2, v0
v_add_u32 v9, s67, v9""")
    Ln0 = e.label("Lnomem0")
    e(f"""s_cmp_lg_u32 s{sG}, 0
s_cbranch_scc1 {Ln0}
s_cmp_gt_u32 s{S_WAVE}, 4
s_cbranch_scc1 {Ln0}
s_lshl_b32 s48, s{sM}, 7
v_lshlrev_b32 v17, 11, v13
v_add_u32 v17, s48, v17
v_and_b32 v15, 63, v15
v_and_b32 v16, 63, v16
v_lshl_add_u32 v15, v15, 1, v17
v_lshl_add_u32 v16, v16, 1, v17
global_load_ushort v15, v15, s[{P_MEM0}:{P_MEM0+1}]
global_load_ushort v16, v16, s[{P_MEM0}:{P_MEM0+1}]
v_mov_b32 v17, 0x4100
s_waitcnt vmcnt(0)
v_cndmask_b32 v15, v15, 0, s[50:51]
v_cndmask_b32 v16, v16, 0, s[52:53]
v_cndmask_b32 v16, v16, v17, s[54:55]
v_lshl_or_b32 v15, v16, 16, v15
global_store_dword v9, v15, s[{sACC}:{sACC+1}] sc1
{Ln0}:""")
    Lz = e.label("Lz")
    e(f"""s_mul_i32 s48, s{S_WG}, 640
s_lshl_b32 s49, s{S_WAVE}, 6
s_add_u32 s48, s48, s49
v_mov_b64 v[16:17], 0
v_mov_b64 v[18:19], 0""")
    for rep in range(2):
        if rep: e(f"s_cmp_gt_u32 s{S_WAVE}, 1\ns_cbranch_scc1 {Lz}\ns_add_u32 s48, s48, 512")
        e("v_add_u32 v15, s48, v0")
        if SPREAD: e("v_lshrrev_b32 v20, 10, v15\nv_lshlrev_b32 v15, 4, v15\nv_lshl_add_u32 v15, v20, 8, v15")
        else: e("v_lshlrev_b32 v15, 4, v15")
        e(f"global_store_dwordx4 v15, v[16:19], s[{sACCN}:{sACCN+1}] sc1")
    e(f"{Lz}:")
    LS2i, Lji = e.label("LS2i"), e.label("Lji")
    e(f"""s_lshr_b32 s48, s{sM}, 2
s_mul_i32 s48, s48, 6144
s_and_b32 s49, s{sM}, 3
s_cmp_ge_u32 s{S_WAVE}, 4
s_cbranch_scc1 {LS2i}""")
    e(f"""s_and_b32 s50, s{S_WAVE}, 1
s_lshl_b32 s51, s50, 3
v_lshl_add_u32 v15, v12, 1, v14
v_add_u32 v15, s51, v15
v_mul_u32_u24 v15, 96, v15
v_lshl_add_u32 v15, v13, 2, v15
v_add_u32 v4, {R1 + 2*1536}, v15
v_add_u32 v5, 32, v4
s_lshl_b32 s49, s49, 9
s_lshl_b32 s50, s50, 8
s_add_u32 s48, s48, s49
s_add_u32 s48, s48, s50
s_add_u32 s48, s48, 4096
s_branch {Lji}
{LS2i}:""")
    e(f"""s_lshl_b32 s51, s{sW}, 2
v_add_u32 v15, s51, v12
v_mul_u32_u24 v15, 96, v15
v_lshl_add_u32 v15, v13, 2, v15
v_xor_b32 v16, 1, v14
v_mul_u32_u24 v16, 1536, v16
v_add3_u32 v4, v15, v16, {R1}
v_add_u32 v5, 32, v4
s_lshl_b32 s49, s49, 10
s_lshl_b32 s50, s{sW}, 8
s_add_u32 s48, s48, s49
s_add_u32 s48, s48, s50
{Lji}:
v_lshlrev_b32 v6, 2, v0
v_add_u32 v6, s48, v6""")
    e(f"""global_store_dword v6, v11, s[{sB}:{sB+1}] sc1
global_store_dword v6, v11, s[{sBO}:{sBO+1}] sc1
s_min_u32 s48, s{S_WAVE}, 2
s_mul_i32 s49, s{S_WG}, 3
s_add_u32 s48, s48, s49
s_lshl_b32 s48, s48, 8
s_add_u32 s48, s48, {WS_PR}
v_lshl_add_u32 v15, v0, 2, s48
global_store_dword v15, v11, s[{P_WS}:{P_WS+1}] sc1
s_waitcnt vmcnt(0)
s_barrier""")
    stamp(e, 6, True)
    La = e.label("La")
    e(f"""s_cmp_lg_u32 s{S_WAVE}, 0
s_cbranch_scc1 {La}
s_getreg_b32 s48, hwreg(HW_REG_XCC_ID)
s_and_b32 s48, s48, 15
s_lshl_b32 s48, 1, s48
s_lshl_b32 s49, s{sG}, 2
s_mov_b64 exec, 1
v_mov_b32 v15, s49
v_mov_b32 v16, s48
global_atomic_or v15, v16, s[{P_DBG}:{P_DBG+1}] offset:{DBG_XCC}
s_waitcnt vmcnt(0)
v_mov_b32 v15, 0
v_mov_b32 v16, 1
global_atomic_add v15, v16, s[{P_DBG}:{P_DBG+1}] offset:{DBG_ARRIVE}
s_mov_b64 exec, -1
{La}:""")
    LS2 = e.label("LS2")
    e(f"s_cmp_ge_u32 s{S_WAVE}, 4\ns_cbranch_scc1 {LS2}")

    def wait_start():
        stamp(e, 7, True)
        Lw = e.label("Lws")
        e(f"""s_lshl_b32 s49, s{sG}, 2
v_mov_b32 v12, 0
v_mov_b32 v13, s49
{Lw}:
s_sleep 4
global_load_dword v14, v12, s[{P_DBG}:{P_DBG+1}] offset:{DBG_ARRIVE} sc1
s_add_u32 s{sSpin}, s{sSpin}, 1
s_cmp_gt_u32 s{sSpin}, {SPIN_MAX}
s_cbranch_scc1 {Lfail}
s_waitcnt vmcnt(0)
v_readfirstlane_b32 s48, v14
s_cmp_lt_u32 s48, 128
s_cbranch_scc1 {Lw}
global_load_dword v14, v13, s[{P_DBG}:{P_DBG+1}] offset:{DBG_XCC} sc1
s_waitcnt vmcnt(0)
v_readfirstlane_b32 s48, v14
s_bcnt1_i32_b32 s48, s48
s_sub_u32 s{sMode}, s48, 1""")

    W1 = 64; G = 20; AC = 40
    e(f"""s_lshl_b32 s48, s{sG}, 2
s_lshr_b32 s49, s{sM}, 2
s_add_u32 s48, s48, s49
s_lshl_b32 s48, s48, 8
s_and_b32 s49, s{sM}, 3
s_lshl_b32 s49, s49, 6
s_add_u32 s48, s48, s49
s_lshl_b32 s49, s{sW}, 21
s_add_u32 s52, s48, s49
v_lshrrev_b32 v12, 2, v0
v_lshlrev_b32 v12, 13, v12
v_and_b32 v13, 3, v0
v_lshl_add_u32 v12, v13, 4, v12
s_lshl_b32 s53, s{sW}, 15""")
    e(f"""v_lshrrev_b32 v13, 5, v0
v_lshlrev_b32 v13, 6, v13
v_bfe_u32 v14, v0, 4, 1
v_lshl_add_u32 v13, v14, 3, v13
v_bfe_u32 v14, v0, 2, 2
v_add_u32 v13, v13, v14
v_lshlrev_b32 v13, 6, v13
v_and_b32 v14, 3, v0
v_lshl_add_u32 v13, v14, 3, v13
v_add_u32 v13, s53, v13""")
    def w1_dma(ptr, half):
        make_srd(e, SRD_W, ptr, 52, 0, 8388608)
        L = e.label("Lw1")
        e(f"""s_add_u32 m0, s53, {half*16384}
s_mov_b32 s54, 0
{L}:
buffer_load_dwordx4 v12, s[{SRD_W}:{SRD_W+3}], s54 offen lds
s_add_u32 s54, s54, {16*8192}
s_add_u32 m0, m0, 1024
s_cmp_lt_u32 s54, {256*8192}
s_cbranch_scc1 {L}""")
    def w1_read(mat, half):
        for ch in range(2):
            for i in range(4):
                r = W1 + ((2 * mat + ch) * 4 + i) * 8
                for q in range(2):
                    for h in range(2):
                        e(f"ds_read_b64_tr_b16 v[{r+4*q+2*h}:{r+4*q+2*h+1}], v13 offset:{half*16384 + (128*q + 16*i + 4*h)*64 + 32*ch}")
    w1_dma(P_BWQ, 0); w1_dma(P_BWK, 1)
    e("s_waitcnt vmcnt(16)")
    stamp(e, 8, True)
    w1_read(0, 0)
    e("s_waitcnt lgkmcnt(0)")
    w1_dma(P_BWV, 0)
    e("s_waitcnt vmcnt(16)")
    w1_read(1, 1)
    e("s_waitcnt vmcnt(0)")
    w1_read(2, 0)
    e(f"""s_lshl_b32 s48, s{sW}, 2
v_lshrrev_b32 v1, 4, v0
v_add_u32 v1, s48, v1
v_mul_u32_u24 v1, {5*acc_piece()}, v1
v_and_b32 v14, 15, v0
v_lshl_add_u32 v1, v14, 4, v1
v_lshrrev_b32 v15, 5, v0
v_lshl_add_u32 v14, v15, 4, v14
v_lshrrev_b32 v15, 1, v14
v_mul_u32_u24 v15, 96, v15
v_and_b32 v14, 1, v14
v_lshl_add_u32 v15, v14, 5, v15
v_bfe_u32 v14, v0, 4, 1
v_lshl_add_u32 v15, v14, 4, v15
s_mul_i32 s48, s{sW}, 4608
s_add_u32 s48, s48, {R1}
v_add_u32 v3, s48, v15
s_waitcnt lgkmcnt(0)""")
    make_srd(e, SRD_X, P_WS, None, 0, WS_SIZE)
    e(f"""s_and_b32 s48, s{S_WAVE}, 1
s_mul_i32 s47, s48, 1536
s_add_u32 s54, s47, {PL}
s_mul_i32 s53, s{sW}, 3072
s_sub_u32 s52, s53, s47
s_add_u32 s53, s53, {PL}
s_mul_i32 s49, s{sG}, 12288
s_add_u32 s47, s47, s49
s_add_u32 s47, s47, {WS_PR}
s_lshl_b32 s48, s48, 11
s_lshl_b32 s43, s{S_WG}, 12
s_add_u32 s43, s43, s48
s_lshr_b32 s48, s{S_WAVE}, 1
s_mul_i32 s42, s48, 3072
s_add_u32 s42, s42, {YD}
s_lshl_b32 s48, s48, 10
s_add_u32 s43, s43, s48""")
    wait_start()
    e("s_barrier")
    e("s_barrier")
    e("s_setprio 3\ns_mov_b32 s67, 0x41000000")
    if common.DIAG: e("s_mov_b32 s85, 0\ns_mov_b32 s83, 0")
    stamp(e, 1, True)
    L1, LpA, L1x = e.label("L1"), e.label("LpA"), e.label("L1x")
    assert not SPREAD
    xstore = f"global_store_dwordx4 v15, v[16:19], s[{sKVM}:{sKVM+1}] {LF[XSF]}"
    e("v_lshl_add_u32 v15, v0, 4, s43")
    e(f"{L1}:")
    if not XT: tr(e, 7)
    e(f"{LpA}:")
    tr(e, 0)
    lda = lambda f: "\n".join(f"global_load_dwordx4 v[{G+4*i}:{G+4*i+3}], v1, s[{sACC}:{sACC+1}] offset:{256*i} {f}" for i in (4, 0, 1, 2, 3))
    e(lda(LF[AF]) + f"\n{LpA}_j:")
    if STL == 1: e(xstore)
    if VLATE: e(f"s_lshl_b32 s48, s{sW}, 2\nv_mov_b32 v12, s48\nv_mov_b32 v13, s{sStep}")
    flg = f"ds_write_b32 v12, v13 offset:{FL}" if VLATE else ""
    if VARR < 0: e(flg)
    e(f"s_add_u32 s{sSpin}, s{sSpin}, 1\ns_cmp_gt_u32 s{sSpin}, {SPIN_MAX}\ns_cbranch_scc1 {Lfail}")
    for r in range(0, 24, 2): e(f"v_mov_b64 v[{AC+r}:{AC+r+1}], 0")
    def sm1(c, i):
        w = W1 + (c * 4 + i) * 8
        return f"v_smfmac_f32_16x16x64_bf16 v[{AC+4*c}:{AC+4*c+3}], v[{G+4*i}:{G+4*i+3}], v[{w}:{w+7}], v2"
    def arr(i):
        d3 = G + 4 * i + 3
        e(f"s_waitcnt vmcnt({3-i+(STL == 1)})")
        if i == 3: tr(e, 1)
        if i == VARR: e(flg)
        e(f"v_min_u32 v10, v{d3}, v{G+19 if i == 0 else 10}")
        e(f"v_perm_b32 v{d3}, v{G+16+i//2}, v{d3}, s{sSelO if i & 1 else sSelE}")
    def epi(p):
        a, b = AC + 8 * p, AC + 8 * p + 4
        return [f"v_permlane32_swap_b32 v{a+r}, v{b+r}" for r in range(4)] + [f"v_add_f32 v{a+r}, v{a+r}, v{b+r}" for r in range(4)] + [f"ds_write_b128 v3, v[{a}:{a+3}] offset:{p*1536}"]
    arr(0)
    for c in range(5): e(sm1(c, 0))
    arr(1); e(sm1(5, 0))
    for c in range(3): e(sm1(c, 1))
    arr(2); e(sm1(3, 1))
    e(sm1(0, 2)); arr(3); e(sm1(1, 2))
    e(f"v_cmp_gt_u32 vcc, s67, v10")
    e(sm1(0, 3)); e(f"s_cbranch_vccnz {LpA}_retry"); e(sm1(1, 3))
    for c, i in ((2, 2), (3, 2), (2, 3), (3, 3)): e(sm1(c, i) + "\ns_nop 0")
    f = epi(0) + epi(1) + epi(2)
    for c, i in ((4, 1), (5, 1), (4, 2), (5, 2), (4, 3), (5, 3)):
        e(sm1(c, i)); e(f.pop(0)); e(f.pop(0))
    for x in f: e(x)
    tail.append(f"{LpA}_retry:\ns_nop 7\n" + ("s_add_u32 s85, s85, 1\n" if common.DIAG else "") + lda("sc1") + f"\ns_branch {LpA}_j")
    tr(e, 2)
    e(f"s_setprio {P1B}\ns_waitcnt lgkmcnt(0)\ns_barrier")
    tr(e, 3)
    Lnp = e.label("Lnp")
    e(f"s_cmp_gt_u32 s{S_WAVE}, 1\ns_cbranch_scc1 {Lnp}_o")
    reduce4(e, 4, 5, 18, 24)
    publish_B(e, tail, 24)
    e(f"s_waitcnt vmcnt(0)\n{Lnp}:")
    tail.append(f"""{Lnp}_o:
s_sleep {XW23}
s_lshl_b32 s48, s{S_WG}, 3
s_add_u32 s48, s48, s{S_WAVE}
s_cmp_lg_u32 s48, 2
s_cbranch_scc1 {Lnp}
v_mov_b32 v20, 0
v_mov_b32 v21, s{sStep}
s_mov_b64 exec, 1
global_store_dword v20, v21, s[{P_DBG}:{P_DBG+1}] offset:{DBG_PROG} sc1
s_mov_b64 exec, -1
s_branch {Lnp}""")
    PXr = [40 + 4 * h for h in range(4)]; PMr = [56 + 2 * h for h in range(4)]; XA = 12; YB = [32, 36, 24, 28]
    ldp = "v_lshlrev_b32 v18, 4, v0\nv_lshlrev_b32 v19, 3, v0\n" + "\n".join(
        f"buffer_load_dwordx4 v[{PXr[h]}:{PXr[h]+3}], v18, s[{SRD_X}:{SRD_X+3}], s{44+h//2} offen offset:{(h%2)*3072} sc1\n"
        f"buffer_load_dwordx2 v[{PMr[h]}:{PMr[h]+1}], v19, s[{SRD_X}:{SRD_X+3}], s{40+h//2} offen offset:{(h%2)*3072} sc1" for h in range(4))
    tr_out(e)
    if common.DIAG and not TRACE:
        e(f"s_cmp_lg_u32 s{sStep}, 16\ns_cbranch_scc1 {Lnp}_s16"); stamp(e, 9, True); e(f"{Lnp}_s16:")
    e(f"""{Lnp}_e:
s_xor_b32 s42, s42, {YD ^ YD2}
s_add_u32 s44, s{sStep}, 3
s_and_b32 s44, s44, 3
s_mul_i32 s44, s44, {PR_SLOT}
s_add_u32 s44, s44, s47
s_add_u32 s45, s44, 6144
s_add_u32 s40, s44, 1024
s_add_u32 s41, s45, 1024
v_lshl_add_u32 v20, v0, 4, s42
v_add_u32 v21, 8, v20""")
    e(rn_setup(23, 24))
    rd = [(h, k) for h in (0, 2) for k in range(6)]
    def rdy(i):
        h, k = rd[i]; b = YB[i % 4]
        if k < 4: return f"ds_read_b128 v[{b}:{b+3}], v20 offset:{(h + k//2)*6144 + (k%2)*1024}"
        return f"ds_read2st64_b64 v[{b}:{b+3}], v{20 + k - 4} offset0:{12*h + 4} offset1:{12*h + 16}"
    rdp = [f"ds_read_b128 v[{PXr[h]}:{PXr[h]+3}], v22 offset:{h*3072}" for h in range(4)] + [f"ds_read2st64_b64 v[{PMr[h]}:{PMr[h]+3}], v25 offset0:{6*h + 2} offset1:{6*h + 8}" for h in (0, 2)]
    e(f"""s_cmp_eq_u32 s{sStep}, 64
s_cbranch_scc1 {Lnp}_f
s_add_u32 s55, s44, s52
s_mov_b32 m0, s53
v_lshlrev_b32 v14, 4, v0
v_lshl_add_u32 v22, v0, 4, s54
v_lshl_add_u32 v25, v0, 3, s54
s_lshl_b32 s48, s{sW}, 2
s_add_u32 s49, s{sStep}, 1
v_mov_b32 v26, s48
v_mov_b32 v27, s49
v_and_b32 v12, {7 if PPRE else 3}, v0
v_lshlrev_b32 v12, 2, v12
s_sleep {XW}""")
    for x in range(3): e(f"buffer_load_dwordx4 v14, s[{SRD_X}:{SRD_X+3}], s55 offen offset:{x*1024} sc1 lds")
    e(f"""s_waitcnt vmcnt(0)
ds_write_b32 v26, v27 offset:{FL3 + 16}
{Lnp}_w:
s_sleep {FSL}
ds_read_b32 v13, v12 offset:{FL3}
s_add_u32 s{sSpin}, s{sSpin}, 1
s_cmp_gt_u32 s{sSpin}, {SPIN_MAX}
s_cbranch_scc1 {Lfail}
s_waitcnt lgkmcnt(0)
v_cmp_ge_u32 vcc, s{sStep}, v13
s_cbranch_vccnz {Lnp}_w
{xstore}""")
    if PPRE:
        for x in rdp + [rdy(i) for i in range(PPRE - 1)]: e(x)
    e(f"{Lnp}_g:")
    tail.append(f"{Lnp}_f:\ns_barrier\ns_add_u32 s{sKVM}, s{sKVM}, 524288\ns_addc_u32 s{sKVM+1}, s{sKVM+1}, 0\n" + "\n".join(rdy(i) for i in range(4)) + f"\ns_branch {Lnp}_r")
    e(f"s_add_u32 s{sKVM}, s{sKVM}, 524288\ns_addc_u32 s{sKVM+1}, s{sKVM+1}, 0\ns_setprio 3")
    e("s_barrier")
    tr(e, 4)
    reduce4n(e, 23, 24, 12, 28)
    e(f"global_atomic_pk_add_bf16 v10, v9, v12, s[{sACCN}:{sACCN+1}] sc0")
    tr(e, 5)
    e(f"s_cmp_eq_u32 s{sStep}, 0\ns_cbranch_scc1 {Lnp}_q")
    if not PPRE:
        for x in rdp: e(x)
    for i in range(max(0, PPRE - 1), 4): e(rdy(i))
    e(f"""s_waitcnt lgkmcnt(4)
{Lnp}_c:
v_max3_u32 v13, v43, v47, v51
v_max3_u32 v14, v55, v57, v59
v_max3_u32 v13, v61, v63, v13
v_max_u32 v13, v13, v14
v_cmp_eq_u32 vcc, -1, v13
s_cbranch_vccnz {Lnp}_r""")
    tail.append(f"{Lnp}_r:\n{ldp}\ns_add_u32 s{sSpin}, s{sSpin}, 1\ns_cmp_gt_u32 s{sSpin}, {SPIN_MAX}\ns_cbranch_scc1 {Lfail}\n" + ("s_add_u32 s83, s83, 1\n" if common.DIAG else "") + f"s_waitcnt vmcnt(0)\ns_branch {Lnp}_c")
    nxt = 4
    for i, (h, k) in enumerate(rd):
        b = YB[i % 4]; a = XA + 4 * (k % 2); pr = PXr[h + k // 2] if k < 4 else PMr[h]
        e(f"s_waitcnt lgkmcnt({nxt - 1 - i})")
        e(f"v_mfma_f32_16x16x32_bf16 v[{a}:{a+3}], v[{b}:{b+3}], v[{pr}:{pr+3}], " + ("0" if h == 0 and k < 2 else f"v[{a}:{a+3}]"))
        if nxt < len(rd): e(rdy(nxt)); nxt += 1
    for x in (3, 2, 0, 1): e(f"v_cvt_pk_bf16_f32 v{16+x}, v{XA+2*x}, v{XA+2*x+1}")
    e(f"v_permlane16_swap_b32 v16, v18\nv_permlane16_swap_b32 v17, v19\nv_min_u32 v19, -2, v19\n{Lnp}_q:\nv_lshl_add_u32 v15, v0, 4, s43")
    if not STL: e(xstore)
    if XT: tr(e, 7)
    e(f"s_cmp_ge_u32 s{sStep}, 63\ns_cbranch_scc1 {L1x}")
    advance(e)
    e(f"s_waitcnt vmcnt({0 if STL else 1})")
    tr(e, 6)
    Lr = e.label("Lrank")
    e(f"""v_and_b32 v10, 0xffff0000, v10
v_cvt_u32_f32 v10, v10
v_readlane_b32 s48, v10, 3
s_lshl_b32 s48, s48, 2
s_lshr_b32 s48, {hex(RTAB)}, s48
s_and_b32 s48, s48, 15
{Lr}:
s_cbranch_scc0 {L1}
s_sleep 1
s_sub_u32 s48, s48, 1
s_cmp_lg_u32 s48, 0
s_branch {Lr}
{L1x}:
{xstore if STL else ''}
s_setprio 0
s_add_u32 s{sStep}, s{sStep}, 1
s_cmp_eq_u32 s{sStep}, 64
s_cbranch_scc1 {Lnp}_e
s_branch {L_done}""")

    e(f"{LS2}:")
    T, VV, S0, S1_, SM, PX, PM, YM, O, LS, YX, KX, VX, WO = 28, 44, 52, 56, 60, 64, 68, 72, 88, 104, 108, 124, 156, 188
    ON16, ON32 = 22, 24
    DQ, NEG = 252, 253
    e(f"""s_lshl_b32 s48, s{sG}, 2
s_add_u32 s48, s48, s{sW}
s_lshl_b32 s55, s48, 13
s_lshl_b32 s48, s48, 18
s_lshl_b32 s49, s{sM}, 7
s_add_u32 s52, s48, s49
v_lshrrev_b32 v12, 3, v0
v_lshlrev_b32 v12, 11, v12
v_and_b32 v13, 7, v0
v_lshl_add_u32 v12, v13, 4, v12
s_lshl_b32 s53, s{sW}, 13
s_add_u32 s53, s53, 131072
v_lshrrev_b32 v13, 4, v0
v_lshlrev_b32 v13, 3, v13
v_bfe_u32 v14, v0, 2, 2
v_add_u32 v13, v13, v14
v_lshlrev_b32 v13, 7, v13
v_and_b32 v14, 3, v0
v_lshl_add_u32 v13, v14, 3, v13
v_add_u32 v13, s53, v13""")
    make_srd(e, SRD_W, P_BWO, 52, 0, 8388608)
    def vpf():
        e(f"""s_lshl_b32 s48, s{sG}, 2
s_lshr_b32 s49, s{sM}, 2
s_add_u32 s48, s48, s49
s_lshl_b32 s48, s48, 8
s_and_b32 s49, s{sM}, 3
s_lshl_b32 s49, s49, 6
s_add_u32 s48, s48, s49
s_lshl_b32 s49, s{sW}, 21
s_add_u32 s48, s48, s49
v_lshrrev_b32 v14, 2, v0
v_lshlrev_b32 v14, 13, v14
v_and_b32 v15, 3, v0
v_lshl_add_u32 v14, v15, 4, v14""")
        make_srd(e, SRD_X, P_BWV, 48, 0, 8388608)
        L = e.label("Lvpf")
        e(f"s_mov_b32 s54, 0\n{L}:\nbuffer_load_dwordx4 v[64:67], v14, s[{SRD_X}:{SRD_X+3}], s54 offen\ns_add_u32 s54, s54, {16*8192}\ns_cmp_lt_u32 s54, {256*8192}\ns_cbranch_scc1 {L}")
    def opf():
        L = e.label("Lopf")
        e(f"s_mov_b32 s54, {64*2048}\n{L}:\nbuffer_load_dwordx4 v[64:67], v12, s[{SRD_W}:{SRD_W+3}], s54 offen\ns_add_u32 s54, s54, {8*2048}\ns_cmp_lt_u32 s54, {128*2048}\ns_cbranch_scc1 {L}")
    if VPF & 1: vpf()
    for rnd in range(2):
        L = e.label("Lwo")
        e(f"""s_mov_b32 m0, s53
s_mov_b32 s54, {rnd*64*2048}
{L}:
buffer_load_dwordx4 v12, s[{SRD_W}:{SRD_W+3}], s54 offen lds
s_add_u32 s54, s54, {8*2048}
s_add_u32 m0, m0, 1024
s_cmp_lt_u32 s54, {(rnd+1)*64*2048}
s_cbranch_scc1 {L}""")
        if rnd == 0 and VPF & 2: opf()
        e(f"s_waitcnt vmcnt({8 if rnd == 0 and VPF & 2 else 0})")
        for ct in range(4):
            for jj in range(2):
                r = WO + (ct * 4 + rnd * 2 + jj) * 4
                for h in range(2):
                    e(f"ds_read_b64_tr_b16 v[{r+2*h}:{r+2*h+1}], v13 offset:{(32*jj + 4*h)*128 + 32*ct}")
        e("s_waitcnt lgkmcnt(0)")
    e(f"""s_mul_i32 s48, s{sW}, 6144
v_lshlrev_b32 v14, 4, v0
v_add_u32 v1, s48, v14
v_add_u32 v20, s55, v14
s_lshl_b32 s49, s{sM}, 9
s_add_u32 s55, s55, s49
s_add_u32 s55, s55, {2*KVSTEP}
v_and_b32 v15, 15, v0
v_lshrrev_b32 v16, 2, v15
v_mul_u32_u24 v16, 160, v16
v_and_b32 v15, 3, v15
v_lshl_add_u32 v16, v15, 5, v16
v_bfe_u32 v15, v0, 4, 1
v_lshl_add_u32 v16, v15, 4, v16
s_mul_i32 s48, s{sW}, 2560
s_add_u32 s48, s48, {R2}
v_add_u32 v3, s48, v16
v_mov_b32 v{ON32}, 0x3f803f80
v_mov_b32 v{ON32+1}, 0x3f803f80
v_mov_b32 v{ON32+2}, 0x3f803f80
v_mov_b32 v{ON32+3}, 0x3f803f80
v_cmp_gt_u32 vcc, 32, v0
v_cndmask_b32 v{ON16}, 0, v{ON32}, vcc
v_cndmask_b32 v{ON16+1}, 0, v{ON32}, vcc""")
    e(f"""v_and_b32 v15, 15, v0
v_lshrrev_b32 v16, 4, v0
s_mul_i32 s48, s{sW}, 6144
s_add_u32 s48, s48, {YD}
v_lshl_add_u32 v21, v0, 4, s48
s_and_b32 s48, s{sM}, 3
s_lshl_b32 s49, s48, 3
v_lshlrev_b32 v16, 2, v16
v_sub_u32 v15, v15, v16
v_add_u32 v15, s49, v15
s_mov_b32 s40, 0xff00ff00
s_mov_b32 s41, 0xff00ff00
v_cndmask_b32 v{DQ}, v15, 64, s[40:41]
v_mov_b32 v{NEG}, 0xf149f2ca
s_lshr_b32 s49, s48, 1
s_and_b32 s48, s48, 1
s_lshl_b32 s48, s48, 7
s_lshl_b32 s{sQ}, s49, 12
s_add_u32 s{sQ}, s{sQ}, s48
s_sub_u32 s55, s55, s{sQ}
s_mul_i32 s42, s{sW}, 3072
s_mul_i32 s43, s{sG}, 12288
s_add_u32 s42, s42, s43
s_mul_i32 s43, s49, 1536
s_add_u32 s42, s42, s43
s_add_u32 s43, s42, s48
s_lshr_b32 s48, s48, 1
s_add_u32 s44, s42, s48
s_add_u32 s44, s44, 1024
s_lshr_b32 s45, s{sM}, 2""")
    make_srd(e, SRD_X, P_WS, None, WS_QB, WS_SIZE)
    e(rn_setup(254, 255))
    wait_start()
    e("s_barrier")
    e(f"""s_mul_i32 s48, s{sW}, 2560
s_add_u32 s48, s48, {R2+128}
v_mov_b32 v12, s48
v_mov_b32 v14, 0x3e800000
v_mov_b32 v15, 0
ds_write_b64 v12, v[14:15]""")
    kv_wait(e, Lfail, 0)
    e(f"""s_waitcnt lgkmcnt(0)
s_barrier
s_setprio 2
v_mov_b32 v14, s{sC}
v_cmp_gt_u32 vcc, 32, v0
v_cndmask_b32 v14, v14, 1.0, vcc
v_and_b32 v15, 15, v0
s_lshl_b32 s48, s{sW}, 2
s_add_u32 s48, s48, {RL}
v_lshl_add_u32 v15, v15, 4, s48
v_mov_b32 v16, 0
ds_write_b32 v15, v16 offset:256
ds_write_b32 v15, v16 offset:272
v_mov_b32 v16, 1
v_add_u32 v18, 4096, v1
v_add_u32 v19, 4096, v20
s_cmp_eq_u32 s45, s{sW}
s_cselect_b32 s52, 0x00ff00ff, 0
s_mov_b32 s53, s52
s_or_b64 vcc, s[52:53], s[40:41]
v_mov_b32 v17, 0x3c000000
v_cndmask_b32 v17, -1, v17, vcc
s_mov_b32 s46, 0x21800000""")
    def kv_loads(reg, base):
        if NOKV & (1 if reg == KX else 2): return ["s_nop 0"] * 8
        return [f"global_load_dwordx4 v[{reg+4*x}:{reg+4*x+3}], v{20 if x < 4 else 19}, s[{base}:{base+1}] offset:{(x%4)*1024} {LF[KVF]}" for x in range(8)]
    def yacc(ct, tt): return T + (ct * 2 + tt) * 4
    def yx_mf():
        return [f"v_mfma_f32_16x16x32_bf16 v[{yacc(ct,tt)}:{yacc(ct,tt)+3}], v[{VX+(tt*4+ks)*4}:{VX+(tt*4+ks)*4+3}], v[{WO+(ct*4+ks)*4}:{WO+(ct*4+ks)*4+3}], " + ("0" if ks == 0 else f"v[{yacc(ct,tt)}:{yacc(ct,tt)+3}]")
                for ks in range(4) for tt in range(2) for ct in range(4)]
    def yx_cvt():
        return [f"v_cvt_pk_bf16_f32 v{YX+ct*4+x}, v{yacc(ct,0)+2*x}, v{yacc(ct,0)+2*x+1}" for ct in range(4) for x in range(4)] + [f"v_mov_b64 v[{YM+r}:{YM+r+1}], 0" for r in range(0, 16, 2)]
    def q_loads():
        L = [f"buffer_load_dwordx4 v[{O+4*x}:{O+4*x+3}], v20, s[{SRD_X}:{SRD_X+3}], s{sQ} offen offset:{x*1024} {LF[KVF]}" for x in range(4)]
        return ("s_mov_b64 exec, s[52:53]\n" if QONE else "s_not_b64 exec, s[40:41]\n") + "\n".join(L) + f"\ns_mov_b64 exec, -1\ns_add_u32 s{sQ}, s{sQ}, {KVSTEP}"
    def mask_init():
        m = ["vcc", "s[48:49]", "s[50:51]", "s[54:55]"]
        return [x for h in range(2) for x in [f"v_cmp_gt_i32 {m[r]}, {r + 16*h}, v{DQ}" for r in range(4)] + [f"v_cndmask_b32 v{S0+4*h+r}, 0, v{NEG}, {m[r]}" for r in range(4)]]
    kvadv = f"""s_add_u32 s{sV}, s{sV}, {KVSTEP}
s_addc_u32 s{sV+1}, s{sV+1}, 0
s_add_u32 s{sK}, s{sK}, {KVSTEP}
s_addc_u32 s{sK+1}, s{sK+1}, 0"""
    E = T
    def xpart(ld):
        Lp, Lv = e.label("Lxp"), e.label("Lv")
        e(f"s_cmp_eq_u32 s45, s{sW}\ns_cbranch_scc1 {Lp}")
        def pst(f): return f"""buffer_store_dwordx4 v[{PX}:{PX+3}], v12, s[{SRD_X}:{SRD_X+3}], s48 offen {f}
buffer_store_dwordx2 v[{PM}:{PM+1}], v13, s[{SRD_X}:{SRD_X+3}], s48 offen {f}
buffer_store_dwordx4 v[{SM}:{SM+3}], v12, s[{SRD_X}:{SRD_X+3}], s49 offen {f}
buffer_store_dwordx2 v[{SM}:{SM+1}], v13, s[{SRD_X}:{SRD_X+3}], s49 offen {f}
s_mov_b64 exec, -1
{f's_cmp_lg_u32 s{sStep}, 63' if PBL else ''}
{f's_cbranch_scc1 {Lv}_t' if PBL else ''}
s_branch {Lv}"""
        tail.append(f"""{Lp}:
""" + "\n".join(f"v_mul_f32 v{r}, v{r}, v{LS+1}" for r in list(range(E + 8, E + 12)) + list(range(E, E + 8))) + f"""
v_cvt_pk_bf16_f32 v{PM}, v{E+8}, v{E+9}
v_cvt_pk_bf16_f32 v{PM+1}, v{E+10}, v{E+11}
v_cvt_pk_bf16_f32 v{PX}, v{E}, v{E+1}
v_mov_b32 v{PM+2}, v{PM}
v_mov_b32 v{PM+3}, v{PM+1}
v_cvt_pk_bf16_f32 v{PX+1}, v{E+2}, v{E+3}
v_cvt_pk_bf16_f32 v{PX+2}, v{E+4}, v{E+5}
v_permlane32_swap_b32 v{PM}, v{PM+2}
v_permlane32_swap_b32 v{PM+1}, v{PM+3}
v_cvt_pk_bf16_f32 v{PX+3}, v{E+6}, v{E+7}
{f's_cmp_lg_u32 s{sStep}, 63' if PBL else ''}
{f's_cbranch_scc1 {Lv}' if PBL else ''}
{Lp}_t:
v_lshl_add_u32 v12, v0, 4, s43
v_lshl_add_u32 v13, v0, 3, s44
s_and_b32 s48, s{sStep}, 3
s_mul_i32 s48, s48, {PR_SLOT}
s_add_u32 s48, s48, {WS_PR}
s_add_u32 s49, s{sStep}, 1
s_and_b32 s49, s49, 3
s_mul_i32 s49, s49, {PR_SLOT}
s_add_u32 s49, s49, {WS_PR}
v_mov_b64 v[{SM}:{SM+1}], -1
v_mov_b64 v[{SM+2}:{SM+3}], -1
s_not_b64 exec, s[40:41]
s_cmp_lg_u32 s{sMode}, 0
s_cbranch_scc1 {Lp}_s
{pst('')}
{Lp}_s:
{pst('sc1')}""")
        e(f"{Lv}:")
        if XT == 1: tr(e, 0)
        ld = list(ld)
        dump = [f"ds_write_b128 v21, v[{YX+4*x}:{YX+4*x+3}] offset:{(x//2)*3072 + (x%2)*1024}" for x in range(4)] + [f"ds_write_b128 v21, v[{YM+4*x}:{YM+4*x+3}] offset:{2048+3072*x}" for x in range(2)]
        e(f"s_cmp_eq_u32 s{sStep}, 63\ns_cbranch_scc1 {L2x}")
        tail.append(f"{L2x}:\n" + "\n".join(dump) + f"\ns_waitcnt lgkmcnt(0)\ns_barrier\ns_setprio 0\ns_branch {L_done}")
        if KVE == 1: kv_wait(e, Lfail, 1)
        v = kv_loads(VX, sV)
        vv = [(8 * ks + 4 * tt + 3, v[tt * 4 + ks]) for ks in range(4) for tt in range(2)]
        ld = [(0, l) for l in ld] + vv[:8 - VLATE]
        yc = yx_cvt()
        for i, m in enumerate(yx_mf() + yc[16:] + yc[:16] + mask_init()):
            e(m)
            if i >= KLATE and (i - KLATE) % (XLD if i < 32 else 3 * XLD) == 0 and ld and ld[0][0] <= i: e(ld.pop(0)[1])
            if i >= DUMP0 and (i - DUMP0) % DUMPS == 0 and dump: assert i < 32; e(dump.pop(0))
            if XT == 1 and i == 31: tr(e, 1)
            if KVE > 1 and i == KVE: assert not ld; kv_wait(e, Lfail, 1)
        for l in ld: e(l[1])
        if KVE == 0: kv_wait(e, Lfail, 1)
        kv_wait(e, Lfail, 2)
        if XT == 1: tr(e, 2)
        if not VLATE: e("s_waitcnt lgkmcnt(0)")
        if VLATE:
            Lf = e.label("Lfl")
            e(f"""v_and_b32 v12, 3, v0
v_lshlrev_b32 v12, 2, v12
{Lf}:
{f's_sleep {VSL}' if VSL else ''}
ds_read_b32 v13, v12 offset:{FL}
s_add_u32 s{sSpin}, s{sSpin}, 1
s_cmp_gt_u32 s{sSpin}, {SPIN_MAX}
s_cbranch_scc1 {Lfail}
s_waitcnt lgkmcnt(0)
v_cmp_eq_u32 vcc, s{sStep}, v13
s_cbranch_vccnz {Lf}""")
            if PBL: e(f"s_cmp_eq_u32 s45, s{sW}\ns_cbranch_scc1 {Lp}_t\n{Lv}_t:")
            if QL: e(q_loads())
            for l in vv[8 - VLATE:]: e(l[1])
        e("v_add_u32 v16, 1, v16")
        e(kvadv)
        e(f"v_xor_b32 v21, {YD ^ YD2}, v21")
    for l in kv_loads(VX, sV): e(l)
    for l in kv_loads(KX, sK): e(l)
    e(q_loads())
    e("s_waitcnt vmcnt(12) lgkmcnt(0)")
    for x in yx_mf() + yx_cvt() + mask_init(): e(x)
    e(kvadv)
    for l in kv_loads(VX, sV): e(l)
    e(f"s_add_u32 s{sV}, s{sV}, {KVSTEP}\ns_addc_u32 s{sV+1}, s{sV+1}, 0")
    stamp(e, 8, True)
    L2, LpB, L2x = e.label("L2"), e.label("LpB"), e.label("L2x")
    e(f"{L2}:\ns_barrier")
    tr(e, 0)
    reduce4(e, 4, 5, 18, T, 14)
    publish_B(e, tail, T)
    tr(e, 1)
    if DELAY_B >= 0:
        for _ in range(DELAY_B): e("s_nop 7")
    elif ACK_B: e("s_waitcnt vmcnt(0)")
    tr(e, 2)
    e(f"{LpB}:")
    tr(e, 7)
    pieces = [(T + 4 * ks, 1, 1024 * ks) for ks in range(4)] + [(VV + 4 * u, 18, 1024 * u) for u in range(2)]
    ldB = [f"global_load_dwordx4 v[{r}:{r+3}], v{a}, s[{sB}:{sB+1}] offset:{o} sc1" for r, a, o in pieces]
    if LATE_V:
        for l in ldB[:4]: e(l)
        e("s_waitcnt vmcnt(3)")
        for l in ldB[4:]: e(l)
    else:
        for l in ldB: e(l)
    def chk(i, mid=""):
        e(f"{LpB}_c{i}:\ns_waitcnt vmcnt({5-i})\nv_cmp_eq_u32 vcc, -1, v{pieces[i][0]+3}\n{mid}\ns_cbranch_vccnz {LpB}_r{i}")
        if RSEL:
            rl = [f"s_mov_b64 exec, vcc\n{ldB[i]}\ns_waitcnt vmcnt(1)"] + [f"s_mov_b64 exec, -1\nv_cmpx_eq_u32 vcc, -1, v{pieces[j][0]+3}\n{ldB[j]}" for j in range(i + 1, 6)] + ["s_mov_b64 exec, -1"]
        else: rl = ldB[i:]
        tail.append(f"{LpB}_r{i}:\n" + "\n".join(rl) + f"\ns_add_u32 s{sSpin}, s{sSpin}, 1\ns_cmp_gt_u32 s{sSpin}, {SPIN_MAX}\ns_cbranch_scc1 {Lfail}\ns_branch {LpB}_c{i}")
    def sc(i):
        return [f"v_mfma_f32_16x16x32_bf16 v[{a}:{a+3}], v[{kreg}:{kreg+3}], v[{O+4*i}:{O+4*i+3}], " + ("0" if i == 0 and a == SM else f"v[{a}:{a+3}]")
                for (a, kreg) in ((S0, KX + i * 4), (S1_, KX + (4 + i) * 4), (SM, T + 4 * i))]
    cn = lambda i: [f"v_cndmask_b32 v{O+4*i+r}, v{O+4*i+r}, v{T+4*i+r}, s[40:41]" for r in range(4)]
    if BPIPE:
        chk(0, "\n".join(cn(0)))
        for i in range(4):
            m = sc(i)
            e(m[0])
            if i < 3:
                c = cn(i + 1)
                chk(i + 1, c[0]); e(m[1]); e(c[1]); e(c[2]); e(c[3]); e(m[2])
            else:
                e(m[1]); e(m[2])
    else:
        for i in range(4):
            chk(i, "\n".join(cn(i)))
            for m in sc(i): e(m)
    tr(e, 3)
    ym = [f"v_smfmac_f32_16x16x64_bf16 v[{YM+4*ct}:{YM+4*ct+3}], v[{VV+4*u}:{VV+4*u+3}], v[{WO+(ct*4+2*u)*4}:{WO+(ct*4+2*u)*4+7}], v2" for u in range(2) for ct in range(4)]
    vl = kv_loads(KX, sK)[:KEARLY]
    def V():
        if vl: e(vl.pop(0))
    ex = [f"v_exp_f32 v{E+i}, v{S0+i}" for i in range(12)]
    cp = [f"v_cvt_pk_bf16_f32 v{PX+x}, v{E+2*x}, v{E+2*x+1}" for x in range(6)]
    dup = [f"v_mov_b32 v{PM+2}, v{PM}", f"v_mov_b32 v{PM+3}, v{PM+1}", f"v_permlane32_swap_b32 v{PM}, v{PM+2}", f"v_permlane32_swap_b32 v{PM+1}, v{PM+3}"]
    cy = [f"v_cvt_pk_bf16_f32 v{YM+x}, v{YM+2*x}, v{YM+2*x+1}" for x in range(8)]
    ox = [f"v_mfma_f32_16x16x32_bf16 v[{O+4*ct}:{O+4*ct+3}], v[{PX}:{PX+3}], v[{YX+4*ct}:{YX+4*ct+3}], 0" for ct in range(4)]
    om = [f"v_mfma_f32_16x16x16_bf16 v[{O+4*ct}:{O+4*ct+3}], v[{PM}:{PM+1}], v[{YM+2*ct}:{YM+2*ct+1}], v[{O+4*ct}:{O+4*ct+3}]" for ct in range(4)]
    lx = f"v_mfma_f32_16x16x32_bf16 v[{LS}:{LS+3}], v[{ON32}:{ON32+3}], v[{PX}:{PX+3}], 0"
    lm = f"v_mfma_f32_16x16x16_bf16 v[{LS}:{LS+3}], v[{ON16}:{ON16+1}], v[{PM}:{PM+1}], v[{LS}:{LS+3}]"
    wr = [f"ds_write_b128 v3, v[{O+4*ct}:{O+4*ct+3}] offset:{ct*640}" for ct in range(4)]
    chk(4)
    if XT == 2: tr(e, 0)
    e(ym[0]); e(ym[1]); e(ex[0]); e(ym[2]); e(ex[1]); e(ym[3]); e(ex[2])
    chk(5, ex[3])
    if XT == 2: tr(e, 1)
    Lfb = e.label("Lfb")
    seq = [ym[4], ex[4], ym[5], ex[5], ym[6], ex[6], ym[7], ex[7], cp[0], cp[1], cp[2], cp[3], ex[8],
           ox[0], ex[9], ox[1], ex[10], ox[2], ex[11], ox[3], cp[4], cp[5],
           lx, dup[0], dup[1], cy[0], cy[1], dup[2], dup[3], cy[2], cy[3],
           om[0], cy[4], cy[5], lm, cy[6], cy[7], om[1], om[2], om[3]]
    for i, x in enumerate(seq):
        e(x)
        if KPOS >> i & 1: V()
        if SFLAG == i + 1: e("ds_write_b32 v15, v16 offset:256")
    if True:
        e(f"v_rcp_f32 v{LS+1}, v{LS}\ns_mov_b32 exec_lo, 0")
        for x in wr: e(x)
        e(f"""s_mov_b32 exec_lo, -1
ds_write_b32 v15, v{LS+1}
v_subrev_u32 v10, s46, v{LS}
v_cmp_lt_u32 vcc, v17, v10""")
    while vl: V()
    e(f"s_cbranch_vccn{'z' if not FORCE_FB else 'z'} {Lfb}" if not FORCE_FB else f"s_branch {Lfb}")
    e(f"{Lfb}_b:")
    fb = [f"""{Lfb}:
v_max3_f32 v12, v{S0}, v{S0+1}, v{S0+2}
v_max3_f32 v13, v{S0+3}, v{S1_}, v{S1_+1}
v_max3_f32 v12, v{S1_+2}, v{S1_+3}, v12
v_max_f32 v12, v12, v13
s_mov_b32 exec_hi, 0
v_max3_f32 v12, v{SM}, v{SM+1}, v12
v_max3_f32 v12, v{SM+2}, v{SM+3}, v12
s_mov_b32 exec_hi, -1
v_mov_b32 v13, v12
v_permlane16_swap_b32 v12, v13
v_max_f32 v12, v12, v13
v_mov_b32 v13, v12
v_permlane32_swap_b32 v12, v13
v_max_f32 v12, v12, v13"""]
    fb += [f"v_sub_f32 v{S0+i}, v{S0+i}, v12" for i in range(12)] + ex + cp + dup + [lx] + ox + [lm] + om
    fb += [f"v_rcp_f32 v{LS+1}, v{LS}\ns_mov_b32 exec_lo, 0"] + wr + [f"s_mov_b32 exec_lo, -1\nds_write_b32 v15, v{LS+1}\ns_branch {Lfb}_b"]
    tail.append("\n".join(fb))
    tr(e, 4)
    e("s_waitcnt lgkmcnt(0)\ns_barrier")
    tr(e, 5)
    Lna = e.label("Lna")
    e(f"s_cmp_lg_u32 s{S_WAVE}, 4\ns_cbranch_scc1 {Lna}")
    reduce4n(e, 254, 255, VV, S0)
    e(f"global_atomic_pk_add_bf16 v9, v{VV}, s[{sACCN}:{sACCN+1}]\n{Lna}:")
    xpart(kv_loads(KX, sK)[KEARLY:] + ([] if QL else [q_loads()]))
    tr(e, 6)
    tr_out(e)
    advance(e)
    e(f"s_branch {L2}")
    for t in tail: e(t)
    e(f"""{Lfail}:
s_mov_b64 exec, -1
v_mov_b32 v12, 0
v_mov_b32 v13, 1
global_store_dword v12, v13, s[{P_DBG}:{P_DBG+1}] offset:{DBG_FAIL}
s_endpgm""")

import struct
def f32bits(x): return struct.unpack("<I", struct.pack("<f", x))[0]
```

```python
import common
from common import *
from jobs import *
import chain as ch
from chain import chain

C_KV = 128
C_KVA = 68
C_FIN = 72
C_OA = 192
MAP = 1
FINE = 0
SPIN = 79

def signal(e, off, s_idx=None, val=1):
    L = e.label("Lsig")
    e(f"s_waitcnt vmcnt(0)\ns_barrier\ns_cmp_lg_u32 s{S_WAVE}, 0\ns_cbranch_scc1 {L}")
    if s_idx is None: e("v_mov_b32 v2, 0")
    else: e(f"s_lshl_b32 s48, s{s_idx}, 2\nv_mov_b32 v2, s48")
    e(f"""v_mov_b32 v3, {val}
s_mov_b64 exec, 1
global_atomic_add v2, v3, s[{P_DBG}:{P_DBG+1}] offset:{off}
s_mov_b64 exec, -1
{L}:""")

def poll(e, Lfail, off, s_idx, target, shift=0, mask=None, spin=SPIN, t=2, slp=8):
    L = e.label("Lpoll")
    if s_idx is None: e(f"v_mov_b32 v{t}, 0")
    else: e(f"s_lshl_b32 s48, s{s_idx}, 2\nv_mov_b32 v{t}, s48")
    e(f"""{L}:
global_load_dword v{t+1}, v{t}, s[{P_DBG}:{P_DBG+1}] offset:{off} sc1
s_add_u32 s{spin}, s{spin}, 1
s_cmp_gt_u32 s{spin}, {ch.SPIN_MAX}
s_cbranch_scc1 {Lfail}
s_waitcnt vmcnt(0)
v_readfirstlane_b32 s48, v{t+1}""")
    if shift: e(f"s_lshr_b32 s48, s48, {shift}")
    if mask: e(f"s_and_b32 s48, s48, {mask}")
    Lok = e.label("Lok")
    e(f"s_cmp_ge_u32 s48, {target}\ns_cbranch_scc1 {Lok}\ns_sleep {slp}\ns_branch {L}\n{Lok}:")

def wait(e, Lfail, conds):
    L = e.label("Lwt")
    e(f"s_cmp_lg_u32 s{S_WAVE}, 0\ns_cbranch_scc1 {L}")
    for c in conds: poll(e, Lfail, *c)
    e(f"{L}:\ns_barrier")

KSL = 3
XPF = 2
AKVL = 0
USEFREE = 0
OLDC = 0
WPF = 3
EXP = 0
PSL = 20
def kv_wait(e, Lfail, phase):
    L = e.label("Lkvw")
    if phase == 0:
        e(f"s_cmp_lg_u32 s{S_WAVE}, 4\ns_cbranch_scc1 {L}\ns_mov_b32 s49, 0")
        poll(e, Lfail, C_KV, 49, 96, spin=ch.sSpin, t=12, slp=KSL)
    elif phase == 1:
        e(f"""s_add_u32 s63, s{ch.sStep}, {2 if ch.VLATE == 8 else 3}
s_and_b32 s63, s63, 63
s_and_b32 s48, s63, 3
s_cbranch_scc1 {L}
v_mov_b32 v10, s63
global_load_dword v10, v10, s[{P_DBG}:{P_DBG+1}] offset:{C_KV} sc1""")
    else:
        e(f"""s_and_b32 s48, s63, 3
s_cbranch_scc1 {L}
s_waitcnt vmcnt({20 - ch.KEARLY - ch.VLATE if ch.KVE == 1 else 0})
v_readfirstlane_b32 s48, v10
s_cmp_ge_u32 s48, 96
s_cbranch_scc1 {L}
s_lshr_b32 s49, s63, 2""")
        poll(e, Lfail, C_KV, 49, 96, spin=ch.sSpin, t=12, slp=4)
    e(f"{L}:")

def sig_hook(off, s_idx, val, n=1):
    def h(e):
        L = e.label("Lsig")
        e(f"""s_cmp_lg_u32 s{S_WAVE}, 0
s_cbranch_scc1 {L}
s_lshl_b32 s58, s{s_idx}, {1 + n}
v_lshl_add_u32 v{EA}, v0, 2, s58
v_mov_b32 v{EA+1}, {val}
s_mov_b64 exec, {2*n - 1}
global_atomic_add v{EA}, v{EA+1}, s[{P_DBG}:{P_DBG+1}] offset:{off}
s_mov_b64 exec, -1
{L}:""")
    return h

CODE_KB = 40
SCHED = 4
J_END, J_G128, J_G256, J_AKV, J_ATT, J_AOUT, J_G64, J_SENT, J_PF = range(9)
PFJ = 0
PF0 = 8
H2G = 8
def schedule():
    T = [[] for _ in range(128)]
    def g256(blocks):
        return [[(J_G256, b, 2 * (12 * xq + c)) for b in blocks for c in range(12)] for xq in range(4)]
    for xq in range(4):
        W = lambda j: T[xq * 32 + j]
        c0 = 24 * xq
        H1, H2 = list(range(16)), list(range(16, 32))
        ng = H2G
        if SCHED == 4:
            P1, P2, Ha, Hb = H1[:8], H1[8:], H2[:8], H2[8:]
            for r in range(2):
                for j in range(24): W(8 + j).append((J_G64, r, c0 + j))
            for j in H2: W(j).append((J_G64, 2 + (j & 1), c0 + 16 + (j - 16) // 2))
            for i, j in enumerate(P2 + Hb): W(j).append((J_SENT, 16 * xq + i, 0))
            for i in range(8):
                W(P1[i]).append((J_G256, 1, c0 + 2 * i)); W(P2[i]).append((J_G256, 2, c0 + 2 * i)); W(P1[i]).append((J_G256, 3, c0 + 2 * i))
                W(Hb[i]).append((J_G128, 2, c0 + 16 + i)); W(Hb[i]).append((J_G128, 3, c0 + 16 + i))
                W(Ha[i]).append((J_AKV, 16 * xq + i, 0)); W(Ha[i]).append((J_AKV, 16 * xq + 8 + i, 0))
            for k, t in enumerate(g256(range(4, 8))[xq]): W((P2 + P1)[k % 16]).append(t)
            for j, u in zip(H2 + H2, [(J_ATT, 4 * xq + m, n) for m in range(4) for n in range(8)]): W(j).append(u)
            for j, u in zip(P2 + P1, [(J_AOUT, 4 * xq + m, n) for m in range(4) for n in range(4)]): W(j).append(u)
            continue
        if SCHED == 2:
            for r in range(2):
                for j in range(24): W(8 + j).append((J_G64, r, c0 + j))
            for j in range(8): W(j).append((J_G256, 1, c0 + 2 * j))
            for j in H2: W(j).append((J_G64, 2 + (j & 1), c0 + 16 + (j - 16) // 2))
            H1 = H1[8:] + H1[:8]
            sent = H1[:8] + H2[8:]
            rest = g256(range(2, 8))[xq]
        else:
            H1 = list(range(8)) + list(range(16, 24)); H2 = list(range(8, 16)) + list(range(24, 32))
            cols = [c for c in range(24) if c % 4 == 1] + [0, 23]
            for i, j in enumerate(H1): W(j).append((J_G64, i // 8, c0 + cols[i % 8]))
            for j, c in zip(H2, [c for c in range(24) if c not in cols]): W(j).append((J_G128, 0, c0 + c))
            sent = H1
            rest = g256(range(1, 8))[xq]
        if not AKVL:
            for i, j in enumerate(H2): W(j).append((J_AKV, 16 * xq + i, 0))
        for i, j in enumerate(sent): W(j).append((J_SENT, 16 * xq + i, 0))
        for j in H1 + H2[16 - ng:]: W(j).append(rest.pop(0))
        if AKVL:
            for i in range(16): W(H2[i % (16 - ng)]).append((J_AKV, 16 * xq + i, 0))
        k = 0
        while rest:
            W(H1[k % 16]).append(rest.pop(0)); k += 1
        free = H1[k % 16:] if k % 16 and USEFREE else []
        units = [(J_ATT, 4 * xq + m, n) for m in range(4) for n in range(8)]
        order = H2 + H2[:16 - len(free)] + free
        for j, u in zip(order, units): W(j).append(u)
        outs = [(J_AOUT, 4 * xq + m, n) for m in range(4) for n in range(4)]
        order = H2[16 - len(free):] + H1[::-1][len(free):]
        for j, u in zip(order, outs): W(j).append(u)
    if EXP == 3: T = [[x for x in jl if x[0] not in (J_ATT, J_AOUT)] for jl in T]
    return T

def k_fused(e):
    e("s_cmp_ge_u32 s2, 256\ns_cbranch_scc1 Lend")
    if MAP == 0:
        e("""s_bfe_u32 s50, s2, 0x20001
s_and_b32 s51, s2, 1
s_bfe_u32 s52, s2, 0x40003
s_lshr_b32 s53, s2, 7
s_lshl_b32 s54, s51, 4
s_add_u32 s54, s54, s52
s_lshl_b32 s55, s52, 1
s_add_u32 s55, s55, s51
s_cmp_eq_u32 s53, 0
s_cselect_b32 s54, s54, s55
s_lshl_b32 s54, s54, 3
s_lshl_b32 s53, s53, 2
s_add_u32 s2, s54, s53
s_add_u32 s2, s2, s50""")
    e("""s_getpc_b64 s[48:49]
Lpc:
s_and_b32 s50, s2, 3
s_lshl_b32 s50, s50, 5
s_lshr_b32 s51, s2, 3
s_add_u32 s70, s50, s51
s_lshl_b32 s50, s70, 6
s_add_u32 s50, s50, Ltab-Lpc
v_and_b32 v2, 15, v0
v_lshl_add_u32 v2, v2, 2, s50
global_load_dword v90, v2, s[48:49]""")
    if CODE_KB:
        e("""v_lshlrev_b32 v2, 7, v0
v_min_u32 v2, Lend-Lpc, v2
global_load_dword v91, v2, s[48:49]""")
    load_args(e)
    e("""s_and_b32 s48, s2, 3
s_lshl_b32 s48, s48, 1
s_lshr_b32 s49, s2, 7
s_add_u32 s48, s48, s49
s_bfe_u32 s49, s2, 0x40003
s_lshl_b32 s49, s49, 3
s_add_u32 s35, s48, s49""")
    stamp(e, 0, True); stamp(e, 14)
    F = "Lwfail"
    e("s_bitcmp1_b32 s2, 2\ns_cbranch_scc1 Lworker")
    if EXP == 1: e("s_sleep 127\n" * 5)
    if OLDC:
        import chain4; chain4.chain(e, "Lchain_done", kv_wait, None)
    else: chain(e, "Lchain_done", kv_wait, None)
    e("Lchain_done:")
    e("s_waitcnt vmcnt(0)")
    stamp(e, 2, True); stamp(e, 15)
    if common.DIAG: e("s_mov_b32 s84, s65")
    stamps_out(e, 16)
    e("s_endpgm")
    W, J, TY = 70, 71, 76
    M = [72, 74]; N = [73, 75]
    def fetch(e):
        e(f"""v_readlane_b32 s{N[0]}, v1, s{J}
s_add_u32 s{J}, s{J}, 1
s_lshr_b32 s{TY}, s{N[0]}, 16
s_bfe_u32 s{M[0]}, s{N[0]}, 0x80008
s_and_b32 s{N[0]}, s{N[0]}, 255""")
    def jstamp(e, d=0):
        if common.DIAG: e(f"s_memrealtime s[98:99]\ns_add_u32 m0, s{J}, {16+d}\ns_waitcnt lgkmcnt(0)\nv_writelane_b32 v1, s98, m0")
    e(f"Lworker:\ns_add_u32 s35, s{W}, 128\ns_mov_b32 s{SPIN}, 0\ns_mov_b32 s{J}, 0\ns_waitcnt vmcnt({1 if CODE_KB else 0})\nv_mov_b32 v1, v90")
    if XPF:
        e(f"s_and_b32 s48, s{W}, 31\ns_lshl_b32 s48, s48, 3\ns_add_u32 s48, s48, s{S_WAVE}\ns_lshl_b32 s48, s48, 10\nv_lshl_add_u32 v2, v0, 4, s48")
        for t in range(XPF): e(f"global_load_dwordx4 v[88:91], v2, s[{P_BX}:{P_BX+1}]\nv_add_u32 v2, 0x40000, v2")
    if WPF:
        e(f"""s_and_b32 s48, s{W}, 31
s_lshl_b32 s48, s48, 2
s_lshr_b32 s49, s{S_WAVE}, 1
s_add_u32 s48, s48, s49
s_lshl_b32 s48, s48, 16
v_lshrrev_b32 v2, 3, v0
v_lshlrev_b32 v2, 13, v2
v_and_b32 v3, 7, v0
v_lshl_add_u32 v2, v3, 4, v2
v_add_u32 v2, s48, v2
s_lshr_b32 s50, s{W}, 5
s_mul_i32 s50, s50, 6
s_and_b32 s49, s{S_WAVE}, 1
s_add_u32 s50, s50, s49""")
        for t in range(3):
            e(f"""s_lshr_b32 s53, s50, 3
s_and_b32 s54, s50, 7
s_lshl_b32 s54, s54, 10
s_cmp_eq_u32 s53, 1
s_cselect_b32 s56, s{P_BWK}, s{P_BWQ}
s_cselect_b32 s57, s{P_BWK+1}, s{P_BWQ+1}
s_cmp_eq_u32 s53, 2
s_cselect_b32 s56, s{P_BWV}, s56
s_cselect_b32 s57, s{P_BWV+1}, s57
s_add_u32 s56, s56, s54
s_addc_u32 s57, s57, 0
global_load_dwordx4 v[88:91], v2, s[56:57] offset:384""")
            if WPF == 2: e("global_load_dwordx4 v[88:91], v2, s[56:57] offset:896")
            if WPF == 3: e(f"s_cmp_lg_u32 s54, 7168\ns_cbranch_scc1 Lwpf{t}\nglobal_load_dwordx4 v[88:91], v2, s[56:57] offset:896\nLwpf{t}:")
            e("s_add_u32 s50, s50, 2")
    if EXP == 2: e("s_sleep 127\n" * 5)
    e("Lnext:")
    jstamp(e)
    fetch(e)
    e("Ldisp:")
    for t in (J_G128, J_G256, J_AKV, J_ATT, J_AOUT, J_SENT, J_END): e(f"s_cmp_eq_u32 s{TY}, {t}\ns_cbranch_scc1 Ljob{t}")
    for t, G, val, nc in ((J_G64, G64, 1, 1), (J_G128, G128, 1, 2), (J_G256, G256, 2, 2)):
        e(f"Ljob{t}:")
        js = QKV(G(), M[0], N[0])
        js.pre(e)
        def switch(e):
            L = e.label("Lsw")
            e(f"s_mov_b32 s{M[1]}, s{M[0]}\ns_mov_b32 s{N[1]}, s{N[0]}")
            fetch(e); js.srds(e)
            e(f"s_cmp_eq_u32 s{TY}, {t}\ns_cbranch_scc1 {L}\ns_mov_b32 s{SRD_X+2}, 0\ns_mov_b32 s{SRD_W+2}, 0\n{L}:")
        def tile_end(e, Ln):
            js.post(e, M[1], N[1])
            jstamp(e, -1)
            js.g.zero_acc(e)
            e(f"""s_mov_b32 s61, s{M[1]}
s_mov_b32 s{js.g.sPh}, {js.g.sigj}
s_cmp_eq_u32 s{TY}, {t}
s_cbranch_scc1 {Ln}""")
        js.g.run(e, js.nstores(), sig_hook(C_KV, 61, val, nc), switch, tile_end)
        e("s_barrier")
        sig_hook(C_KV, 61, val, nc)(e)
        e("s_branch Ldisp")
    e(f"""Ljob{J_SENT}:
s_add_u32 s52, s{M[0]}, 960
s_lshl_b32 s52, s52, 3
s_add_u32 s52, s52, s{S_WAVE}
s_lshl_b32 s52, s52, 12
v_lshlrev_b32 v2, 4, v0
v_mov_b64 v[4:5], -1
v_mov_b64 v[6:7], -1""")
    make_srd(e, SRD_O, P_WS, 52, WS_OP, WS_SIZE)
    for x in range(4): e(f"buffer_store_dwordx4 v[4:7], v2, s[{SRD_O}:{SRD_O+3}], 0 offen offset:{1024*x} sc1")
    e("s_nop 1\ns_branch Lnext")
    e(f"Ljob{J_AKV}:")
    job_a_kv(e, M[0], "sc1")
    signal(e, C_KVA)
    e(f"s_branch Lnext\nLjob{J_ATT}:")
    j5 = AAttn(M[0], N[0], lambda e: wait(e, F, [(C_KVA, None, 64)]))
    j5.pre(e); j5.main(e); j5.post(e)
    signal(e, C_OA, M[0], 1)
    e(f"s_branch Lnext\nLjob{J_AOUT}:")
    wait(e, F, [(C_OA, M[0], 8)])
    j6 = Out("A", M[0], N[0], 256); j6.pre(e); j6.main(e); j6.post(e)
    e(f"s_barrier\ns_branch Lnext\nLjob{J_END}:")
    U, PC, PE = 72, 73, 74
    e(f"""v_lshlrev_b32 v2, 4, v0
v_and_b32 v3, 15, v0
v_lshlrev_b32 v3, 12, v3
v_bfe_u32 v4, v0, 4, 1
v_lshl_add_u32 v3, v4, 5, v3
v_lshrrev_b32 v4, 5, v0
v_lshl_add_u32 v3, v4, 4, v3
s_mov_b32 s54, 0xffff0000
s_cmp_eq_u32 s{S_WAVE}, 7
s_cbranch_scc1 Lrdone
s_lshl_b32 s{U}, s{S_WAVE}, 7
s_add_u32 s{U}, s{U}, s{W}
s_mov_b32 s{PC}, 0
s_mov_b32 s{PE}, 4
Lrunit:
s_lshr_b32 s76, s{U}, 4
s_lshl_b32 s53, s76, 17
s_add_u32 s76, s76, 4
s_min_u32 s76, s76, 63""")
    poll(e, F, ch.DBG_PROG, None, "s76", t=4, slp=PSL)
    stamp(e, 10, True)
    e(f"""s_and_b32 s52, s{U}, 15
s_lshl_b32 s52, s52, 7
s_add_u32 s53, s53, s52
s_lshl_b32 s52, s{U}, 15""")
    make_srd(e, SRD_X, P_WS, 52, WS_OP, WS_SIZE)
    make_srd(e, SRD_O, P_OUT, 53, 2048, 8388608)
    e(f"Lrpiece:\ns_lshl_b32 s55, s{PC}, 10")
    for g in range(8): e(f"buffer_load_dwordx4 v[{16+4*g}:{19+4*g}], v2, s[{SRD_X}:{SRD_X+3}], s55 offen sc1\ns_add_u32 s55, s55, 4096")
    e(f"""s_add_u32 s{SPIN}, s{SPIN}, 1
s_cmp_gt_u32 s{SPIN}, {ch.SPIN_MAX}
s_cbranch_scc1 {F}
s_lshr_b32 s55, s{PC}, 1
s_lshl_b32 s55, s55, 16
s_and_b32 s56, s{PC}, 1
s_lshl_b32 s56, s56, 6
s_add_u32 s55, s55, s56
s_waitcnt vmcnt(0)
v_max3_u32 v4, v19, v23, v27
v_max3_u32 v5, v31, v35, v39
v_max3_u32 v4, v43, v47, v4
v_max_u32 v4, v4, v5
v_cmp_eq_u32 vcc, -1, v4
s_cbranch_vccnz Lrpiece""")
    A = 48
    for g in range(8):
        for r in range(4):
            d = 16 + 4 * g + r
            if g == 0: e(f"v_lshlrev_b32 v{A+2*r}, 16, v{d}\nv_and_b32 v{A+2*r+1}, s54, v{d}")
            else: e(f"v_lshlrev_b32 v{8+2*r}, 16, v{d}\nv_and_b32 v{9+2*r}, s54, v{d}\nv_pk_add_f32 v[{A+2*r}:{A+2*r+1}], v[{A+2*r}:{A+2*r+1}], v[{8+2*r}:{9+2*r}]")
    for r in range(4): e(f"v_cvt_pk_bf16_f32 v{56+r}, v{A+2*r}, v{A+2*r+1}")
    e(f"""buffer_store_dwordx4 v[56:59], v3, s[{SRD_O}:{SRD_O+3}], s55 offen
s_add_u32 s{PC}, s{PC}, 1
s_cmp_lt_u32 s{PC}, s{PE}
s_cbranch_scc1 Lrpiece
s_cmp_ge_u32 s{U}, 512
s_cbranch_scc1 Lrdone
s_add_u32 s{U}, s{W}, 896
s_mov_b32 s{PC}, s{S_WAVE}
s_add_u32 s{PE}, s{S_WAVE}, 1
s_branch Lrunit
Lrdone:""")
    stamp(e, 11, True); stamp(e, 15)
    if common.DIAG:
        for i in range(1, 10): e(f"v_readlane_b32 s{80+i}, v1, {16+i}")
    stamps_out(e, 16)
    e(f"""Lend:
s_endpgm
{F}:
v_mov_b32 v2, 0
v_mov_b32 v3, 2
global_store_dword v2, v3, s[{P_DBG}:{P_DBG+1}] offset:{ch.DBG_FAIL - 4}
s_endpgm
.p2align 6
Ltab:""")
    for jl in schedule():
        assert len(jl) < 16
        e(".long " + ", ".join(str(t << 16 | m << 8 | n) for t, m, n in jl + [(0, 0, 0)] * (16 - len(jl))))
```

```python
import common
from common import *
import math

SPREAD = 0
def acc_step(): return 256 if SPREAD else 20480
def acc_piece(): return 65 * 256 if SPREAD else 256
KLATE = 8
DELAY_B = -1
CANARY = 1
CGAP = 2
CTHR = 8
FIX_A = -1
WS_CAN = WS_ACC + 0x180000
BR_G = 24576
WS_PR = WS_BR + 0x80000
PR_SLOT = 98304
BR_SLOT = 8 * 32768
HS = 6144
GS = 24576
R1 = 0
R2 = 18432
RL = 28672
YD2 = 65536
YD = 32768
SPIN_MAX = 400000
ACK_B = 1
KVSTEP = 262144
NOKV = 0
LATE_V = 0
XT = 0
XW = 3
STL = 2
PDMA = 1
QL = 0
PPRE = 1
PER = 0
PSW = 0
PACK = 0
PSLIP = 20
SPLIT = 0
VORD = 0
ACK1 = 1
RLATE = 0
ASL = 0
ARF = 1
VPF = 1
DUMP0 = 6
DUMPS = 4
SFLAG = 1
XS2 = 10
PBL = 0
KPOS = 0xe000001000
PL = 98304
VSL = 1
QONE = 1
KVE = 1
VARR = -1
VPOST = 0
AF = 1
KVF = 1
LF = ['', 'sc1', 'nt', 'sc0', 'sc1 nt', 'sc0 sc1']
XSF = 1
RTAB = 0x023579bd
FL2 = 29440
FSL = 2
KPRE = 6
FPOS = 1
OOB = 131072
P1B = 1
BPIPE = 1
FINR = 0
VLATE = 8
FL3 = RL + 256 + 240
FL = 29248
XW23 = 9
RSEL = 0
FORCE_FB = 0
VEARLY = 8
EARLY = -1
EGAP = 2
EADD = 0
EW0 = 1
EPRE = 2
EDLY = 0
XST = 0
XSL = 8
XLD = 2
KEARLY = 8
PLATE = 24
NOQ = 0
PREF = 0
RANK_A = 2
PACE_A = 0
DBG_ARRIVE = 0
DBG_XCC = 4
DBG_PROG = 64
DBG_FAIL = 252 - 172

sStep, sSpin, sMode = 64, 65, 66
sACC, sACCN, sB, sBO, sK, sV, sKVM = 68, 70, 72, 74, 76, 78, 60
sSelE, sSelO, sC, sG, sM, sW = 62, 63, 59, 56, 57, 58
sQ, sQL = 60, 61

TRACE = False
WS_TRACE = WS_DIAG + (1 << 20)
def tr(e, i):
    if TRACE: e(f"s_memrealtime s[{86+2*i}:{87+2*i}]")
def tr_out(e):
    if not TRACE: return
    e(f"""s_waitcnt lgkmcnt(0)
s_lshl_b32 s48, s{S_WG}, 3
s_add_u32 s48, s48, s{S_WAVE}
s_lshl_b32 s48, s48, 6
s_add_u32 s48, s48, s{sStep}
s_lshl_b32 s48, s48, 5
s_add_u32 s48, s48, {WS_TRACE}
v_lshlrev_b32 v13, 2, v0
v_add_u32 v13, s48, v13""")
    for i in range(8): e(f"v_writelane_b32 v12, s{86+2*i}, {i}")
    e(f"s_mov_b64 exec, 0xff\nglobal_store_dword v13, v12, s[{P_WS}:{P_WS+1}]\ns_mov_b64 exec, -1")

def reduce4(e, alo, ahi, st, t=12, scale=None):
    e(f"""ds_read2st64_b32 v[{t}:{t+1}], v{alo} offset0:0 offset1:{st}
ds_read2st64_b32 v[{t+2}:{t+3}], v{ahi} offset0:0 offset1:{st}
ds_read2st64_b32 v[{t+4}:{t+5}], v{alo} offset0:{2*st} offset1:{3*st}
ds_read2st64_b32 v[{t+6}:{t+7}], v{ahi} offset0:{2*st} offset1:{3*st}
s_cmp_lg_u32 s{sMode}, 0
s_waitcnt lgkmcnt(2)
v_add_f32 v{t}, v{t}, v{t+1}
v_add_f32 v{t+2}, v{t+2}, v{t+3}""")
    if scale: e(f"v_mul_f32 v{t}, v{t}, v{scale}\nv_mul_f32 v{t+2}, v{t+2}, v{scale}")
    e(f"""s_waitcnt lgkmcnt(0)
v_add_f32 v{t+4}, v{t+4}, v{t+5}
v_add_f32 v{t+6}, v{t+6}, v{t+7}""")
    if scale: e(f"v_fmac_f32 v{t}, v{t+4}, v{scale}\nv_fmac_f32 v{t+2}, v{t+6}, v{scale}")
    else: e(f"v_add_f32 v{t}, v{t}, v{t+4}\nv_add_f32 v{t+2}, v{t+2}, v{t+6}")
    e(f"v_cvt_pk_bf16_f32 v{t}, v{t}, v{t+2}")

def reduce4n(e, ar, one, t, r):
    e(f"""ds_read_b128 v[{r}:{r+3}], v{ar}
ds_read2st64_b32 v[{t}:{t+1}], v7 offset0:0 offset1:10
ds_read2st64_b32 v[{t+2}:{t+3}], v8 offset0:0 offset1:10
ds_read2st64_b32 v[{t+4}:{t+5}], v7 offset0:20 offset1:30
ds_read2st64_b32 v[{t+6}:{t+7}], v8 offset0:20 offset1:30
s_waitcnt lgkmcnt(2)
v_mul_f32 v{t}, v{t}, v{r}
v_fma_f32 v{t+2}, v{t+2}, v{r}, v{one}
v_fmac_f32 v{t}, v{t+1}, v{r+1}
v_fmac_f32 v{t+2}, v{t+3}, v{r+1}
s_waitcnt lgkmcnt(0)
v_fmac_f32 v{t}, v{t+4}, v{r+2}
v_fmac_f32 v{t+2}, v{t+6}, v{r+2}
v_fmac_f32 v{t}, v{t+5}, v{r+3}
v_fmac_f32 v{t+2}, v{t+7}, v{r+3}
v_cvt_pk_bf16_f32 v{t}, v{t}, v{t+2}""")
def rn_setup(ar, one):
    return f"""v_bfe_u32 v{ar}, v0, 2, 3
v_lshlrev_b32 v{ar}, 4, v{ar}
v_add_u32 v{ar}, {RL + 128}, v{ar}
v_and_b32 v{one}, 3, v0
v_cmp_eq_u32 vcc, 3, v{one}
v_cndmask_b32 v{one}, 0, 1.0, vcc"""

def publish_B(e, tail, d=12):
    ls, lb = e.label("Lslow"), e.label("Lback")
    rs = lambda f: "" if RLATE else f"global_store_dword v6, v11, s[{sBO}:{sBO+1}] {f}"
    e(f"""v_min_u32 v{d}, -2, v{d}
s_cbranch_scc1 {ls}
global_store_dword v6, v{d}, s[{sB}:{sB+1}]
{rs('')}
{lb}:""")
    tail.append(f"""{ls}:
global_store_dword v6, v{d}, s[{sB}:{sB+1}] sc1
{rs('sc1')}
s_branch {lb}""")
def reset_B(e, tail):
    if not RLATE: return
    ls, lb = e.label("Lslow"), e.label("Lback")
    e(f"s_cmp_lg_u32 s{sMode}, 0\ns_cbranch_scc1 {ls}\nglobal_store_dword v6, v11, s[{sBO}:{sBO+1}]\n{lb}:")
    tail.append(f"{ls}:\nglobal_store_dword v6, v11, s[{sBO}:{sBO+1}] sc1\ns_branch {lb}")

def advance(e):
    e(f"""s_add_u32 s{sStep}, s{sStep}, 1
s_mov_b64 s[{sACC}:{sACC+1}], s[{sACCN}:{sACCN+1}]
s_add_u32 s{sACCN}, s{sACCN}, {acc_step()}
s_addc_u32 s{sACCN+1}, s{sACCN+1}, 0
s_mov_b64 s[50:51], s[{sB}:{sB+1}]
s_mov_b64 s[{sB}:{sB+1}], s[{sBO}:{sBO+1}]
s_mov_b64 s[{sBO}:{sBO+1}], s[50:51]""")

def chain(e, L_done, kv_wait=None, arrive_hook=None):
    tail = []
    Lfail = e.label("Lcfail")
    e(f"""s_and_b32 s{sG}, s{S_WG}, 7
s_lshr_b32 s{sM}, s{S_WG}, 3
s_and_b32 s{sW}, s{S_WAVE}, 3
s_mov_b32 s{sStep}, 0
s_mov_b32 s{sSpin}, 0
s_mov_b32 s{sSelE}, 0x05040100
s_mov_b32 s{sSelO}, 0x07060100
s_mov_b32 s{sC}, {hex(f32bits(128 ** -0.5 * math.log2(math.e)))}
s_add_u32 s{sACC}, s{P_WS}, {WS_ACC}
s_addc_u32 s{sACC+1}, s{P_WS+1}, 0
s_add_u32 s{sACCN}, s{sACC}, {acc_step()}
s_addc_u32 s{sACCN+1}, s{sACC+1}, 0
s_mul_i32 s48, s{sG}, {GS}
s_add_u32 s48, s48, {WS_BR}
s_add_u32 s{sB}, s{P_WS}, s48
s_addc_u32 s{sB+1}, s{P_WS+1}, 0
s_add_u32 s{sBO}, s{sB}, {BR_SLOT}
s_addc_u32 s{sBO+1}, s{sB+1}, 0
s_add_u32 s{sK}, s{P_WS}, {WS_KB}
s_addc_u32 s{sK+1}, s{P_WS+1}, 0
s_add_u32 s{sV}, s{P_WS}, {WS_VB}
s_addc_u32 s{sV+1}, s{P_WS+1}, 0
s_add_u32 s{sKVM}, s{P_WS}, {WS_OP - 2*524288}
s_addc_u32 s{sKVM+1}, s{P_WS+1}, 0
v_mov_b32 v11, -1""")
    e("""v_and_b32 v12, 3, v0
v_bfe_u32 v13, v0, 2, 3
v_lshrrev_b32 v14, 5, v0""")
    e("""v_mov_b32 v2, 0x4444
v_mov_b32 v15, 0xeeee
v_and_b32 v16, 8, v0
v_cmp_ne_u32 vcc, 0, v16
v_cndmask_b32 v2, v2, v15, vcc""")
    e(f"""s_lshl_b32 s48, s{S_WAVE}, 4
v_lshlrev_b32 v15, 2, v12
v_lshlrev_b32 v16, 1, v14
v_add3_u32 v15, v15, v16, s48
v_add_u32 v16, 1, v15
v_lshlrev_b32 v17, 5, v12
v_lshl_add_u32 v17, v14, 1, v17
v_add_u32 v17, 13, v17
v_add_u32 v18, 16, v17
s_cmp_eq_u32 s{S_WAVE}, 4
s_cselect_b64 s[48:49], -1, 0
v_cndmask_b32 v15, v15, v17, s[48:49]
v_cndmask_b32 v16, v16, v18, s[48:49]""")
    e("""v_cmp_le_u32 s[50:51], 2, v12
s_and_b64 s[50:51], s[50:51], s[48:49]
v_cmp_eq_u32 s[52:53], 2, v12
s_and_b64 s[52:53], s[52:53], s[48:49]
v_cmp_eq_u32 s[54:55], 3, v12""")
    for col, dst in ((15, 7), (16, 8)):
        e(f"""v_lshrrev_b32 v17, 2, v{col}
v_mul_u32_u24 v17, 160, v17
v_and_b32 v18, 3, v{col}
v_lshlrev_b32 v18, 5, v18
v_add_u32 v17, v17, v18
v_lshl_add_u32 v17, v13, 2, v17
v_add_u32 v{dst}, {R2}, v17""")
    e(f"""v_mov_b32 v17, {R2+132}
v_mov_b32 v18, {R2+132}
v_cndmask_b32 v7, v7, v18, s[50:51]
v_cndmask_b32 v8, v8, v18, s[52:53]
v_cndmask_b32 v8, v8, v17, s[54:55]""")
    e(f"""s_mul_i32 s67, s{sM}, 5
s_add_u32 s67, s67, s{S_WAVE}
s_mul_i32 s67, s67, {acc_piece()}
v_lshlrev_b32 v9, 2, v0
v_add_u32 v9, s67, v9""")
    Ln0 = e.label("Lnomem0")
    e(f"""s_cmp_lg_u32 s{sG}, 0
s_cbranch_scc1 {Ln0}
s_cmp_gt_u32 s{S_WAVE}, 4
s_cbranch_scc1 {Ln0}
s_lshl_b32 s48, s{sM}, 7
v_lshlrev_b32 v17, 11, v13
v_add_u32 v17, s48, v17
v_and_b32 v15, 63, v15
v_and_b32 v16, 63, v16
v_lshl_add_u32 v15, v15, 1, v17
v_lshl_add_u32 v16, v16, 1, v17
global_load_ushort v24, v15, s[{P_MEM0}:{P_MEM0+1}]
global_load_ushort v25, v16, s[{P_MEM0}:{P_MEM0+1}]
v_cndmask_b32 v26, -1, 0, s[50:51]
s_or_b64 s[52:53], s[52:53], s[54:55]
v_cndmask_b32 v27, -1, 0, s[52:53]
v_mov_b32 v17, 0x41000000
v_cndmask_b32 v28, 0, v17, s[54:55]
{Ln0}:""")
    Lz = e.label("Lz")
    e(f"""s_mul_i32 s48, s{S_WG}, 640
s_lshl_b32 s49, s{S_WAVE}, 6
s_add_u32 s48, s48, s49
v_mov_b64 v[16:17], 0
v_mov_b64 v[18:19], 0""")
    for rep in range(2):
        if rep: e(f"s_cmp_gt_u32 s{S_WAVE}, 1\ns_cbranch_scc1 {Lz}\ns_add_u32 s48, s48, 512")
        e("v_add_u32 v15, s48, v0")
        if SPREAD: e("v_lshrrev_b32 v20, 10, v15\nv_lshlrev_b32 v15, 4, v15\nv_lshl_add_u32 v15, v20, 8, v15")
        else: e("v_lshlrev_b32 v15, 4, v15")
        e(f"global_store_dwordx4 v15, v[16:19], s[{sACCN}:{sACCN+1}] sc1")
    e(f"{Lz}:")
    LS2i, Lji = e.label("LS2i"), e.label("Lji")
    e(f"""s_lshr_b32 s48, s{sM}, 2
s_mul_i32 s48, s48, {HS}
s_and_b32 s49, s{sM}, 3
s_cmp_ge_u32 s{S_WAVE}, 4
s_cbranch_scc1 {LS2i}""")
    e(f"""s_and_b32 s50, s{S_WAVE}, 1
s_lshl_b32 s51, s50, 3
v_lshl_add_u32 v15, v12, 1, v14
v_add_u32 v15, s51, v15
v_mul_u32_u24 v15, 96, v15
v_lshl_add_u32 v15, v13, 2, v15
v_add_u32 v4, {R1 + 2*1536}, v15
v_add_u32 v5, 32, v4
s_lshl_b32 s49, s49, 9
s_lshl_b32 s50, s50, 8
s_add_u32 s48, s48, s49
s_add_u32 s48, s48, s50
s_add_u32 s48, s48, 4096
s_branch {Lji}
{LS2i}:""")
    e(f"""s_lshl_b32 s51, s{sW}, 2
v_add_u32 v15, s51, v12
v_mul_u32_u24 v15, 96, v15
v_lshl_add_u32 v15, v13, 2, v15
v_xor_b32 v16, 1, v14
v_mul_u32_u24 v16, 1536, v16
v_add3_u32 v4, v15, v16, {R1}
v_add_u32 v5, 32, v4
s_lshl_b32 s49, s49, 10
s_lshl_b32 s50, s{sW}, 8
s_add_u32 s48, s48, s49
s_add_u32 s48, s48, s50
{Lji}:
v_lshlrev_b32 v6, 2, v0
v_add_u32 v6, s48, v6""")
    e(f"""global_store_dword v6, v11, s[{sB}:{sB+1}] sc1
global_store_dword v6, v11, s[{sBO}:{sBO+1}] sc1
s_min_u32 s48, s{S_WAVE}, 2
s_mul_i32 s49, s{S_WG}, 3
s_add_u32 s48, s48, s49
s_lshl_b32 s48, s48, 8
s_add_u32 s48, s48, {WS_PR}
v_lshl_add_u32 v15, v0, 2, s48
global_store_dword v15, v11, s[{P_WS}:{P_WS+1}] sc1
""")
    def arrive(n):
        La = e.label("La")
        e(f"""s_waitcnt vmcnt({n})
s_cmp_lg_u32 s{sG}, 0
s_cbranch_scc1 {La}_n
s_cmp_gt_u32 s{S_WAVE}, 4
s_cbranch_scc1 {La}_n
v_and_b32 v24, v24, v26
v_and_b32 v25, v25, v27
v_lshl_or_b32 v24, v25, 16, v24
v_or_b32 v24, v24, v28
global_store_dword v9, v24, s[{sACC}:{sACC+1}] sc1
s_waitcnt vmcnt(0)
{La}_n:
s_barrier""")
        stamp(e, 6, True)
        e(f"""s_cmp_lg_u32 s{S_WAVE}, 7
s_cbranch_scc1 {La}
s_getreg_b32 s48, hwreg(HW_REG_XCC_ID)
s_and_b32 s48, s48, 15
s_mul_i32 s49, s48, s48
s_lshl_b32 s49, s49, 8
s_add_u32 s48, s48, s49
s_lshl_b32 s48, s48, 8
s_add_u32 s48, s48, 1
s_lshl_b32 s49, s{sG}, 2
s_mov_b64 exec, 1
v_mov_b32 v15, s49
v_mov_b32 v16, s48
global_atomic_add v15, v16, s[{P_DBG}:{P_DBG+1}] offset:{DBG_XCC}
s_mov_b64 exec, -1
{La}:""")
    LS2 = e.label("LS2")
    e(f"s_cmp_ge_u32 s{S_WAVE}, 4\ns_cbranch_scc1 {LS2}")

    def wait_start():
        stamp(e, 7, True)
        Lw = e.label("Lws")
        e(f"""v_and_b32 v12, 7, v0
v_lshlrev_b32 v12, 2, v12
{Lw}:
s_sleep 4
global_load_dword v14, v12, s[{P_DBG}:{P_DBG+1}] offset:{DBG_XCC} sc1
s_add_u32 s{sSpin}, s{sSpin}, 1
s_cmp_gt_u32 s{sSpin}, {SPIN_MAX}
s_cbranch_scc1 {Lfail}
s_waitcnt vmcnt(0)
v_and_b32 v13, 255, v14
v_cmp_gt_u32 vcc, 16, v13
s_cbranch_vccnz {Lw}
v_readlane_b32 s48, v14, s{sG}
s_bfe_u32 s49, s48, 0x80008
s_mul_i32 s49, s49, s49
s_lshr_b32 s48, s48, 16
s_lshl_b32 s48, s48, 4
s_sub_u32 s{sMode}, s48, s49""")
    nextrow = f"""s_add_u32 s54, s54, {16*8192}
s_bitcmp1_b32 s54, 19
s_cselect_b32 s55, {192*8192}, 0
s_add_u32 s54, s54, s55"""

    W1 = 64; G = 20; AC = 40
    e(f"""s_lshl_b32 s48, s{sG}, 2
s_lshr_b32 s49, s{sM}, 2
s_add_u32 s48, s48, s49
s_lshl_b32 s48, s48, 8
s_and_b32 s49, s{sM}, 3
s_lshl_b32 s49, s49, 6
s_add_u32 s48, s48, s49
s_lshl_b32 s49, s{sW}, 19
s_add_u32 s52, s48, s49
v_lshrrev_b32 v12, 2, v0
v_lshlrev_b32 v12, 13, v12
v_and_b32 v13, 3, v0
v_lshl_add_u32 v12, v13, 4, v12
s_lshl_b32 s53, s{sW}, 15""")
    e(f"""v_lshrrev_b32 v13, 5, v0
v_lshlrev_b32 v13, 6, v13
v_bfe_u32 v14, v0, 4, 1
v_lshl_add_u32 v13, v14, 3, v13
v_bfe_u32 v14, v0, 2, 2
v_add_u32 v13, v13, v14
v_lshlrev_b32 v13, 6, v13
v_and_b32 v14, 3, v0
v_lshl_add_u32 v13, v14, 3, v13
v_add_u32 v13, s53, v13""")
    def w1_dma(both):
        L = e.label("Lw1")
        e(f"""s_mov_b32 m0, s53
s_mov_b32 s54, 0
{L}:
buffer_load_dwordx4 v12, s[{SRD_W}:{SRD_W+3}], s54 offen lds""")
        if both: e(f"s_add_u32 m0, m0, 16384\nbuffer_load_dwordx4 v12, s[{SRD_O}:{SRD_O+3}], s54 offen lds")
        e(f"""s_add_u32 m0, m0, {hex((1024 - 16384 * both) & 0xffffffff)}
{nextrow}
s_cmp_lt_u32 s54, {1024*8192}
s_cbranch_scc1 {L}""")
    def w1_read(mat, half):
        for ch in range(2):
            for i in range(4):
                r = W1 + ((2 * mat + ch) * 4 + i) * 8
                for q in range(2):
                    for h in range(2):
                        e(f"ds_read_b64_tr_b16 v[{r+4*q+2*h}:{r+4*q+2*h+1}], v13 offset:{half*16384 + (128*q + 16*i + 4*h)*64 + 32*ch}")
    make_srd(e, SRD_W, P_BWQ, 52, 0, 8388608); make_srd(e, SRD_O, P_BWK, 52, 0, 8388608)
    w1_dma(1)
    arrive(32)
    make_srd(e, SRD_W, P_BWV, 52, 0, 8388608)
    e("s_waitcnt vmcnt(0)")
    stamp(e, 8, True)
    w1_read(0, 0)
    e("s_waitcnt lgkmcnt(0)")
    w1_dma(0)
    w1_read(1, 1)
    e("s_waitcnt vmcnt(0)")
    w1_read(2, 0)
    e(f"""v_lshrrev_b32 v1, 4, v0
v_lshl_add_u32 v1, v1, 2, s{sW}
v_mul_u32_u24 v1, {5*acc_piece()}, v1
v_and_b32 v14, 15, v0
v_lshl_add_u32 v1, v14, 4, v1
v_lshrrev_b32 v15, 5, v0
v_lshl_add_u32 v14, v15, 4, v14
v_lshrrev_b32 v15, 1, v14
v_mul_u32_u24 v15, 96, v15
v_and_b32 v14, 1, v14
v_lshl_add_u32 v15, v14, 5, v15
v_bfe_u32 v14, v0, 4, 1
v_lshl_add_u32 v15, v14, 4, v15
s_mul_i32 s48, s{sW}, 4608
s_add_u32 s48, s48, {R1}
v_add_u32 v3, s48, v15
s_waitcnt lgkmcnt(0)""")
    make_srd(e, SRD_X, P_WS, None, 0, WS_SIZE)
    e(f"""s_and_b32 s48, s{S_WAVE}, 1
s_mul_i32 s47, s48, 1536
s_add_u32 s54, s47, {PL}
s_mul_i32 s53, s{sW}, 3072
s_sub_u32 s52, s53, s47
s_add_u32 s53, s53, {PL}
s_mul_i32 s49, s{sG}, 12288
s_add_u32 s47, s47, s49
s_add_u32 s47, s47, {WS_PR}
s_lshl_b32 s48, s48, 11
s_lshl_b32 s43, s{S_WG}, 12
s_add_u32 s43, s43, s48
s_lshr_b32 s48, s{S_WAVE}, 1
s_mul_i32 s42, s48, 3072
s_add_u32 s42, s42, {YD}
s_lshl_b32 s48, s48, 10
s_add_u32 s43, s43, s48""")
    wait_start()
    e("s_barrier")
    e("s_barrier")
    e("s_setprio 3\ns_mov_b32 s67, 0x41000000")
    if common.DIAG: e("s_mov_b32 s85, 0\ns_mov_b32 s83, 0")
    stamp(e, 1, True)
    L1, LpA, L1x = e.label("L1"), e.label("LpA"), e.label("L1x")
    assert not SPREAD
    xstore = f"global_store_dwordx4 v15, v[16:19], s[{sKVM}:{sKVM+1}] {LF[XSF]}"
    e("v_lshl_add_u32 v15, v0, 4, s43")
    e(f"{L1}:")
    if not XT: tr(e, 7)
    e(f"{LpA}:")
    tr(e, 0)
    lda = lambda f: "\n".join(f"global_load_dwordx4 v[{G+4*i}:{G+4*i+3}], v1, s[{sACC}:{sACC+1}] offset:{256*i} {f}" for i in (4, 0, 1, 2, 3))
    e(lda(LF[AF]) + f"\n{LpA}_j:")
    if STL == 1: e(xstore)
    if VLATE: e(f"s_lshl_b32 s48, s{sW}, 2\nv_mov_b32 v12, s48\nv_mov_b32 v13, s{sStep}")
    flg = f"ds_write_b32 v12, v13 offset:{FL}" if VLATE else ""
    if VARR < 0: e(flg)
    e(f"s_add_u32 s{sSpin}, s{sSpin}, 1\ns_cmp_gt_u32 s{sSpin}, {SPIN_MAX}\ns_cbranch_scc1 {Lfail}")
    for r in range(0, 24, 2): e(f"v_mov_b64 v[{AC+r}:{AC+r+1}], 0")
    def sm1(c, i):
        w = W1 + (c * 4 + i) * 8
        return f"v_smfmac_f32_16x16x64_bf16 v[{AC+4*c}:{AC+4*c+3}], v[{G+4*i}:{G+4*i+3}], v[{w}:{w+7}], v2"
    def arr(i):
        d3 = G + 4 * i + 3
        e(f"s_waitcnt vmcnt({3-i+(STL == 1)})")
        if i == 3: tr(e, 1)
        if i == VARR: e(flg)
        e(f"v_min_u32 v10, v{d3}, v{G+19 if i == 0 else 10}")
        e(f"v_perm_b32 v{d3}, v{G+16+i//2}, v{d3}, s{sSelO if i & 1 else sSelE}")
    def epi(p):
        a, b = AC + 8 * p, AC + 8 * p + 4
        return [f"v_permlane32_swap_b32 v{a+r}, v{b+r}" for r in range(4)] + [f"v_add_f32 v{a+r}, v{a+r}, v{b+r}" for r in range(4)] + [f"ds_write_b128 v3, v[{a}:{a+3}] offset:{p*1536}"]
    chkA = f"v_cmp_gt_u32 vcc, s67, v10"
    if SPLIT:
        arr(0); e(sm1(0, 0)); e(sm1(1, 0)); e(sm1(2, 0))
        arr(1); e(sm1(3, 0)); e(sm1(0, 1))
        arr(2); e(sm1(1, 1)); e(sm1(0, 2))
        arr(3); e(sm1(1, 2))
        e(chkA); e(sm1(0, 3)); e(f"s_cbranch_vccnz {LpA}_retry"); e(sm1(1, 3))
        e(sm1(2, 1) + "\ns_nop 1"); e(sm1(3, 1) + "\ns_nop 1"); e(sm1(2, 2) + "\ns_nop 0")
        f = epi(0)
        for c, i in ((3, 2), (2, 3), (3, 3), (4, 0)):
            e(sm1(c, i)); e(f.pop(0)); e(f.pop(0))
        e(f.pop(0)); e(sm1(5, 0))
        for x in epi(1): e(x)
        e(f"s_setprio {P1B}")
        e(sm1(4, 1)); e(sm1(5, 1))
        tr(e, 2)
        e("s_waitcnt lgkmcnt(0)\ns_barrier")
        for c, i in ((4, 2), (5, 2), (4, 3), (5, 3)): e(sm1(c, i))
        for x in epi(2): e(x)
    else:
        f = epi(0) + epi(1) + epi(2)
        arr(0)
        for c in range(5): e(sm1(c, 0))
        arr(1); e(sm1(5, 0))
        for c in range(3): e(sm1(c, 1))
        arr(2); e(sm1(3, 1))
        e(sm1(0, 2)); arr(3); e(sm1(1, 2))
        e(chkA); e(sm1(0, 3)); e(f"s_cbranch_vccnz {LpA}_retry"); e(sm1(1, 3))
        for c, i in ((2, 2), (3, 2), (2, 3), (3, 3)): e(sm1(c, i) + "\ns_nop 0")
        for c, i in ((4, 1), (5, 1), (4, 2), (5, 2), (4, 3), (5, 3)):
            e(sm1(c, i)); e(f.pop(0)); e(f.pop(0))
        for x in f: e(x)
        tr(e, 2)
    tail.append(f"{LpA}_retry:\ns_nop 7\ns_sleep {ASL}\n" + ("s_add_u32 s85, s85, 1\n" if common.DIAG else "") + lda(LF[ARF]) + f"\ns_branch {LpA}_j")
    e(f"s_setprio {P1B}\ns_waitcnt lgkmcnt(0)\ns_barrier")
    tr(e, 3)
    Lnp = e.label("Lnp")
    e(f"s_cmp_gt_u32 s{S_WAVE}, 1\ns_cbranch_scc1 {Lnp}_o")
    reduce4(e, 4, 5, 18, 24)
    publish_B(e, tail, 24)
    e(f"{'s_waitcnt vmcnt(0)' if ACK1 else ''}\n{Lnp}:")
    tail.append(f"""{Lnp}_o:
s_sleep {XW23}
s_lshl_b32 s48, s{S_WG}, 3
s_add_u32 s48, s48, s{S_WAVE}
s_cmp_lg_u32 s48, 2
s_cbranch_scc1 {Lnp}
v_mov_b32 v20, 0
v_mov_b32 v21, s{sStep}
s_mov_b64 exec, 1
global_store_dword v20, v21, s[{P_DBG}:{P_DBG+1}] offset:{DBG_PROG} sc1
""" + (f"""s_cmp_lg_u32 s{sStep}, 12
s_cbranch_scc1 {Lnp}_t12
s_memrealtime s[48:49]
s_waitcnt lgkmcnt(0)
s_add_u32 s48, s48, 750
v_mov_b32 v21, s48
global_store_dword v20, v21, s[{P_DBG}:{P_DBG+1}] offset:88 sc1
{Lnp}_t12:
""" if PER else "") + f"""s_mov_b64 exec, -1
s_branch {Lnp}""")
    PXr = [40 + 4 * h for h in range(4)]; PMr = [56 + 2 * h for h in range(4)]; XA = 12; YB = [32, 36, 24, 28]
    ldp = "v_lshlrev_b32 v18, 4, v0\nv_lshlrev_b32 v19, 3, v0\n" + "\n".join(
        f"buffer_load_dwordx4 v[{PXr[h]}:{PXr[h]+3}], v18, s[{SRD_X}:{SRD_X+3}], s{44+h//2} offen offset:{(h%2)*3072} sc1\n"
        f"buffer_load_dwordx2 v[{PMr[h]}:{PMr[h]+1}], v19, s[{SRD_X}:{SRD_X+3}], s{40+h//2} offen offset:{(h%2)*3072} sc1" for h in range(4))
    tr_out(e)
    if common.DIAG and not TRACE:
        e(f"s_cmp_lg_u32 s{sStep}, 16\ns_cbranch_scc1 {Lnp}_s16\ns_mov_b32 s85, 0"); stamp(e, 9, True); e(f"{Lnp}_s16:")
    e(f"""{Lnp}_e:
s_xor_b32 s42, s42, {YD ^ YD2}
s_add_u32 s44, s{sStep}, 3
s_and_b32 s44, s44, 3
s_mul_i32 s44, s44, {PR_SLOT}
s_add_u32 s44, s44, s47
s_add_u32 s45, s44, 6144
s_add_u32 s40, s44, 1024
s_add_u32 s41, s45, 1024
v_lshl_add_u32 v20, v0, 4, s42
v_add_u32 v21, 8, v20""")
    e(rn_setup(23, 24))
    rd = [(h, k) for h in (0, 2) for k in range(6)]
    def rdy(i):
        h, k = rd[i]; b = YB[i % 4]
        if k < 4: return f"ds_read_b128 v[{b}:{b+3}], v20 offset:{(h + k//2)*6144 + (k%2)*1024}"
        return f"ds_read2st64_b64 v[{b}:{b+3}], v{20 + k - 4} offset0:{12*h + 4} offset1:{12*h + 16}"
    rdp = [f"ds_read_b128 v[{PXr[h]}:{PXr[h]+3}], v22 offset:{h*3072}" for h in range(4)] + [f"ds_read2st64_b64 v[{PMr[h]}:{PMr[h]+3}], v25 offset0:{6*h + 2} offset1:{6*h + 8}" for h in (0, 2)]
    e(f"""s_cmp_eq_u32 s{sStep}, 64
s_cbranch_scc1 {Lnp}_f
s_add_u32 s55, s44, s52
s_mov_b32 m0, s53
v_lshlrev_b32 v14, 4, v0
v_lshl_add_u32 v22, v0, 4, s54
v_lshl_add_u32 v25, v0, 3, s54
s_lshl_b32 s48, s{sW}, 2
s_add_u32 s49, s{sStep}, 1
v_mov_b32 v26, s48
v_mov_b32 v27, s49
v_and_b32 v12, {7 if PPRE else 3}, v0
v_lshlrev_b32 v12, 2, v12
s_sleep {XW}""")
    for x in range(3): e(f"buffer_load_dwordx4 v14, s[{SRD_X}:{SRD_X+3}], s55 offen offset:{x*1024} sc1 lds")
    if RLATE:
        e(f"s_cmp_gt_u32 s{S_WAVE}, 1\ns_cbranch_scc1 {Lnp}_rs"); reset_B(e, tail); e(f"{Lnp}_rs:")
    e(f"""s_waitcnt vmcnt(0)
ds_write_b32 v26, v27 offset:{FL3 + 16}
{Lnp}_w:
s_sleep {FSL}
ds_read_b32 v13, v12 offset:{FL3}
s_add_u32 s{sSpin}, s{sSpin}, 1
s_cmp_gt_u32 s{sSpin}, {SPIN_MAX}
s_cbranch_scc1 {Lfail}
s_waitcnt lgkmcnt(0)
v_cmp_ge_u32 vcc, s{sStep}, v13
s_cbranch_vccnz {Lnp}_w
{xstore}""")
    if PPRE:
        for x in rdp + [rdy(i) for i in range(PPRE - 1)]: e(x)
    e(f"{Lnp}_g:")
    tail.append(f"{Lnp}_f:\ns_barrier\ns_add_u32 s{sKVM}, s{sKVM}, 524288\ns_addc_u32 s{sKVM+1}, s{sKVM+1}, 0\n" + "\n".join(rdy(i) for i in range(4)) + f"\ns_branch {Lnp}_r")
    e(f"s_add_u32 s{sKVM}, s{sKVM}, 524288\ns_addc_u32 s{sKVM+1}, s{sKVM+1}, 0\ns_setprio 3")
    e("s_barrier")
    tr(e, 4)
    reduce4n(e, 23, 24, 12, 28)
    e(f"global_atomic_pk_add_bf16 v10, v9, v12, s[{sACCN}:{sACCN+1}] sc0")
    tr(e, 5)
    e(f"s_cmp_eq_u32 s{sStep}, 0\ns_cbranch_scc1 {Lnp}_q")
    if not PPRE:
        for x in rdp: e(x)
    for i in range(max(0, PPRE - 1), 4): e(rdy(i))
    e(f"""s_waitcnt lgkmcnt(4)
{Lnp}_c:
v_max3_u32 v13, v43, v47, v51
v_max3_u32 v14, v55, v57, v59
v_max3_u32 v13, v61, v63, v13
v_max_u32 v13, v13, v14
v_cmp_eq_u32 vcc, -1, v13
s_cbranch_vccnz {Lnp}_r""")
    tail.append(f"{Lnp}_r:\n{ldp}\ns_add_u32 s{sSpin}, s{sSpin}, 1\ns_cmp_gt_u32 s{sSpin}, {SPIN_MAX}\ns_cbranch_scc1 {Lfail}\n" + ("s_add_u32 s83, s83, 1\n" if common.DIAG else "") + f"s_waitcnt vmcnt(0)\ns_branch {Lnp}_c")
    nxt = 4
    for i, (h, k) in enumerate(rd):
        b = YB[i % 4]; a = XA + 4 * (k % 2); pr = PXr[h + k // 2] if k < 4 else PMr[h]
        e(f"s_waitcnt lgkmcnt({nxt - 1 - i})")
        e(f"v_mfma_f32_16x16x32_bf16 v[{a}:{a+3}], v[{b}:{b+3}], v[{pr}:{pr+3}], " + ("0" if h == 0 and k < 2 else f"v[{a}:{a+3}]"))
        if nxt < len(rd): e(rdy(nxt)); nxt += 1
    for x in (3, 2, 0, 1): e(f"v_cvt_pk_bf16_f32 v{16+x}, v{XA+2*x}, v{XA+2*x+1}")
    e(f"v_permlane16_swap_b32 v16, v18\nv_permlane16_swap_b32 v17, v19\nv_min_u32 v19, -2, v19\n{Lnp}_q:\nv_lshl_add_u32 v15, v0, 4, s43")
    if not STL: e(xstore)
    if XT: tr(e, 7)
    e(f"s_cmp_ge_u32 s{sStep}, 63\ns_cbranch_scc1 {L1x}")
    advance(e)
    if PER:
        Lt = e.label("Lt")
        e(f"""s_cmp_lt_u32 s{sStep}, 16
s_cbranch_scc1 {Lt}_r
s_cmp_lg_u32 s{sStep}, 16
s_cbranch_scc1 {Lt}_n
v_mov_b32 v12, 0
global_load_dword v13, v12, s[{P_DBG}:{P_DBG+1}] offset:88 sc1
s_waitcnt vmcnt(0)
v_readfirstlane_b32 s46, v13
{Lt}_n:
s_add_u32 s46, s46, {PER}
{f's_sub_u32 s46, s46, s{sStep}' if PSW else ''}
{'s_waitcnt vmcnt(0)' if PACK else ''}
{Lt}:
s_memrealtime s[48:49]
s_waitcnt lgkmcnt(0)
s_sub_u32 s48, s48, s46
s_cmp_lt_i32 s48, 0
s_cbranch_scc1 {Lt}
s_cmp_lt_i32 s48, {PSLIP}
s_cbranch_scc1 {L1}
{Lt}_r:""")
    e(f"s_waitcnt vmcnt({0 if STL else 1})")
    tr(e, 6)
    Lr = e.label("Lrank")
    e(f"""v_and_b32 v10, 0xffff0000, v10
v_cvt_u32_f32 v10, v10
v_readlane_b32 s48, v10, 3
s_lshl_b32 s48, s48, 2
s_lshr_b32 s48, {hex(RTAB)}, s48
s_and_b32 s48, s48, 15
{Lr}:
s_cbranch_scc0 {L1}
s_sleep 1
s_sub_u32 s48, s48, 1
s_cmp_lg_u32 s48, 0
s_branch {Lr}
{L1x}:
{xstore if STL else ''}
s_setprio 0
s_add_u32 s{sStep}, s{sStep}, 1
s_cmp_eq_u32 s{sStep}, 64
s_cbranch_scc1 {Lnp}_e
s_branch {L_done}""")

    e(f"{LS2}:")
    T, VV, S0, S1_, SM, PX, PM, YM, O, LS, YX, KX, VX, WO = 28, 44, 52, 56, 60, 64, 68, 72, 88, 104, 108, 124, 156, 188
    ON16, ON32 = 22, 24
    DQ, NEG = 252, 253
    e(f"""s_lshl_b32 s48, s{sG}, 2
s_add_u32 s48, s48, s{sW}
s_lshl_b32 s55, s48, 13
s_lshl_b32 s48, s48, 18
s_lshl_b32 s49, s{sM}, 7
s_add_u32 s52, s48, s49
v_lshrrev_b32 v12, 3, v0
v_lshlrev_b32 v12, 11, v12
v_and_b32 v13, 7, v0
v_lshl_add_u32 v12, v13, 4, v12
s_lshl_b32 s53, s{sW}, 13
s_add_u32 s53, s53, 131072
v_lshrrev_b32 v13, 4, v0
v_lshlrev_b32 v13, 3, v13
v_bfe_u32 v14, v0, 2, 2
v_add_u32 v13, v13, v14
v_lshlrev_b32 v13, 7, v13
v_and_b32 v14, 3, v0
v_lshl_add_u32 v13, v14, 3, v13
v_add_u32 v13, s53, v13""")
    make_srd(e, SRD_W, P_BWO, 52, 0, 8388608)
    def vpf():
        e(f"""s_lshl_b32 s48, s{sG}, 2
s_lshr_b32 s49, s{sM}, 2
s_add_u32 s48, s48, s49
s_lshl_b32 s48, s48, 8
s_and_b32 s49, s{sM}, 3
s_lshl_b32 s49, s49, 6
s_add_u32 s48, s48, s49
s_lshl_b32 s49, s{sW}, 19
s_add_u32 s48, s48, s49
v_lshrrev_b32 v14, 2, v0
v_lshlrev_b32 v14, 13, v14
v_and_b32 v15, 3, v0
v_lshl_add_u32 v14, v15, 4, v14""")
        make_srd(e, SRD_X, P_BWV, 48, 0, 8388608)
        L = e.label("Lvpf")
        e(f"s_mov_b32 s54, 0\n{L}:\nbuffer_load_dwordx4 v[64:67], v14, s[{SRD_X}:{SRD_X+3}], s54 offen\n{nextrow.replace('s55', 's49')}\ns_cmp_lt_u32 s54, {1024*8192}\ns_cbranch_scc1 {L}")
    vpf()
    for rnd in range(2):
        L = e.label("Lwo")
        e(f"""s_mov_b32 m0, s53
s_mov_b32 s54, {rnd*64*2048}
{L}:
buffer_load_dwordx4 v12, s[{SRD_W}:{SRD_W+3}], s54 offen lds
s_add_u32 s54, s54, {8*2048}
s_add_u32 m0, m0, 1024
s_cmp_lt_u32 s54, {(rnd+1)*64*2048}
s_cbranch_scc1 {L}""")
        if rnd == 0: arrive(24)
        e("s_waitcnt vmcnt(0)")
        for ct in range(4):
            for jj in range(2):
                r = WO + (ct * 4 + rnd * 2 + jj) * 4
                for h in range(2):
                    e(f"ds_read_b64_tr_b16 v[{r+2*h}:{r+2*h+1}], v13 offset:{(32*jj + 4*h)*128 + 32*ct}")
        e("s_waitcnt lgkmcnt(0)")
    e(f"""s_mul_i32 s48, s{sW}, {HS}
v_lshlrev_b32 v14, 4, v0
v_add_u32 v1, s48, v14
v_add_u32 v20, s55, v14
s_lshl_b32 s49, s{sM}, 9
s_add_u32 s55, s55, s49
s_add_u32 s55, s55, {2*KVSTEP}
v_and_b32 v15, 15, v0
v_lshrrev_b32 v16, 2, v15
v_mul_u32_u24 v16, 160, v16
v_and_b32 v15, 3, v15
v_lshl_add_u32 v16, v15, 5, v16
v_bfe_u32 v15, v0, 4, 1
v_lshl_add_u32 v16, v15, 4, v16
s_mul_i32 s48, s{sW}, 2560
s_add_u32 s48, s48, {R2}
v_add_u32 v3, s48, v16
v_mov_b32 v{ON32}, 0x3f803f80
v_mov_b32 v{ON32+1}, 0x3f803f80
v_mov_b32 v{ON32+2}, 0x3f803f80
v_mov_b32 v{ON32+3}, 0x3f803f80
v_cmp_gt_u32 vcc, 32, v0
v_cndmask_b32 v{ON16}, 0, v{ON32}, vcc
v_cndmask_b32 v{ON16+1}, 0, v{ON32}, vcc""")
    e(f"""v_and_b32 v15, 15, v0
v_lshrrev_b32 v16, 4, v0
s_mul_i32 s48, s{sW}, 6144
s_add_u32 s48, s48, {YD}
v_lshl_add_u32 v21, v0, 4, s48
s_and_b32 s48, s{sM}, 3
s_lshl_b32 s49, s48, 3
v_lshlrev_b32 v16, 2, v16
v_sub_u32 v15, v15, v16
v_add_u32 v15, s49, v15
s_mov_b32 s40, 0xff00ff00
s_mov_b32 s41, 0xff00ff00
v_cndmask_b32 v{DQ}, v15, 64, s[40:41]
v_mov_b32 v{NEG}, 0xf149f2ca
s_lshr_b32 s49, s48, 1
s_and_b32 s48, s48, 1
s_lshl_b32 s48, s48, 7
s_lshl_b32 s{sQ}, s49, 12
s_add_u32 s{sQ}, s{sQ}, s48
s_sub_u32 s55, s55, s{sQ}
s_mul_i32 s42, s{sW}, 3072
s_mul_i32 s43, s{sG}, 12288
s_add_u32 s42, s42, s43
s_mul_i32 s43, s49, 1536
s_add_u32 s42, s42, s43
s_add_u32 s43, s42, s48
s_lshr_b32 s48, s48, 1
s_add_u32 s44, s42, s48
s_add_u32 s44, s44, 1024
s_lshr_b32 s45, s{sM}, 2""")
    make_srd(e, SRD_X, P_WS, None, WS_QB, WS_SIZE)
    e(rn_setup(254, 255))
    wait_start()
    e("s_barrier")
    e(f"""s_mul_i32 s48, s{sW}, 2560
s_add_u32 s48, s48, {R2+128}
v_mov_b32 v12, s48
v_mov_b32 v14, 0x3e800000
v_mov_b32 v15, 0
ds_write_b64 v12, v[14:15]""")
    kv_wait(e, Lfail, 0)
    e(f"""s_waitcnt lgkmcnt(0)
s_barrier
s_setprio 2
v_mov_b32 v14, s{sC}
v_cmp_gt_u32 vcc, 32, v0
v_cndmask_b32 v14, v14, 1.0, vcc
v_and_b32 v15, 15, v0
s_lshl_b32 s48, s{sW}, 2
s_add_u32 s48, s48, {RL}
v_lshl_add_u32 v15, v15, 4, s48
v_mov_b32 v16, 0
ds_write_b32 v15, v16 offset:256
ds_write_b32 v15, v16 offset:272
v_mov_b32 v16, 1
v_add_u32 v18, 4096, v1
v_add_u32 v19, 4096, v20
s_cmp_eq_u32 s45, s{sW}
s_cselect_b32 s52, 0x00ff00ff, 0
s_mov_b32 s53, s52
s_or_b64 vcc, s[52:53], s[40:41]
v_mov_b32 v17, 0x3c000000
v_cndmask_b32 v17, -1, v17, vcc
s_mov_b32 s46, 0x21800000""")
    def kv_loads(reg, base):
        if NOKV & (1 if reg == KX else 2): return ["s_nop 0"] * 8
        return [f"global_load_dwordx4 v[{reg+4*x}:{reg+4*x+3}], v{20 if x < 4 else 19}, s[{base}:{base+1}] offset:{(x%4)*1024} {LF[KVF]}" for x in range(8)]
    def yacc(ct, tt): return T + (ct * 2 + tt) * 4
    def yx_mf():
        return [f"v_mfma_f32_16x16x32_bf16 v[{yacc(ct,tt)}:{yacc(ct,tt)+3}], v[{VX+(tt*4+ks)*4}:{VX+(tt*4+ks)*4+3}], v[{WO+(ct*4+ks)*4}:{WO+(ct*4+ks)*4+3}], " + ("0" if ks == 0 else f"v[{yacc(ct,tt)}:{yacc(ct,tt)+3}]")
                for ks in range(4) for tt in range(2) for ct in range(4)]
    def yx_cvt():
        return [f"v_cvt_pk_bf16_f32 v{YX+ct*4+x}, v{yacc(ct,0)+2*x}, v{yacc(ct,0)+2*x+1}" for ct in range(4) for x in range(4)] + [f"v_mov_b64 v[{YM+r}:{YM+r+1}], 0" for r in range(0, 16, 2)]
    def q_loads():
        L = [f"buffer_load_dwordx4 v[{O+4*x}:{O+4*x+3}], v20, s[{SRD_X}:{SRD_X+3}], s{sQ} offen offset:{x*1024} {LF[KVF]}" for x in range(4)]
        return ("s_mov_b64 exec, s[52:53]\n" if QONE else "s_not_b64 exec, s[40:41]\n") + "\n".join(L) + f"\ns_mov_b64 exec, -1\ns_add_u32 s{sQ}, s{sQ}, {KVSTEP}"
    def mask_init():
        m = ["vcc", "s[48:49]", "s[50:51]", "s[54:55]"]
        return [x for h in range(2) for x in [f"v_cmp_gt_i32 {m[r]}, {r + 16*h}, v{DQ}" for r in range(4)] + [f"v_cndmask_b32 v{S0+4*h+r}, 0, v{NEG}, {m[r]}" for r in range(4)]]
    kvadv = f"""s_add_u32 s{sV}, s{sV}, {KVSTEP}
s_addc_u32 s{sV+1}, s{sV+1}, 0
s_add_u32 s{sK}, s{sK}, {KVSTEP}
s_addc_u32 s{sK+1}, s{sK+1}, 0"""
    E = T
    def xpart(ld):
        Lp, Lv = e.label("Lxp"), e.label("Lv")
        e(f"s_cmp_eq_u32 s45, s{sW}\ns_cbranch_scc1 {Lp}")
        def pst(f): return f"""buffer_store_dwordx4 v[{PX}:{PX+3}], v12, s[{SRD_X}:{SRD_X+3}], s48 offen {f}
buffer_store_dwordx2 v[{PM}:{PM+1}], v13, s[{SRD_X}:{SRD_X+3}], s48 offen {f}
buffer_store_dwordx4 v[{SM}:{SM+3}], v12, s[{SRD_X}:{SRD_X+3}], s49 offen {f}
buffer_store_dwordx2 v[{SM}:{SM+1}], v13, s[{SRD_X}:{SRD_X+3}], s49 offen {f}
s_mov_b64 exec, -1
{f's_cmp_lg_u32 s{sStep}, 63' if PBL else ''}
{f's_cbranch_scc1 {Lv}_t' if PBL else ''}
s_branch {Lv}"""
        tail.append(f"""{Lp}:
""" + "\n".join(f"v_mul_f32 v{r}, v{r}, v{LS+1}" for r in list(range(E + 8, E + 12)) + list(range(E, E + 8))) + f"""
v_cvt_pk_bf16_f32 v{PM}, v{E+8}, v{E+9}
v_cvt_pk_bf16_f32 v{PM+1}, v{E+10}, v{E+11}
v_cvt_pk_bf16_f32 v{PX}, v{E}, v{E+1}
v_mov_b32 v{PM+2}, v{PM}
v_mov_b32 v{PM+3}, v{PM+1}
v_cvt_pk_bf16_f32 v{PX+1}, v{E+2}, v{E+3}
v_cvt_pk_bf16_f32 v{PX+2}, v{E+4}, v{E+5}
v_permlane32_swap_b32 v{PM}, v{PM+2}
v_permlane32_swap_b32 v{PM+1}, v{PM+3}
v_cvt_pk_bf16_f32 v{PX+3}, v{E+6}, v{E+7}
{f's_cmp_lg_u32 s{sStep}, 63' if PBL else ''}
{f's_cbranch_scc1 {Lv}' if PBL else ''}
{Lp}_t:
v_lshl_add_u32 v12, v0, 4, s43
v_lshl_add_u32 v13, v0, 3, s44
s_and_b32 s48, s{sStep}, 3
s_mul_i32 s48, s48, {PR_SLOT}
s_add_u32 s48, s48, {WS_PR}
s_add_u32 s49, s{sStep}, 1
s_and_b32 s49, s49, 3
s_mul_i32 s49, s49, {PR_SLOT}
s_add_u32 s49, s49, {WS_PR}
v_mov_b64 v[{SM}:{SM+1}], -1
v_mov_b64 v[{SM+2}:{SM+3}], -1
s_not_b64 exec, s[40:41]
s_cmp_lg_u32 s{sMode}, 0
s_cbranch_scc1 {Lp}_s
{pst('')}
{Lp}_s:
{pst('sc1')}""")
        e(f"{Lv}:")
        if XT == 1: tr(e, 0)
        ld = list(ld)
        dump = [f"ds_write_b128 v21, v[{YX+4*x}:{YX+4*x+3}] offset:{(x//2)*3072 + (x%2)*1024}" for x in range(4)] + [f"ds_write_b128 v21, v[{YM+4*x}:{YM+4*x+3}] offset:{2048+3072*x}" for x in range(2)]
        e(f"s_cmp_eq_u32 s{sStep}, 63\ns_cbranch_scc1 {L2x}")
        tail.append(f"{L2x}:\n" + "\n".join(dump) + f"\ns_waitcnt lgkmcnt(0)\ns_barrier\ns_setprio 0\ns_branch {L_done}")
        if KVE == 1: kv_wait(e, Lfail, 1)
        v = kv_loads(VX, sV)
        vv = [(8 * ks + 4 * tt + 3, v[tt * 4 + ks]) for ks in range(4) for tt in range(2)]
        ld = [(0, l) for l in ld] + vv[:8 - VLATE]
        yc = yx_cvt()
        for i, m in enumerate(yx_mf() + yc[16:] + yc[:16] + mask_init()):
            e(m)
            if i >= KLATE and (i - KLATE) % (XLD if i < 32 else 3 * XLD) == 0 and ld and ld[0][0] <= i: e(ld.pop(0)[1])
            if i >= DUMP0 and (i - DUMP0) % DUMPS == 0 and dump: assert i < 32; e(dump.pop(0))
            if XT == 1 and i == 31: tr(e, 1)
            if KVE > 1 and i == KVE: assert not ld; kv_wait(e, Lfail, 1)
        for l in ld: e(l[1])
        if KVE == 0: kv_wait(e, Lfail, 1)
        kv_wait(e, Lfail, 2)
        if XT == 1: tr(e, 2)
        if not VLATE: e("s_waitcnt lgkmcnt(0)")
        if VLATE:
            Lf = e.label("Lfl")
            e(f"""v_and_b32 v12, 3, v0
v_lshlrev_b32 v12, 2, v12
{Lf}:
{f's_sleep {VSL}' if VSL else ''}
ds_read_b32 v13, v12 offset:{FL}
s_add_u32 s{sSpin}, s{sSpin}, 1
s_cmp_gt_u32 s{sSpin}, {SPIN_MAX}
s_cbranch_scc1 {Lfail}
s_waitcnt lgkmcnt(0)
v_cmp_eq_u32 vcc, s{sStep}, v13
s_cbranch_vccnz {Lf}""")
            if PBL: e(f"s_cmp_eq_u32 s45, s{sW}\ns_cbranch_scc1 {Lp}_t\n{Lv}_t:")
            if QL: e(q_loads())
            for l in vv[8 - VLATE:]: e(l[1])
        e("v_add_u32 v16, 1, v16")
        e(kvadv)
        e(f"v_xor_b32 v21, {YD ^ YD2}, v21")
    for l in kv_loads(VX, sV): e(l)
    for l in kv_loads(KX, sK): e(l)
    e(q_loads())
    e("s_waitcnt vmcnt(12) lgkmcnt(0)")
    for x in yx_mf() + yx_cvt() + mask_init(): e(x)
    e(kvadv)
    for l in kv_loads(VX, sV): e(l)
    e(f"s_add_u32 s{sV}, s{sV}, {KVSTEP}\ns_addc_u32 s{sV+1}, s{sV+1}, 0")
    stamp(e, 8, True)
    L2, LpB, L2x = e.label("L2"), e.label("LpB"), e.label("L2x")
    e(f"{L2}:\ns_barrier")
    tr(e, 0)
    reduce4(e, 4, 5, 18, T, 14)
    publish_B(e, tail, T)
    tr(e, 1)
    if SPLIT: e("s_barrier")
    if DELAY_B >= 0:
        for _ in range(DELAY_B): e("s_nop 7")
    elif ACK_B: e("s_waitcnt vmcnt(0)")
    tr(e, 2)
    e(f"{LpB}:")
    tr(e, 7)
    pieces = [(T + 4 * ks, 1, 1024 * ks) for ks in range(4)] + [(VV + 4 * u, 18, 1024 * u) for u in range(2)]
    ldB = [f"global_load_dwordx4 v[{r}:{r+3}], v{a}, s[{sB}:{sB+1}] offset:{o} sc1" for r, a, o in pieces]
    if LATE_V:
        for l in ldB[:4]: e(l)
        e("s_waitcnt vmcnt(3)" if LATE_V == 1 else f"s_sleep {LATE_V - 1}")
        for l in ldB[4:]: e(l)
    else:
        for l in ldB: e(l)
    def chk(i, mid=""):
        e(f"{LpB}_c{i}:\ns_waitcnt vmcnt({5-i})\nv_cmp_eq_u32 vcc, -1, v{pieces[i][0]+3}\n{mid}\ns_cbranch_vccnz {LpB}_r{i}")
        if RSEL:
            rl = [f"s_mov_b64 exec, vcc\n{ldB[i]}\ns_waitcnt vmcnt(1)"] + [f"s_mov_b64 exec, -1\nv_cmpx_eq_u32 vcc, -1, v{pieces[j][0]+3}\n{ldB[j]}" for j in range(i + 1, 6)] + ["s_mov_b64 exec, -1"]
        else: rl = ldB[i:]
        tail.append(f"{LpB}_r{i}:\n" + "\n".join(rl) + f"\ns_add_u32 s{sSpin}, s{sSpin}, 1\ns_cmp_gt_u32 s{sSpin}, {SPIN_MAX}\ns_cbranch_scc1 {Lfail}\ns_branch {LpB}_c{i}")
    def sc(i):
        return [f"v_mfma_f32_16x16x32_bf16 v[{a}:{a+3}], v[{kreg}:{kreg+3}], v[{O+4*i}:{O+4*i+3}], " + ("0" if i == 0 and a == SM else f"v[{a}:{a+3}]")
                for (a, kreg) in ((S0, KX + i * 4), (S1_, KX + (4 + i) * 4), (SM, T + 4 * i))]
    cn = lambda i: [f"v_cndmask_b32 v{O+4*i+r}, v{O+4*i+r}, v{T+4*i+r}, s[40:41]" for r in range(4)]
    if BPIPE:
        chk(0, "\n".join(cn(0)))
        for i in range(4):
            m = sc(i)
            e(m[0])
            if i < 3:
                c = cn(i + 1)
                chk(i + 1, c[0]); e(m[1]); e(c[1]); e(c[2]); e(c[3]); e(m[2])
            else:
                e(m[1]); e(m[2])
    else:
        for i in range(4):
            chk(i, "\n".join(cn(i)))
            for m in sc(i): e(m)
    tr(e, 3)
    ym = [f"v_smfmac_f32_16x16x64_bf16 v[{YM+4*ct}:{YM+4*ct+3}], v[{VV+4*u}:{VV+4*u+3}], v[{WO+(ct*4+2*u)*4}:{WO+(ct*4+2*u)*4+7}], v2" for u in range(2) for ct in range(4)]
    vl = kv_loads(KX, sK)[:KEARLY]
    def V():
        if vl: e(vl.pop(0))
    ex = [f"v_exp_f32 v{E+i}, v{S0+i}" for i in range(12)]
    cp = [f"v_cvt_pk_bf16_f32 v{PX+x}, v{E+2*x}, v{E+2*x+1}" for x in range(6)]
    dup = [f"v_mov_b32 v{PM+2}, v{PM}", f"v_mov_b32 v{PM+3}, v{PM+1}", f"v_permlane32_swap_b32 v{PM}, v{PM+2}", f"v_permlane32_swap_b32 v{PM+1}, v{PM+3}"]
    cy = [f"v_cvt_pk_bf16_f32 v{YM+x}, v{YM+2*x}, v{YM+2*x+1}" for x in range(8)]
    ox = [f"v_mfma_f32_16x16x32_bf16 v[{O+4*ct}:{O+4*ct+3}], v[{PX}:{PX+3}], v[{YX+4*ct}:{YX+4*ct+3}], 0" for ct in range(4)]
    om = [f"v_mfma_f32_16x16x16_bf16 v[{O+4*ct}:{O+4*ct+3}], v[{PM}:{PM+1}], v[{YM+2*ct}:{YM+2*ct+1}], v[{O+4*ct}:{O+4*ct+3}]" for ct in range(4)]
    lx = f"v_mfma_f32_16x16x32_bf16 v[{LS}:{LS+3}], v[{ON32}:{ON32+3}], v[{PX}:{PX+3}], 0"
    lm = f"v_mfma_f32_16x16x16_bf16 v[{LS}:{LS+3}], v[{ON16}:{ON16+1}], v[{PM}:{PM+1}], v[{LS}:{LS+3}]"
    wr = [f"ds_write_b128 v3, v[{O+4*ct}:{O+4*ct+3}] offset:{ct*640}" for ct in range(4)]
    Lfb = e.label("Lfb")
    if VORD == 0:
        chk(4)
        e(ym[0]); e(ym[1]); e(ex[0]); e(ym[2]); e(ex[1]); e(ym[3]); e(ex[2])
        chk(5, ex[3])
        seq = [ym[4], ex[4], ym[5], ex[5], ym[6], ex[6], ym[7], ex[7], cp[0], cp[1], cp[2], cp[3], ex[8],
               ox[0], ex[9], ox[1], ex[10], ox[2], ex[11], ox[3], cp[4], cp[5],
               lx, dup[0], dup[1], cy[0], cy[1], dup[2], dup[3], cy[2], cy[3],
               om[0], cy[4], cy[5], lm, cy[6], cy[7], om[1], om[2], om[3]]
    else:
        for x in ex[:8] + cp[:4]: e(x)
        chk(4, ex[8])
        e(ym[0]); e(ex[9]); e(ym[1]); e(ex[10]); e(ym[2]); e(ex[11]); e(ym[3])
        chk(5, cp[4])
        seq = [ym[4], cp[5], ym[5], dup[0], dup[1], ym[6], ym[7], dup[2], dup[3], lx, ox[0], ox[1], cy[0], cy[1], ox[2], cy[2], cy[3], ox[3], cy[4], cy[5],
               lm, cy[6], cy[7], om[0], om[1], om[2], om[3]]
    for i, x in enumerate(seq):
        e(x)
        if KPOS >> i & 1: V()
        if SFLAG == i + 1: e("ds_write_b32 v15, v16 offset:256")
        if RLATE == i + 1: reset_B(e, tail)
    if True:
        e(f"v_rcp_f32 v{LS+1}, v{LS}\ns_mov_b32 exec_lo, 0")
        for x in wr: e(x)
        e(f"""s_mov_b32 exec_lo, -1
ds_write_b32 v15, v{LS+1}
v_subrev_u32 v10, s46, v{LS}
v_cmp_lt_u32 vcc, v17, v10""")
    while vl: V()
    e(f"s_cbranch_vccn{'z' if not FORCE_FB else 'z'} {Lfb}" if not FORCE_FB else f"s_branch {Lfb}")
    e(f"{Lfb}_b:")
    fb = [f"""{Lfb}:
v_max3_f32 v12, v{S0}, v{S0+1}, v{S0+2}
v_max3_f32 v13, v{S0+3}, v{S1_}, v{S1_+1}
v_max3_f32 v12, v{S1_+2}, v{S1_+3}, v12
v_max_f32 v12, v12, v13
s_mov_b32 exec_hi, 0
v_max3_f32 v12, v{SM}, v{SM+1}, v12
v_max3_f32 v12, v{SM+2}, v{SM+3}, v12
s_mov_b32 exec_hi, -1
v_mov_b32 v13, v12
v_permlane16_swap_b32 v12, v13
v_max_f32 v12, v12, v13
v_mov_b32 v13, v12
v_permlane32_swap_b32 v12, v13
v_max_f32 v12, v12, v13"""]
    fb += [f"v_sub_f32 v{S0+i}, v{S0+i}, v12" for i in range(12)] + ex + cp + dup + [lx] + ox + [lm] + om
    fb += [f"v_rcp_f32 v{LS+1}, v{LS}\ns_mov_b32 exec_lo, 0"] + wr + [f"s_mov_b32 exec_lo, -1\nds_write_b32 v15, v{LS+1}\ns_branch {Lfb}_b"]
    tail.append("\n".join(fb))
    tr(e, 4)
    e(f"s_waitcnt {f'vmcnt({KEARLY}) ' if RLATE else ''}lgkmcnt(0)\ns_barrier")
    tr(e, 5)
    Lna = e.label("Lna")
    e(f"s_cmp_lg_u32 s{S_WAVE}, 4\ns_cbranch_scc1 {Lna}")
    reduce4n(e, 254, 255, VV, S0)
    e(f"global_atomic_pk_add_bf16 v9, v{VV}, s[{sACCN}:{sACCN+1}]\n{Lna}:")
    xpart(kv_loads(KX, sK)[KEARLY:] + ([] if QL else [q_loads()]))
    tr(e, 6)
    tr_out(e)
    advance(e)
    e(f"s_branch {L2}")
    for t in tail: e(t)
    e(f"""{Lfail}:
s_mov_b64 exec, -1
v_mov_b32 v12, 0
v_mov_b32 v13, 1
global_store_dword v12, v13, s[{P_DBG}:{P_DBG+1}] offset:{DBG_FAIL}
s_endpgm""")

import struct
def f32bits(x): return struct.unpack("<I", struct.pack("<f", x))[0]
```

```python
from emit import Emit, fix_hazards

P_AX, P_AWQ, P_AWK, P_AWV, P_AWO, P_BX, P_MEM0, P_BWQ, P_BWK, P_BWV, P_BWO, P_SEG, P_OUT, P_DBG, P_WS = [4 + 2 * i for i in range(15)]
S_WAVE = 34
S_WG = 35
SRD_X, SRD_W, SRD_O = 36, 40, 44

MB = 1 << 20
WS_QB = 0
WS_KB = 16 * MB
WS_VB = 32 * MB
WS_OB = 48 * MB
WS_OA = 64 * MB
WS_KA = 68 * MB
WS_VA = WS_KA + 131072
WS_KVM = 69 * MB
WS_ACC = 77 * MB
WS_BR = 79 * MB
WS_DIAG = 80 * MB
WS_OP = 96 * MB
WS_SIZE = 268435456

def kernel_begin(e, name):
    e(f""".globl {name}
.p2align 8
.type {name},@function
{name}:""")

def ask_args(e):
    e("""s_load_dwordx16 s[4:19], s[0:1], 0
s_load_dwordx8 s[20:27], s[0:1], 64
s_load_dwordx4 s[28:31], s[0:1], 96
s_load_dwordx2 s[32:33], s[0:1], 112""")
def load_args(e):
    e("""v_lshrrev_b32 v1, 6, v0
s_mov_b32 s35, s2
v_readfirstlane_b32 s34, v1
v_and_b32 v0, 63, v0
s_waitcnt lgkmcnt(0)""")

def descriptor(name, vgpr=256, sgpr=102):
    return f""".p2align 6
.amdhsa_kernel {name}
  .amdhsa_next_free_vgpr {vgpr}
  .amdhsa_next_free_sgpr {sgpr}
  .amdhsa_accum_offset {vgpr}
  .amdhsa_group_segment_fixed_size 0
  .amdhsa_kernarg_size 120
  .amdhsa_user_sgpr_count 2
  .amdhsa_user_sgpr_kernarg_segment_ptr 1
  .amdhsa_system_sgpr_workgroup_id_x 1
.end_amdhsa_kernel
"""

def make_srd(e, srd, ptr, off_sreg=None, off_imm=0, size=None):
    if off_imm:
        e(f"s_add_u32 s{srd}, s{ptr}, {off_imm}\ns_addc_u32 s{srd+1}, s{ptr+1}, 0")
    else:
        e(f"s_mov_b32 s{srd}, s{ptr}\ns_mov_b32 s{srd+1}, s{ptr+1}")
    e(f"s_mov_b32 s{srd+2}, {size - off_imm}")
    if off_sreg is not None:
        e(f"s_add_u32 s{srd}, s{srd}, s{off_sreg}\ns_addc_u32 s{srd+1}, s{srd+1}, 0\ns_sub_u32 s{srd+2}, s{srd+2}, s{off_sreg}")
    e(f"s_and_b32 s{srd+1}, s{srd+1}, 0xffff\ns_mov_b32 s{srd+3}, 0x20000")

DIAG = False
def sreg(i): return 80 + i if i < 12 else {12: 91, 13: 91, 14: 100, 15: 101}[i]
def stamp(e, i, real=False):
    if not DIAG: return
    e(f"{'s_memrealtime' if real else 's_memtime'} s[98:99]\ns_waitcnt lgkmcnt(0)\ns_mov_b32 s{sreg(i)}, s98")
def stamps_out(e, n, base=0):
    if not DIAG: return
    e(f"""s_lshl_b32 s96, s{S_WG}, 3
s_add_u32 s96, s96, s{S_WAVE}
s_lshl_b32 s96, s96, 6
s_add_u32 s96, s96, {WS_DIAG + base}
s_add_u32 s98, s{P_WS}, s96
s_addc_u32 s99, s{P_WS+1}, 0
v_mov_b32 v1, 0""")
    for i in range(n):
        e(f"v_mov_b32 v2, s{sreg(i)}\nglobal_store_dword v1, v2, s[98:99] offset:{4*i}")
```

```python
import common
from common import *
from jobs import *
import chain as ch
from chain import chain

C_KV = 128
C_KVA = 68
C_FIN = 72
C_OA = 192
MAP = 1
FINE = 0
SPIN = 79

def signal(e, off, s_idx=None, val=1):
    L = e.label("Lsig")
    e(f"s_waitcnt vmcnt(0)\ns_barrier\ns_cmp_lg_u32 s{S_WAVE}, 0\ns_cbranch_scc1 {L}")
    if s_idx is None: e("v_mov_b32 v2, 0")
    else: e(f"s_lshl_b32 s48, s{s_idx}, 2\nv_mov_b32 v2, s48")
    e(f"""v_mov_b32 v3, {val}
s_mov_b64 exec, 1
global_atomic_add v2, v3, s[{P_DBG}:{P_DBG+1}] offset:{off}
s_mov_b64 exec, -1
{L}:""")

def poll(e, Lfail, off, s_idx, target, shift=0, mask=None, spin=SPIN, t=2, slp=8):
    L = e.label("Lpoll")
    if s_idx is None: e(f"v_mov_b32 v{t}, 0")
    else: e(f"s_lshl_b32 s48, s{s_idx}, 2\nv_mov_b32 v{t}, s48")
    e(f"""{L}:
global_load_dword v{t+1}, v{t}, s[{P_DBG}:{P_DBG+1}] offset:{off} sc1
s_add_u32 s{spin}, s{spin}, 1
s_cmp_gt_u32 s{spin}, {ch.SPIN_MAX}
s_cbranch_scc1 {Lfail}
s_waitcnt vmcnt(0)
v_readfirstlane_b32 s48, v{t+1}""")
    if shift: e(f"s_lshr_b32 s48, s48, {shift}")
    if mask: e(f"s_and_b32 s48, s48, {mask}")
    Lok = e.label("Lok")
    e(f"s_cmp_ge_u32 s48, {target}\ns_cbranch_scc1 {Lok}\ns_sleep {slp}\ns_branch {L}\n{Lok}:")

def wait(e, Lfail, conds):
    L = e.label("Lwt")
    e(f"s_cmp_lg_u32 s{S_WAVE}, 0\ns_cbranch_scc1 {L}")
    for c in conds: poll(e, Lfail, *c)
    e(f"{L}:\ns_barrier")

KSL = 3
AFIRST = 1
XPF = 2
AKVL = 0
USEFREE = 0
OLDC = 0
WPF = 3
EXP = 0
PSL = 20
def kv_wait(e, Lfail, phase):
    L = e.label("Lkvw")
    if phase == 0:
        e(f"s_cmp_lg_u32 s{S_WAVE}, 4\ns_cbranch_scc1 {L}\ns_mov_b32 s49, 0")
        poll(e, Lfail, C_KV, 49, 96, spin=ch.sSpin, t=12, slp=KSL)
    elif phase == 1:
        e(f"""s_add_u32 s63, s{ch.sStep}, {2 if ch.VLATE == 8 else 3}
s_and_b32 s63, s63, 63
s_and_b32 s48, s63, 3
s_cbranch_scc1 {L}
v_mov_b32 v10, s63
global_load_dword v10, v10, s[{P_DBG}:{P_DBG+1}] offset:{C_KV} sc1""")
    else:
        e(f"""s_and_b32 s48, s63, 3
s_cbranch_scc1 {L}
s_waitcnt vmcnt({20 - ch.KEARLY - ch.VLATE if ch.KVE == 1 else 0})
v_readfirstlane_b32 s48, v10
s_cmp_ge_u32 s48, 96
s_cbranch_scc1 {L}
s_lshr_b32 s49, s63, 2""")
        poll(e, Lfail, C_KV, 49, 96, spin=ch.sSpin, t=12, slp=4)
    e(f"{L}:")

def sig_hook(off, s_idx, val, n=1):
    def h(e):
        L = e.label("Lsig")
        e(f"""s_cmp_lg_u32 s{S_WAVE}, 0
s_cbranch_scc1 {L}
s_lshl_b32 s58, s{s_idx}, {1 + n}
v_lshl_add_u32 v{EA}, v0, 2, s58
v_mov_b32 v{EA+1}, {val}
s_mov_b64 exec, {2*n - 1}
global_atomic_add v{EA}, v{EA+1}, s[{P_DBG}:{P_DBG+1}] offset:{off}
s_mov_b64 exec, -1
{L}:""")
    return h

CODE_KB = 40
SCHED = 4
J_END, J_G128, J_G256, J_AKV, J_ATT, J_AOUT, J_G64, J_SENT, J_PF = range(9)
PFJ = 0
PF0 = 8
H2G = 8
def schedule():
    T = [[] for _ in range(128)]
    def g256(blocks):
        return [[(J_G256, b, 2 * (12 * xq + c)) for b in blocks for c in range(12)] for xq in range(4)]
    for xq in range(4):
        W = lambda j: T[xq * 32 + j]
        c0 = 24 * xq
        H1, H2 = list(range(16)), list(range(16, 32))
        ng = H2G
        if SCHED == 4:
            P1, P2, Ha, Hb = H1[:8], H1[8:], H2[:8], H2[8:]
            for r in range(2):
                for j in range(24): W(8 + j).append((J_G64, r, c0 + j))
            for j in H2: W(j).append((J_G64, 2 + (j & 1), c0 + 16 + (j - 16) // 2))
            for i, j in enumerate(P2 + Hb): W(j).append((J_SENT, 16 * xq + i, 0))
            for i in range(8):
                W(P1[i]).append((J_G256, 1, c0 + 2 * i)); W(P2[i]).append((J_G256, 2, c0 + 2 * i)); W(P1[i]).append((J_G256, 3, c0 + 2 * i))
                W(Hb[i]).append((J_G128, 2, c0 + 16 + i)); W(Hb[i]).append((J_G128, 3, c0 + 16 + i))
                W(Ha[i]).append((J_AKV, 16 * xq + i, 0)); W(Ha[i]).append((J_AKV, 16 * xq + 8 + i, 0))
            for k, t in enumerate(g256(range(4, 8))[xq]): W((P2 + P1)[k % 16]).append(t)
            for j, u in zip(H2 + H2, [(J_ATT, 4 * xq + m, n) for m in range(4) for n in range(8)]): W(j).append(u)
            for j, u in zip(P2 + P1, [(J_AOUT, 4 * xq + m, n) for m in range(4) for n in range(4)]): W(j).append(u)
            continue
        if SCHED == 2:
            for r in range(2):
                for j in range(24): W(8 + j).append((J_G64, r, c0 + j))
            for j in range(8): W(j).append((J_G256, 1, c0 + 2 * j))
            for j in H2: W(j).append((J_G64, 2 + (j & 1), c0 + 16 + (j - 16) // 2))
            H1 = H1[8:] + H1[:8]
            sent = H1[:8] + H2[8:]
            rest = g256(range(2, 8))[xq]
        else:
            H1 = list(range(8)) + list(range(16, 24)); H2 = list(range(8, 16)) + list(range(24, 32))
            cols = [c for c in range(24) if c % 4 == 1] + [0, 23]
            for i, j in enumerate(H1): W(j).append((J_G64, i // 8, c0 + cols[i % 8]))
            for j, c in zip(H2, [c for c in range(24) if c not in cols]): W(j).append((J_G128, 0, c0 + c))
            sent = H1
            rest = g256(range(1, 8))[xq]
        if not AKVL:
            for i, j in enumerate(H2): W(j).append((J_AKV, 16 * xq + i, 0))
        for i, j in enumerate(sent): W(j).append((J_SENT, 16 * xq + i, 0))
        for j in H1 + H2[16 - ng:]: W(j).append(rest.pop(0))
        if AKVL:
            for i in range(16): W(H2[i % (16 - ng)]).append((J_AKV, 16 * xq + i, 0))
        k = 0
        while rest:
            W(H1[k % 16]).append(rest.pop(0)); k += 1
        free = H1[k % 16:] if k % 16 and USEFREE else []
        units = [(J_ATT, 4 * xq + m, n) for m in range(4) for n in range(8)]
        order = H2 + H2[:16 - len(free)] + free
        for j, u in zip(order, units): W(j).append(u)
        outs = [(J_AOUT, 4 * xq + m, n) for m in range(4) for n in range(4)]
        order = H2[16 - len(free):] + H1[::-1][len(free):]
        for j, u in zip(order, outs): W(j).append(u)
    if EXP == 3: T = [[x for x in jl if x[0] not in (J_ATT, J_AOUT)] for jl in T]
    return T

def k_fused(e):
    e("s_cmp_ge_u32 s2, 256\ns_cbranch_scc1 Lend")
    if AFIRST: ask_args(e)
    e("s_getpc_b64 s[48:49]\nLpc:")
    if CODE_KB:
        e("""v_lshlrev_b32 v2, 7, v0
v_min_u32 v2, Lend-Lpc, v2
global_load_dword v91, v2, s[48:49]""")
    e("""s_and_b32 s50, s2, 3
s_lshl_b32 s50, s50, 5
s_lshr_b32 s51, s2, 3
s_add_u32 s70, s50, s51
s_lshl_b32 s50, s70, 6
s_add_u32 s50, s50, Ltab-Lpc
v_and_b32 v2, 15, v0
v_lshl_add_u32 v2, v2, 2, s50
global_load_dword v90, v2, s[48:49]""")
    if not AFIRST: ask_args(e)
    load_args(e)
    e("""s_and_b32 s48, s2, 3
s_lshl_b32 s48, s48, 1
s_lshr_b32 s49, s2, 7
s_add_u32 s48, s48, s49
s_bfe_u32 s49, s2, 0x40003
s_lshl_b32 s49, s49, 3
s_add_u32 s35, s48, s49""")
    stamp(e, 0, True); stamp(e, 14)
    F = "Lwfail"
    e("s_bitcmp1_b32 s2, 2\ns_cbranch_scc1 Lworker")
    if EXP == 1: e("s_sleep 127\n" * 5)
    if OLDC:
        import chain4; chain4.chain(e, "Lchain_done", kv_wait, None)
    else: chain(e, "Lchain_done", kv_wait, None)
    e("Lchain_done:")
    e("s_waitcnt vmcnt(0)")
    stamp(e, 2, True); stamp(e, 15)
    if common.DIAG: e("s_mov_b32 s84, s65")
    stamps_out(e, 16)
    e("s_endpgm")
    W, J, TY = 70, 71, 76
    M = [72, 74]; N = [73, 75]
    def fetch(e):
        e(f"""v_readlane_b32 s{N[0]}, v1, s{J}
s_add_u32 s{J}, s{J}, 1
s_lshr_b32 s{TY}, s{N[0]}, 16
s_bfe_u32 s{M[0]}, s{N[0]}, 0x80008
s_and_b32 s{N[0]}, s{N[0]}, 255""")
    def jstamp(e, d=0):
        if common.DIAG: e(f"s_memrealtime s[98:99]\ns_add_u32 m0, s{J}, {16+d}\ns_waitcnt lgkmcnt(0)\nv_writelane_b32 v1, s98, m0")
    e(f"Lworker:\ns_add_u32 s35, s{W}, 128\ns_mov_b32 s{SPIN}, 0\ns_mov_b32 s{J}, 0\ns_waitcnt vmcnt(0)\nv_mov_b32 v1, v90")
    if XPF:
        e(f"s_and_b32 s48, s{W}, 31\ns_lshl_b32 s48, s48, 3\ns_add_u32 s48, s48, s{S_WAVE}\ns_lshl_b32 s48, s48, 10\nv_lshl_add_u32 v2, v0, 4, s48")
        for t in range(XPF): e(f"global_load_dwordx4 v[88:91], v2, s[{P_BX}:{P_BX+1}]\nv_add_u32 v2, 0x40000, v2")
    if WPF:
        e(f"""s_and_b32 s48, s{W}, 31
s_lshl_b32 s48, s48, 2
s_lshr_b32 s49, s{S_WAVE}, 1
s_add_u32 s48, s48, s49
s_lshl_b32 s48, s48, 16
v_lshrrev_b32 v2, 3, v0
v_lshlrev_b32 v2, 13, v2
v_and_b32 v3, 7, v0
v_lshl_add_u32 v2, v3, 4, v2
v_add_u32 v2, s48, v2
s_lshr_b32 s50, s{W}, 5
s_mul_i32 s50, s50, 6
s_and_b32 s49, s{S_WAVE}, 1
s_add_u32 s50, s50, s49""")
        for t in range(3):
            e(f"""s_lshr_b32 s53, s50, 3
s_and_b32 s54, s50, 7
s_lshl_b32 s54, s54, 10
s_cmp_eq_u32 s53, 1
s_cselect_b32 s56, s{P_BWK}, s{P_BWQ}
s_cselect_b32 s57, s{P_BWK+1}, s{P_BWQ+1}
s_cmp_eq_u32 s53, 2
s_cselect_b32 s56, s{P_BWV}, s56
s_cselect_b32 s57, s{P_BWV+1}, s57
s_add_u32 s56, s56, s54
s_addc_u32 s57, s57, 0
global_load_dwordx4 v[88:91], v2, s[56:57] offset:384""")
            if WPF == 2: e("global_load_dwordx4 v[88:91], v2, s[56:57] offset:896")
            if WPF == 3: e(f"s_cmp_lg_u32 s54, 7168\ns_cbranch_scc1 Lwpf{t}\nglobal_load_dwordx4 v[88:91], v2, s[56:57] offset:896\nLwpf{t}:")
            e("s_add_u32 s50, s50, 2")
    if EXP == 2: e("s_sleep 127\n" * 5)
    e("Lnext:")
    jstamp(e)
    fetch(e)
    e("Ldisp:")
    for t in (J_G128, J_G256, J_AKV, J_ATT, J_AOUT, J_SENT, J_END): e(f"s_cmp_eq_u32 s{TY}, {t}\ns_cbranch_scc1 Ljob{t}")
    for t, G, val, nc in ((J_G64, G64, 1, 1), (J_G128, G128, 1, 2), (J_G256, G256, 2, 2)):
        e(f"Ljob{t}:")
        js = QKV(G(), M[0], N[0])
        js.pre(e)
        def switch(e):
            L = e.label("Lsw")
            e(f"s_mov_b32 s{M[1]}, s{M[0]}\ns_mov_b32 s{N[1]}, s{N[0]}")
            fetch(e); js.srds(e)
            e(f"s_cmp_eq_u32 s{TY}, {t}\ns_cbranch_scc1 {L}\ns_mov_b32 s{SRD_X+2}, 0\ns_mov_b32 s{SRD_W+2}, 0\n{L}:")
        def tile_end(e, Ln):
            js.post(e, M[1], N[1])
            jstamp(e, -1)
            js.g.zero_acc(e)
            e(f"""s_mov_b32 s61, s{M[1]}
s_mov_b32 s{js.g.sPh}, {js.g.sigj}
s_cmp_eq_u32 s{TY}, {t}
s_cbranch_scc1 {Ln}""")
        js.g.run(e, js.nstores(), sig_hook(C_KV, 61, val, nc), switch, tile_end)
        e("s_barrier")
        sig_hook(C_KV, 61, val, nc)(e)
        e("s_branch Ldisp")
    e(f"""Ljob{J_SENT}:
s_add_u32 s52, s{M[0]}, 960
s_lshl_b32 s52, s52, 3
s_add_u32 s52, s52, s{S_WAVE}
s_lshl_b32 s52, s52, 12
v_lshlrev_b32 v2, 4, v0
v_mov_b64 v[4:5], -1
v_mov_b64 v[6:7], -1""")
    make_srd(e, SRD_O, P_WS, 52, WS_OP, WS_SIZE)
    for x in range(4): e(f"buffer_store_dwordx4 v[4:7], v2, s[{SRD_O}:{SRD_O+3}], 0 offen offset:{1024*x} sc1")
    e("s_nop 1\ns_branch Lnext")
    e(f"Ljob{J_AKV}:")
    job_a_kv(e, M[0], "sc1")
    signal(e, C_KVA)
    e(f"s_branch Lnext\nLjob{J_ATT}:")
    j5 = AAttn(M[0], N[0], lambda e: wait(e, F, [(C_KVA, None, 64)]))
    j5.pre(e); j5.main(e); j5.post(e)
    signal(e, C_OA, M[0], 1)
    e(f"s_branch Lnext\nLjob{J_AOUT}:")
    wait(e, F, [(C_OA, M[0], 8)])
    j6 = Out("A", M[0], N[0], 256); j6.pre(e); j6.main(e); j6.post(e)
    e(f"s_barrier\ns_branch Lnext\nLjob{J_END}:")
    U, PC, PE = 72, 73, 74
    e(f"""v_lshlrev_b32 v2, 4, v0
v_and_b32 v3, 15, v0
v_lshlrev_b32 v3, 12, v3
v_bfe_u32 v4, v0, 4, 1
v_lshl_add_u32 v3, v4, 5, v3
v_lshrrev_b32 v4, 5, v0
v_lshl_add_u32 v3, v4, 4, v3
s_mov_b32 s54, 0xffff0000
s_cmp_eq_u32 s{S_WAVE}, 7
s_cbranch_scc1 Lrdone
s_lshl_b32 s{U}, s{S_WAVE}, 7
s_add_u32 s{U}, s{U}, s{W}
s_mov_b32 s{PC}, 0
s_mov_b32 s{PE}, 4
Lrunit:
s_lshr_b32 s76, s{U}, 4
s_lshl_b32 s53, s76, 17
s_add_u32 s76, s76, 4
s_min_u32 s76, s76, 63""")
    poll(e, F, ch.DBG_PROG, None, "s76", t=4, slp=PSL)
    stamp(e, 10, True)
    e(f"""s_and_b32 s52, s{U}, 15
s_lshl_b32 s52, s52, 7
s_add_u32 s53, s53, s52
s_lshl_b32 s52, s{U}, 15""")
    make_srd(e, SRD_X, P_WS, 52, WS_OP, WS_SIZE)
    make_srd(e, SRD_O, P_OUT, 53, 2048, 8388608)
    e(f"Lrpiece:\ns_lshl_b32 s55, s{PC}, 10")
    for g in range(8): e(f"buffer_load_dwordx4 v[{16+4*g}:{19+4*g}], v2, s[{SRD_X}:{SRD_X+3}], s55 offen sc1\ns_add_u32 s55, s55, 4096")
    e(f"""s_add_u32 s{SPIN}, s{SPIN}, 1
s_cmp_gt_u32 s{SPIN}, {ch.SPIN_MAX}
s_cbranch_scc1 {F}
s_lshr_b32 s55, s{PC}, 1
s_lshl_b32 s55, s55, 16
s_and_b32 s56, s{PC}, 1
s_lshl_b32 s56, s56, 6
s_add_u32 s55, s55, s56
s_waitcnt vmcnt(0)
v_max3_u32 v4, v19, v23, v27
v_max3_u32 v5, v31, v35, v39
v_max3_u32 v4, v43, v47, v4
v_max_u32 v4, v4, v5
v_cmp_eq_u32 vcc, -1, v4
s_cbranch_vccnz Lrpiece""")
    A = 48
    for g in range(8):
        for r in range(4):
            d = 16 + 4 * g + r
            if g == 0: e(f"v_lshlrev_b32 v{A+2*r}, 16, v{d}\nv_and_b32 v{A+2*r+1}, s54, v{d}")
            else: e(f"v_lshlrev_b32 v{8+2*r}, 16, v{d}\nv_and_b32 v{9+2*r}, s54, v{d}\nv_pk_add_f32 v[{A+2*r}:{A+2*r+1}], v[{A+2*r}:{A+2*r+1}], v[{8+2*r}:{9+2*r}]")
    for r in range(4): e(f"v_cvt_pk_bf16_f32 v{56+r}, v{A+2*r}, v{A+2*r+1}")
    e(f"""buffer_store_dwordx4 v[56:59], v3, s[{SRD_O}:{SRD_O+3}], s55 offen
s_add_u32 s{PC}, s{PC}, 1
s_cmp_lt_u32 s{PC}, s{PE}
s_cbranch_scc1 Lrpiece
s_cmp_ge_u32 s{U}, 512
s_cbranch_scc1 Lrdone
s_add_u32 s{U}, s{W}, 896
s_mov_b32 s{PC}, s{S_WAVE}
s_add_u32 s{PE}, s{S_WAVE}, 1
s_branch Lrunit
Lrdone:""")
    stamp(e, 11, True); stamp(e, 15)
    if common.DIAG:
        for i in range(1, 10): e(f"v_readlane_b32 s{80+i}, v1, {16+i}")
    stamps_out(e, 16)
    e(f"""Lend:
s_endpgm
{F}:
v_mov_b32 v2, 0
v_mov_b32 v3, 2
global_store_dword v2, v3, s[{P_DBG}:{P_DBG+1}] offset:{ch.DBG_FAIL - 4}
s_endpgm
.p2align 6
Ltab:""")
    for jl in schedule():
        assert len(jl) < 16
        e(".long " + ", ".join(str(t << 16 | m << 8 | n) for t, m, n in jl + [(0, 0, 0)] * (16 - len(jl))))
```

```python
from common import *

SIGJ = 1
ROT = 1
REV = 32768
ROT256 = 13
ROT64 = 1
class Gemm:
    def __init__(self, BM, BN, WM, WN, K, NST, xmode, xstride, wstride, acc0=128, ld="", mf=32, MH=1):
        assert WM * WN == 8
        self.BM, self.BN, self.WM, self.WN, self.K, self.NST = BM, BN, WM, WN, K, NST
        self.xmode, self.xstride, self.wstride, self.mf, self.MH = xmode, xstride, wstride, mf, MH
        self.TM, self.TN = BM // WM // mf, BN // WN // mf
        self.wrows = BM // WM
        self.NSUB = 4 if mf == 32 else 2 * MH
        self.TMS = self.TM if mf == 32 else self.TM // MH
        self.nX, self.nW = BM // 64, BN // 64
        assert self.nX >= 1 and self.nW >= 1 and (mf == 32 or BN >= 128)
        self.XS, self.WS = BM * 128, BN * 128
        self.WBASE = NST * self.XS
        self.lds = NST * (self.XS + self.WS)
        self.acc0 = acc0
        self.ld = ld
        self.rev = wstride == 8192 and BM * BN <= REV
        self.rotm = ROT64 if (BM, wstride) == (128, 8192) else ROT256 if BN == 256 and wstride == 8192 else K // 64 - 1
        self.sigj = min(SIGJ, NST - 1)
        r = 2
        self.vX = list(range(r, r + self.nX)); r += self.nX
        self.vW = list(range(r, r + self.nW)); r += self.nW
        self.nxa = (4 if mf == 32 else 2) if xmode == "rm" else 1
        self.aX = list(range(r, r + self.nxa)); r += self.nxa
        self.aW = list(range(r, r + self.TN)); r += self.TN
        assert r <= 20
        self.tmp = 20; r = 24
        self.fX = [[r + 4 * (p * self.TMS + i) for i in range(self.TMS)] for p in range(2)]; r += 8 * self.TMS
        self.fW = [[r + 4 * (p * self.TN + i) for i in range(self.TN)] for p in range(2)]; r += 8 * self.TN
        self.vend = r
        assert r <= 92
        self.sXo, self.sWo, self.sCnt, self.sMX, self.sMW, self.sBuf, self.sPh = 64, 65, 66, 67, 68, 69, 77
    def acc(self, nt, mt):
        return self.acc0 + (16 if self.mf == 32 else 4) * (nt * self.TM + mt)
    def wave_ids(self, e, sm, sn):
        lg = self.WN.bit_length() - 1
        e(f"s_lshr_b32 s{sm}, s{S_WAVE}, {lg}\ns_and_b32 s{sn}, s{S_WAVE}, {self.WN-1}")

    def setup(self, e):
        t0, t1, t2, t3 = self.tmp, self.tmp + 1, self.tmp + 2, self.tmp + 3
        BM, BN, m16 = self.BM, self.BN, self.mf == 16
        self.wave_ids(e, 48, 49)
        if self.xmode == "rm":
            e(f"""s_mul_i32 s50, s{S_WAVE}, {BM//8}
v_lshrrev_b32 v{t0}, 3, v0
v_add_u32 v{t0}, s50, v{t0}
v_lshrrev_b32 v{t1}, 1, v{t0}
v_xor_b32 v{t1}, v{t1}, v0
v_and_b32 v{t1}, 7, v{t1}
v_lshlrev_b32 v{t1}, 4, v{t1}
v_mul_u32_u24 v{t0}, {self.xstride}, v{t0}
v_add_u32 v{self.vX[0]}, v{t0}, v{t1}""")
            if self.nX > 1:
                e(f"v_xor_b32 v{t1}, 64, v{t1}\nv_add_u32 v{t1}, v{t0}, v{t1}")
            for j in range(1, self.nX):
                e(f"v_add_u32 v{self.vX[j]}, {j*(8*self.xstride - 1024)}, v{t1 if j & 1 else self.vX[0]}")
        else:
            assert self.nX in (1, 2, 4)
            e(f"""s_mul_i32 s50, s{S_WAVE}, {self.nX}
s_lshr_b32 s51, s50, 2
s_and_b32 s50, s50, 3
s_mul_i32 s51, s51, {self.xstride}
s_lshl_b32 s50, s50, 10
s_add_u32 s50, s50, s51
v_lshlrev_b32 v{t0}, 4, v0
v_add_u32 v{self.vX[0]}, s50, v{t0}""")
            for j in range(1, self.nX): e(f"v_mov_b32 v{self.vX[j]}, v{self.vX[0]}")
        rpi = 512 // BN
        lpr = 64 // rpi
        lgl = lpr.bit_length() - 1
        for j in range(self.nW):
            e(f"""s_lshl_b32 s50, s{S_WAVE}, 3
s_add_u32 s50, s50, {rpi*j}
v_lshrrev_b32 v{t0}, {lgl}, v0
v_add_u32 v{t0}, s50, v{t0}""")
            if BN >= 128:
                e(f"v_and_b32 v{t1}, 3, v{t0}\nv_lshlrev_b32 v{t1}, 2, v{t1}")
                if m16:
                    e(f"v_bfe_u32 v{t2}, v{t0}, {3 if self.xmode == 'rm' else 2}, 1\nv_lshl_or_b32 v{t1}, v{t2}, 1, v{t1}")
            else:
                e(f"v_and_b32 v{t1}, 2, v{t0}\nv_lshlrev_b32 v{t1}, 1, v{t1}")
            e(f"""v_and_b32 v{t2}, {lpr-1}, v0
v_xor_b32 v{t1}, v{t1}, v{t2}
v_mul_u32_u24 v{t0}, {self.wstride}, v{t0}
v_lshl_add_u32 v{t0}, v{t1}, 4, v{t0}
v_subrev_u32 v{self.vW[j]}, {1024*j}, v{t0}""")
        e(f"s_mul_i32 s{self.sMX}, s{S_WAVE}, {1024*self.nX}\ns_mul_i32 s{self.sMW}, s{S_WAVE}, {1024*self.nW}\ns_add_u32 s{self.sMW}, s{self.sMW}, {self.WBASE}")

    def setup2(self, e):
        t0, t1, t2, t3 = self.tmp, self.tmp + 1, self.tmp + 2, self.tmp + 3
        BM, BN, m16 = self.BM, self.BN, self.mf == 16
        self.wave_ids(e, 48, 49)
        e(f"s_mul_i32 s50, s48, {self.wrows*128}")
        if self.xmode == "rm":
            e(f"""v_and_b32 v{t0}, {self.mf-1}, v0
v_bfe_u32 v{t1}, v0, 1, 3
v_lshrrev_b32 v{t2}, {4 if m16 else 5}, v0
v_xor_b32 v{t1}, v{t1}, v{t2}
v_lshlrev_b32 v{t1}, 4, v{t1}
v_lshlrev_b32 v{t0}, 7, v{t0}
v_add_u32 v{t0}, s50, v{t0}""")
            for ks in range(self.nxa):
                e(f"v_xor_b32 v{t2}, {ks*(64 if m16 else 32)}, v{t1}\nv_add_u32 v{self.aX[ks]}, v{t0}, v{t2}")
        elif m16:
            e(f"""v_and_b32 v{t0}, 15, v0
v_lshlrev_b32 v{t0}, 4, v{t0}
v_lshrrev_b32 v{t1}, 4, v0
v_lshl_add_u32 v{t0}, v{t1}, 9, v{t0}
v_add_u32 v{self.aX[0]}, s50, v{t0}""")
        else:
            e(f"v_lshlrev_b32 v{t0}, 4, v0\nv_add_u32 v{self.aX[0]}, s50, v{t0}")
        P = 2 * BN
        e(f"v_bfe_u32 v{t0}, v0, 2, 2")
        if m16:
            if self.xmode == "rm":
                e(f"v_lshrrev_b32 v{t1}, 4, v0\nv_lshl_add_u32 v{t1}, v{t1}, 3, v{t0}")
            else:
                e(f"v_lshrrev_b32 v{t1}, 5, v0\nv_lshl_add_u32 v{t1}, v{t1}, 4, v{t0}\nv_bfe_u32 v{t2}, v0, 4, 1\nv_lshl_add_u32 v{t1}, v{t2}, 2, v{t1}")
            e(f"""v_mul_u32_u24 v{t1}, {P}, v{t1}
v_and_b32 v{t2}, 3, v0
v_lshl_add_u32 v{t1}, v{t2}, 3, v{t1}
v_add_u32 v{t1}, {self.WBASE}, v{t1}
v_bfe_u32 v{t2}, v0, 4, 1
v_lshl_or_b32 v{t0}, v{t0}, 1, v{t2}""")
            sh = 5
        else:
            himul = 3 if self.xmode == "rm" else 2
            e(f"""v_lshrrev_b32 v{t1}, 5, v0
v_lshl_add_u32 v{t1}, v{t1}, {himul}, v{t0}
v_mul_u32_u24 v{t1}, {P}, v{t1}
v_and_b32 v{t2}, 3, v0
v_lshl_add_u32 v{t1}, v{t2}, 3, v{t1}
v_bfe_u32 v{t2}, v0, 4, 1
v_lshl_add_u32 v{t1}, v{t2}, 5, v{t1}
v_add_u32 v{t1}, {self.WBASE}, v{t1}""")
            if BN < 128: e(f"v_lshrrev_b32 v{t0}, 1, v{t0}")
            sh = 6
        e(f"s_mul_i32 s50, s49, {self.TN}")
        for nt in range(self.TN):
            e(f"""s_add_u32 s51, s50, {nt}
v_xor_b32 v{t2}, s51, v{t0}
v_lshl_add_u32 v{self.aW[nt]}, v{t2}, {sh}, v{t1}""")

    def dma_list(self):
        L = []
        for j in range(self.nX):
            pre = f"s_mov_b32 m0, s{self.sMX}\n" if j == 0 else ""
            L.append(pre + f"buffer_load_dwordx4 v{self.vX[j]}, s[{SRD_X}:{SRD_X+3}], s{self.sXo} offen offset:{1024*j} {self.ld} lds")
        for j in range(self.nW):
            pre = f"s_mov_b32 m0, s{self.sMW}\n" if j == 0 else ""
            L.append(pre + f"buffer_load_dwordx4 v{self.vW[j]}, s[{SRD_W}:{SRD_W+3}], s{self.sWo} offen offset:{1024*j} lds")
        xadv = 128 if self.xmode == "rm" else 4096
        if self.rev:
            L[self.nX - 1] += f"\ns_add_u32 s{self.sMX}, s{self.sMX}, s62\n" + self.stepX()
            L[-1] += f"\ns_add_u32 s{self.sMW}, s{self.sMW}, s63\n" + self.stepW()
            return L
        L[self.nX - 1] += f"\ns_add_u32 s{self.sXo}, s{self.sXo}, {xadv}\ns_add_u32 s{self.sMX}, s{self.sMX}, s62"
        L[-1] += f"\ns_add_u32 s{self.sWo}, s{self.sWo}, {64*self.wstride}\ns_add_u32 s{self.sMW}, s{self.sMW}, s63"
        if ROT:
            L[self.nX - 1] += f"\ns_bitset0_b32 s{self.sXo}, {(xadv * self.K // 64).bit_length() - 1}"
            L[-1] += f"\ns_bitset0_b32 s{self.sWo}, {(self.wstride * self.K).bit_length() - 1}"
        return L
    def stepX(self): return f"s_add_u32 s{self.sXo}, s{self.sXo}, s92\ns_and_b32 s{self.sXo}, s{self.sXo}, {2 * self.K - 1}"
    def stepW(self): return f"s_add_u32 s{self.sWo}, s{self.sWo}, s93\ns_and_b32 s{self.sWo}, s{self.sWo}, {self.wstride * self.K - 1}"
    def next_buf(self):
        m = lambda v: v & 0xffffffff
        return f"""s_add_u32 s{self.sBuf}, s{self.sBuf}, 1
s_cmp_eq_u32 s{self.sBuf}, {self.NST}
s_cselect_b32 s{self.sBuf}, 0, s{self.sBuf}
s_mov_b32 s62, {self.XS}
s_cselect_b32 s62, {hex(m(-(self.NST-1)*self.XS))}, s62
s_mov_b32 s63, {self.WS}
s_cselect_b32 s63, {hex(m(-(self.NST-1)*self.WS))}, s63"""

    def sub(self, i):
        if self.mf == 32: return i, 0, i & 1, i & 1
        kk, mh = divmod(i, self.MH)
        return kk, mh, kk & 1, i & 1

    def read_list(self, i):
        kk, mh, pw, px = self.sub(i)
        P = 2 * self.BN
        hstep = 4 if self.xmode == "rm" else 8
        kw = 16 if self.mf == 32 else 32
        order = []
        if mh == 0:
            for nt in range(self.TN):
                f = self.fW[pw][nt]
                for h in range(2):
                    order.append((nt * self.TMS + h * 0.1, f"ds_read_b64_tr_b16 v[{f+2*h}:{f+2*h+1}], v{self.aW[nt]} offset:{(kw*kk + hstep*h)*P}"))
        ax = self.aX
        for m in range(self.TMS):
            f = self.fX[px][m]; mt = mh * self.TMS + m
            if self.xmode == "rm": a, off = ax[kk], mt * self.mf * 128
            elif self.mf == 32: a, off = ax[0], mt * 4096 + kk * 1024
            else: a, off = ax[0], (mt // 2) * 4096 + kk * 2048 + (mt % 2) * 256
            order.append((m + 0.2, f"ds_read_b128 v[{f}:{f+3}], v{a} offset:{off}"))
        order.sort(key=lambda x: x[0])
        return [o[1] for o in order]

    def mfma_list(self, i):
        kk, mh, pw, px = self.sub(i)
        n = 15 if self.mf == 32 else 3
        op = "v_mfma_f32_32x32x16_bf16" if self.mf == 32 else "v_mfma_f32_16x16x32_bf16"
        L = []
        for nt in range(self.TN):
            for m in range(self.TMS):
                a = self.acc(nt, mh * self.TMS + m); w = self.fW[pw][nt]; x = self.fX[px][m]
                c = f"v[{a}:{a+n}]"
                L.append(f"{op} v[{a}:{a+n}], v[{w}:{w+3}], v[{x}:{x+3}], {c}")
        return L

    @staticmethod
    def weave(e, mf, fill):
        n = len(mf)
        per = -(-len(fill) // n) if fill else 0
        fi = 0
        for m in mf:
            e(m)
            for _ in range(per):
                if fi < len(fill): e(fill[fi]); fi += 1
        assert fi == len(fill)

    @staticmethod
    def merge(fill, extra):
        if not extra: return fill
        out = []; k = max(1, len(fill) // len(extra)); pi = 0
        for i, x in enumerate(fill):
            out.append(x)
            if (i + 1) % k == 0 and pi < len(extra): out.append(extra[pi]); pi += 1
        return out + extra[pi:]

    def prologue(self, e):
        L, Lx = e.label("Lpro"), e.label("Lprox")
        d = self.dma_list()
        if ROT:
            xadv = 128 if self.xmode == "rm" else 4096
            e(f"s_mul_i32 s{self.sWo}, s{S_WG}, {ROT}\ns_and_b32 s{self.sWo}, s{self.sWo}, {self.rotm}\ns_mul_i32 s{self.sXo}, s{self.sWo}, {xadv}\ns_mul_i32 s{self.sWo}, s{self.sWo}, {64 * self.wstride}")
        else: e(f"s_mov_b32 s{self.sXo}, 0\ns_mov_b32 s{self.sWo}, 0")
        if self.rev: e(f"s_mov_b32 s92, 128\ns_mov_b32 s93, {64 * self.wstride}")
        e(f"s_mov_b32 s{self.sBuf}, 0\n{L}:")
        e(self.next_buf())
        for g in d[:self.nX]: e(g)
        e(f"s_cmp_eq_u32 s{self.sBuf}, 0\ns_cbranch_scc1 {Lx}")
        for g in d[self.nX:]: e(g)
        e(f"s_branch {L}\n{Lx}:")
    def zero_acc(self, e):
        n = self.TM * self.TN * (16 if self.mf == 32 else 4)
        for r in range(self.acc0, self.acc0 + n, 2): e(f"v_mov_b64 v[{r}:{r+1}], 0")

    def run(self, e, extra=0, hook=None, switch=None, tile_end=None):
        NS = self.K // 64; NST = self.NST; nper = self.nX + self.nW
        vm = (NST - 2) * nper
        L, Lb, Lh, Ls, Lsb, Ln, Lx = [e.label(x) for x in ("Lg", "Lgb", "Lgh", "Lgs", "Lgsb", "Lgn", "Lgx")]
        self.setup2(e)
        self.zero_acc(e)
        first_extra = 0 if tile_end else extra
        d = self.dma_list()
        e(f"s_mov_b32 s{self.sPh}, {NST-1 if first_extra or (hook and not tile_end) else 0}")
        e(f"s_waitcnt vmcnt({min(63, (NST-2)*nper + self.nX + first_extra)})\ns_barrier")
        for r in self.read_list(0): e(r)
        Le = e.label("Lge")
        e(f"s_mov_b32 s{self.sCnt}, 0\ns_branch {Ln}")
        e(f".p2align 6\n{L}:\ns_waitcnt vmcnt({vm}) lgkmcnt(0)\ns_barrier\n{Lb}:")
        fill = self.merge(self.read_list(0), d[:self.nX]) + [f"s_add_u32 s{self.sCnt}, s{self.sCnt}, 1\ns_cmp_eq_u32 s{self.sCnt}, {NS}"]
        self.weave(e, self.mfma_list(self.NSUB - 1), fill)
        e(f"s_cbranch_scc1 {Le}\n{Ln}:")
        for i in range(self.NSUB - 1):
            e("s_waitcnt lgkmcnt(0)")
            fill = self.read_list(i + 1)
            if i == 0: fill = self.merge(fill, d[self.nX:])
            if i == self.NSUB - 2:
                fill = fill + [self.next_buf()] + [f"v_add_u32 v{a}, s62, v{a}" for a in self.aX] + [f"v_add_u32 v{a}, s63, v{a}" for a in self.aW]
            self.weave(e, self.mfma_list(i), fill)
        e(f"""s_cmp_eq_u32 s{self.sCnt}, {NS - NST}
s_cbranch_scc1 {Ls}
{Lsb}:
s_cmp_eq_u32 s{self.sPh}, 0
s_cbranch_scc1 {L}
s_branch {Lh}
{Le}:
s_mov_b32 s{self.sCnt}, 0""")
        if tile_end: tile_end(e, Ln)
        e(f"s_branch {Lx}")
        e(f"{Ls}:")
        if switch:
            switch(e)
            if self.rev: e(f"s_sub_u32 s92, 0, s92\ns_sub_u32 s93, 0, s93\n{self.stepX()}\n{self.stepW()}")
            elif not ROT: e(f"s_mov_b32 s{self.sXo}, 0\ns_mov_b32 s{self.sWo}, 0")
        else:
            e(f"s_mov_b32 s{SRD_X+2}, 0\ns_mov_b32 s{SRD_W+2}, 0")
        e(f"s_branch {Lsb}")
        Lst = e.label("Lgst")
        e(f"""{Lh}:
s_sub_u32 s{self.sPh}, s{self.sPh}, 1
s_cmp_eq_u32 s{self.sPh}, 0
s_cbranch_scc1 {Lst}
s_waitcnt vmcnt({min(63, vm + extra)}) lgkmcnt(0)
s_barrier
s_branch {Lb}
{Lst}:
s_waitcnt vmcnt({min(vm, self.nW + (self.sigj - 1) * nper)}) lgkmcnt(0)
s_barrier""")
        if hook: hook(e)
        e(f"s_branch {Lb}\n{Lx}:\ns_waitcnt vmcnt(0) lgkmcnt(0)")
```

```python
import common
from common import *
import math

SPREAD = 0
def acc_step(): return 256 if SPREAD else 20480
def acc_piece(): return 65 * 256 if SPREAD else 256
KLATE = 8
DELAY_B = -1
CANARY = 1
CGAP = 2
CTHR = 8
FIX_A = -1
WS_CAN = WS_ACC + 0x180000
BR_G = 24576
WS_PR = WS_BR + 0x80000
PR_SLOT = 98304
BR_SLOT = 8 * 32768
HS = 6144
GS = 24576
R1 = 0
R2 = 18432
RL = 28672
YD2 = 65536
YD = 32768
SPIN_MAX = 400000
ACK_B = 1
KVSTEP = 262144
NOKV = 0
LATE_V = 0
XT = 0
XW = 3
STL = 2
PDMA = 1
QL = 0
PPRE = 1
PER = 0
G5 = 1
PKA = 0
A8 = 0
A8N = 3
VPRI = 0
G0FIX = 1
AL1 = 4
AL2 = 6
AL4 = -1
AL5 = -1
ALR = -1
ALT = 0
AL3 = 0
WSL = 3
EKV = 0
PTOUCH = 1
C_KV0 = 128
PSW = 0
PACK = 0
PSLIP = 20
SPLIT = 0
VORD = 0
ACK1 = 1
RLATE = 0
ASL = 0
ARF = 1
VPF = 1
DUMP0 = 6
DUMPS = 4
SFLAG = 1
XS2 = 10
PBL = 0
KPOS = 0xe000001000
PL = 98304
VSL = 1
QONE = 1
KVE = 1
VARR = -1
VPOST = 0
AF = 1
KVF = 1
LF = ['', 'sc1', 'nt', 'sc0', 'sc1 nt', 'sc0 sc1']
XSF = 1
RTAB = 0x023579bd
FL2 = 29440
FSL = 2
KPRE = 6
FPOS = 1
OOB = 131072
P1B = 1
BPIPE = 1
FINR = 0
VLATE = 8
FL3 = RL + 256 + 240
FL = 29248
XW23 = 9
RSEL = 0
FORCE_FB = 0
VEARLY = 8
EARLY = -1
EGAP = 2
EADD = 0
EW0 = 1
EPRE = 2
EDLY = 0
XST = 0
XSL = 8
XLD = 2
KEARLY = 8
PLATE = 24
NOQ = 0
PREF = 0
RANK_A = 2
PACE_A = 0
DBG_ARRIVE = 0
DBG_XCC = 4
DBG_PROG = 64
DBG_FAIL = 252 - 172

sStep, sSpin, sMode = 64, 65, 66
sACC, sACCN, sB, sBO, sK, sV, sKVM = 68, 70, 72, 74, 76, 78, 60
sSelE, sSelO, sC, sG, sM, sW = 62, 63, 59, 56, 57, 58
sQ, sQL = 60, 61

TRACE = False
WS_TRACE = WS_DIAG + (1 << 20)
def tr(e, i):
    if TRACE: e(f"s_memrealtime s[{86+2*i}:{87+2*i}]")
def tr_out(e):
    if not TRACE: return
    e(f"""s_waitcnt lgkmcnt(0)
s_lshl_b32 s48, s{S_WG}, 3
s_add_u32 s48, s48, s{S_WAVE}
s_lshl_b32 s48, s48, 6
s_add_u32 s48, s48, s{sStep}
s_lshl_b32 s48, s48, 5
s_add_u32 s48, s48, {WS_TRACE}
v_lshlrev_b32 v13, 2, v0
v_add_u32 v13, s48, v13""")
    for i in range(8): e(f"v_writelane_b32 v12, s{86+2*i}, {i}")
    e(f"s_mov_b64 exec, 0xff\nglobal_store_dword v13, v12, s[{P_WS}:{P_WS+1}]\ns_mov_b64 exec, -1")

def reduce4(e, alo, ahi, st, t=12, scale=None):
    e(f"""ds_read2st64_b32 v[{t}:{t+1}], v{alo} offset0:0 offset1:{st}
ds_read2st64_b32 v[{t+2}:{t+3}], v{ahi} offset0:0 offset1:{st}
ds_read2st64_b32 v[{t+4}:{t+5}], v{alo} offset0:{2*st} offset1:{3*st}
ds_read2st64_b32 v[{t+6}:{t+7}], v{ahi} offset0:{2*st} offset1:{3*st}
s_cmp_lg_u32 s{sMode}, 0
s_waitcnt lgkmcnt(2)
v_add_f32 v{t}, v{t}, v{t+1}
v_add_f32 v{t+2}, v{t+2}, v{t+3}""")
    if scale: e(f"v_mul_f32 v{t}, v{t}, v{scale}\nv_mul_f32 v{t+2}, v{t+2}, v{scale}")
    e(f"""s_waitcnt lgkmcnt(0)
v_add_f32 v{t+4}, v{t+4}, v{t+5}
v_add_f32 v{t+6}, v{t+6}, v{t+7}""")
    if scale: e(f"v_fmac_f32 v{t}, v{t+4}, v{scale}\nv_fmac_f32 v{t+2}, v{t+6}, v{scale}")
    else: e(f"v_add_f32 v{t}, v{t}, v{t+4}\nv_add_f32 v{t+2}, v{t+2}, v{t+6}")
    e(f"v_cvt_pk_bf16_f32 v{t}, v{t}, v{t+2}")

def reduce4n(e, ar, one, t, r):
    e(f"""ds_read_b128 v[{r}:{r+3}], v{ar}
ds_read2st64_b32 v[{t}:{t+1}], v7 offset0:0 offset1:10
ds_read2st64_b32 v[{t+2}:{t+3}], v8 offset0:0 offset1:10
ds_read2st64_b32 v[{t+4}:{t+5}], v7 offset0:20 offset1:30
ds_read2st64_b32 v[{t+6}:{t+7}], v8 offset0:20 offset1:30
s_waitcnt lgkmcnt(2)
v_mul_f32 v{t}, v{t}, v{r}
v_fma_f32 v{t+2}, v{t+2}, v{r}, v{one}
v_fmac_f32 v{t}, v{t+1}, v{r+1}
v_fmac_f32 v{t+2}, v{t+3}, v{r+1}
s_waitcnt lgkmcnt(0)
v_fmac_f32 v{t}, v{t+4}, v{r+2}
v_fmac_f32 v{t+2}, v{t+6}, v{r+2}
v_fmac_f32 v{t}, v{t+5}, v{r+3}
v_fmac_f32 v{t+2}, v{t+7}, v{r+3}
v_cvt_pk_bf16_f32 v{t}, v{t}, v{t+2}""")
def aln(e, k):
    if k >= 0: e(".p2align 6" + "\ns_nop 0" * k)
def rn_setup(ar, one, w4=False):
    g4 = G5 and w4; k = 15 if G5 and not w4 else 3
    return f"""v_bfe_u32 v{ar}, v0, 2, {1 if g4 else 3}
v_lshlrev_b32 v{ar}, {6 if g4 else 4}, v{ar}
v_add_u32 v{ar}, {RL + 128 + (48 if g4 else 0)}, v{ar}
v_and_b32 v{one}, {k}, v0
v_cmp_eq_u32 vcc, {k}, v{one}
v_cndmask_b32 v{one}, 0, 1.0, vcc"""

def publish_B(e, tail, d=12):
    ls, lb = e.label("Lslow"), e.label("Lback")
    rs = lambda f: "" if RLATE else f"global_store_dword v6, v11, s[{sBO}:{sBO+1}] {f}"
    e(f"""v_min_u32 v{d}, -2, v{d}
s_cbranch_scc1 {ls}
global_store_dword v6, v{d}, s[{sB}:{sB+1}]
{rs('')}
{lb}:""")
    tail.append(f"""{ls}:
global_store_dword v6, v{d}, s[{sB}:{sB+1}] sc1
{rs('sc1')}
s_branch {lb}""")
def reset_B(e, tail):
    if not RLATE: return
    ls, lb = e.label("Lslow"), e.label("Lback")
    e(f"s_cmp_lg_u32 s{sMode}, 0\ns_cbranch_scc1 {ls}\nglobal_store_dword v6, v11, s[{sBO}:{sBO+1}]\n{lb}:")
    tail.append(f"{ls}:\nglobal_store_dword v6, v11, s[{sBO}:{sBO+1}] sc1\ns_branch {lb}")

def advance(e):
    e(f"""s_add_u32 s{sStep}, s{sStep}, 1
s_mov_b64 s[{sACC}:{sACC+1}], s[{sACCN}:{sACCN+1}]
s_add_u32 s{sACCN}, s{sACCN}, {acc_step()}
s_addc_u32 s{sACCN+1}, s{sACCN+1}, 0
s_mov_b64 s[50:51], s[{sB}:{sB+1}]
s_mov_b64 s[{sB}:{sB+1}], s[{sBO}:{sBO+1}]
s_mov_b64 s[{sBO}:{sBO+1}], s[50:51]""")

def chain(e, L_done, kv_wait=None, arrive_hook=None):
    tail = []
    Lfail = e.label("Lcfail")
    e(f"""s_and_b32 s{sG}, s{S_WG}, 7
s_lshr_b32 s{sM}, s{S_WG}, 3
s_and_b32 s{sW}, s{S_WAVE}, 3
s_mov_b32 s{sStep}, 0
s_mov_b32 s{sSpin}, 0
s_mov_b32 s{sSelE}, 0x05040100
s_mov_b32 s{sSelO}, 0x07060100
s_mov_b32 s{sC}, {hex(f32bits(128 ** -0.5 * math.log2(math.e)))}
s_add_u32 s{sACC}, s{P_WS}, {WS_ACC}
s_addc_u32 s{sACC+1}, s{P_WS+1}, 0
s_add_u32 s{sACCN}, s{sACC}, {acc_step()}
s_addc_u32 s{sACCN+1}, s{sACC+1}, 0
s_mul_i32 s48, s{sG}, {GS}
s_add_u32 s48, s48, {WS_BR}
s_add_u32 s{sB}, s{P_WS}, s48
s_addc_u32 s{sB+1}, s{P_WS+1}, 0
s_add_u32 s{sBO}, s{sB}, {BR_SLOT}
s_addc_u32 s{sBO+1}, s{sB+1}, 0
s_add_u32 s{sK}, s{P_WS}, {WS_KB}
s_addc_u32 s{sK+1}, s{P_WS+1}, 0
s_add_u32 s{sV}, s{P_WS}, {WS_VB}
s_addc_u32 s{sV+1}, s{P_WS+1}, 0
s_add_u32 s{sKVM}, s{P_WS}, {WS_OP - 2*524288}
s_addc_u32 s{sKVM+1}, s{P_WS+1}, 0
v_mov_b32 v11, -1""")
    e("""v_and_b32 v12, 3, v0
v_bfe_u32 v13, v0, 2, 3
v_lshrrev_b32 v14, 5, v0""")
    e("""v_mov_b32 v2, 0x4444
v_mov_b32 v15, 0xeeee
v_and_b32 v16, 8, v0
v_cmp_ne_u32 vcc, 0, v16
v_cndmask_b32 v2, v2, v15, vcc""")
    e(f"""s_lshl_b32 s48, s{S_WAVE}, 4
v_lshlrev_b32 v15, 2, v12
v_lshlrev_b32 v16, 1, v14
v_add3_u32 v15, v15, v16, s48
v_add_u32 v16, 1, v15
v_lshlrev_b32 v17, 5, v12
v_bfe_u32 v22, v0, {3 if G5 else 5}, 1
v_lshl_add_u32 v17, v22, 1, v17
v_add_u32 v17, 13, v17
v_add_u32 v18, 16, v17
s_cmp_eq_u32 s{S_WAVE}, 4
s_cselect_b64 s[48:49], -1, 0
v_cndmask_b32 v15, v15, v17, s[48:49]
v_cndmask_b32 v16, v16, v18, s[48:49]""")
    e("""v_cmp_le_u32 s[50:51], 2, v12
s_and_b64 s[50:51], s[50:51], s[48:49]
v_cmp_eq_u32 s[52:53], 2, v12
s_and_b64 s[52:53], s[52:53], s[48:49]
v_cmp_eq_u32 s[54:55], 3, v12
v_mov_b32 v21, v13""")
    if G5: e("""v_and_b32 v17, 4, v0
v_or_b32 v17, 3, v17
v_cndmask_b32 v21, v13, v17, s[48:49]
s_or_b32 s48, s48, 0x80008000
s_or_b32 s49, s49, 0x80008000
s_and_b64 s[54:55], s[54:55], s[48:49]""")
    for col, dst in ((15, 7), (16, 8)):
        e(f"""v_lshrrev_b32 v17, 2, v{col}
v_mul_u32_u24 v17, 160, v17
v_and_b32 v18, 3, v{col}
v_lshlrev_b32 v18, 5, v18
v_add_u32 v17, v17, v18
v_lshl_add_u32 v17, v21, 2, v17
v_add_u32 v{dst}, {R2}, v17""")
    e(f"""v_mov_b32 v17, {R2+132}
v_mov_b32 v18, {R2+132}
v_cndmask_b32 v7, v7, v18, s[50:51]
v_cndmask_b32 v8, v8, v18, s[52:53]
v_cndmask_b32 v8, v8, v17, s[54:55]""")
    e(f"""s_mul_i32 s67, s{sM}, 5
s_add_u32 s67, s67, s{S_WAVE}
s_mul_i32 s67, s67, {acc_piece()}
v_lshlrev_b32 v9, 2, v0
v_add_u32 v9, s67, v9""")
    Ln0 = e.label("Lnomem0")
    e(f"""s_cmp_lg_u32 s{sG}, 0
s_cbranch_scc1 {Ln0}
s_cmp_gt_u32 s{S_WAVE}, 4
s_cbranch_scc1 {Ln0}
s_lshl_b32 s48, s{sM}, 7
v_lshlrev_b32 v17, 11, v21
v_add_u32 v17, s48, v17
v_and_b32 v15, 63, v15
v_and_b32 v16, 63, v16
v_lshl_add_u32 v15, v15, 1, v17
v_lshl_add_u32 v16, v16, 1, v17
global_load_ushort v24, v15, s[{P_MEM0}:{P_MEM0+1}]
global_load_ushort v25, v16, s[{P_MEM0}:{P_MEM0+1}]
v_cndmask_b32 v26, -1, 0, s[50:51]
s_or_b64 s[52:53], s[52:53], s[54:55]
v_cndmask_b32 v27, -1, 0, s[52:53]
v_mov_b32 v17, 0x41000000
v_cndmask_b32 v28, 0, v17, s[54:55]
{Ln0}:""")
    Lz = e.label("Lz")
    e(f"""s_mul_i32 s48, s{S_WG}, 640
s_lshl_b32 s49, s{S_WAVE}, 6
s_add_u32 s48, s48, s49
v_mov_b64 v[16:17], 0
v_mov_b64 v[18:19], 0""")
    for rep in range(2):
        if rep: e(f"s_cmp_gt_u32 s{S_WAVE}, 1\ns_cbranch_scc1 {Lz}\ns_add_u32 s48, s48, 512")
        e("v_add_u32 v15, s48, v0")
        if SPREAD: e("v_lshrrev_b32 v20, 10, v15\nv_lshlrev_b32 v15, 4, v15\nv_lshl_add_u32 v15, v20, 8, v15")
        else: e("v_lshlrev_b32 v15, 4, v15")
        e(f"global_store_dwordx4 v15, v[16:19], s[{sACCN}:{sACCN+1}] sc1")
    e(f"{Lz}:")
    LS2i, Lji = e.label("LS2i"), e.label("Lji")
    e(f"""s_lshr_b32 s48, s{sM}, 2
s_mul_i32 s48, s48, {HS}
s_and_b32 s49, s{sM}, 3
s_cmp_ge_u32 s{S_WAVE}, 4
s_cbranch_scc1 {LS2i}""")
    e(f"""s_and_b32 s50, s{S_WAVE}, 1
s_lshl_b32 s51, s50, 3
v_lshl_add_u32 v15, v12, 1, v14
v_add_u32 v15, s51, v15
v_mul_u32_u24 v15, 96, v15
v_lshl_add_u32 v15, v13, 2, v15
v_add_u32 v4, {R1 + 2*1536}, v15
v_add_u32 v5, 32, v4
s_lshl_b32 s49, s49, 9
s_lshl_b32 s50, s50, 8
s_add_u32 s48, s48, s49
s_add_u32 s48, s48, s50
s_add_u32 s48, s48, 4096
s_branch {Lji}
{LS2i}:""")
    e(f"""s_lshl_b32 s51, s{sW}, 2
v_add_u32 v15, s51, v12
v_mul_u32_u24 v15, 96, v15
v_lshl_add_u32 v15, v13, 2, v15
v_xor_b32 v16, 1, v14
v_mul_u32_u24 v16, 1536, v16
v_add3_u32 v4, v15, v16, {R1}
v_add_u32 v5, 32, v4
s_lshl_b32 s49, s49, 10
s_lshl_b32 s50, s{sW}, 8
s_add_u32 s48, s48, s49
s_add_u32 s48, s48, s50
{Lji}:
v_lshlrev_b32 v6, 2, v0
v_add_u32 v6, s48, v6""")
    e(f"""global_store_dword v6, v11, s[{sB}:{sB+1}] sc1
global_store_dword v6, v11, s[{sBO}:{sBO+1}] sc1
s_min_u32 s48, s{S_WAVE}, 2
s_mul_i32 s49, s{S_WG}, 3
s_add_u32 s48, s48, s49
s_lshl_b32 s48, s48, 8
s_add_u32 s48, s48, {WS_PR}
v_lshl_add_u32 v15, v0, 2, s48
global_store_dword v15, v11, s[{P_WS}:{P_WS+1}] sc1
""")
    def mem0_store(n, post=""):
        La = e.label("Lm0")
        e(f"""s_waitcnt vmcnt({n})
s_cmp_lg_u32 s{sG}, 0
s_cbranch_scc1 {La}_n
s_cmp_gt_u32 s{S_WAVE}, 4
s_cbranch_scc1 {La}_n
v_and_b32 v24, v24, v26
v_and_b32 v25, v25, v27
v_lshl_or_b32 v24, v25, 16, v24
v_or_b32 v24, v24, v28
global_store_dword v9, v24, s[{sACC}:{sACC+1}] sc1
{post}
{La}_n:""")
    def arrive(n):
        La = e.label("La")
        if G0FIX: e(f"s_waitcnt vmcnt({16 if n == 32 else 8})")
        else: mem0_store(n, "s_waitcnt vmcnt(0)")
        e("s_barrier")
        stamp(e, 6, True)
        e(f"""s_cmp_lg_u32 s{S_WAVE}, 7
s_cbranch_scc1 {La}
s_getreg_b32 s48, hwreg(HW_REG_XCC_ID)
s_and_b32 s48, s48, 15
s_mul_i32 s49, s48, s48
s_lshl_b32 s49, s49, 8
s_add_u32 s48, s48, s49
s_lshl_b32 s48, s48, 8
s_add_u32 s48, s48, 1
s_lshl_b32 s49, s{sG}, 2
s_mov_b64 exec, 1
v_mov_b32 v15, s49
v_mov_b32 v16, s48
global_atomic_add v15, v16, s[{P_DBG}:{P_DBG+1}] offset:{DBG_XCC}
s_mov_b64 exec, -1
{La}:""")
    LS2 = e.label("LS2")
    e(f"s_cmp_ge_u32 s{S_WAVE}, 4\ns_cbranch_scc1 {LS2}")

    def ws_addr(a):
        return f"""v_and_b32 v{a}, 7, v0
v_lshlrev_b32 v{a}, 2, v{a}
s_cmp_eq_u32 s{S_WAVE}, 4
s_cselect_b32 s48, 0xff00, 0
s_mov_b32 s49, 0
v_mov_b32 v{a+1}, {C_KV0 - DBG_XCC}
v_cndmask_b32 v{a}, v{a}, v{a+1}, s[48:49]
v_mov_b32 v{a+1}, 96
v_cndmask_b32 v{a+1}, 16, v{a+1}, s[48:49]
v_mov_b32 v{a+3}, 255
v_cndmask_b32 v{a+3}, v{a+3}, -1, s[48:49]
global_load_dword v{a+2}, v{a}, s[{P_DBG}:{P_DBG+1}] offset:{DBG_XCC} sc1"""
    def wait_start(a=None):
        stamp(e, 7, True)
        Lw = e.label("Lws")
        if a is None: e("v_and_b32 v12, 7, v0\nv_lshlrev_b32 v12, 2, v12")
        else: e(f"s_branch {Lw}_c")
        ad, r = (12, 14) if a is None else (a, a + 2)
        e(f"""{Lw}:
s_sleep {4 if a is None else WSL}
global_load_dword v{r}, v{ad}, s[{P_DBG}:{P_DBG+1}] offset:{DBG_XCC} sc1
s_add_u32 s{sSpin}, s{sSpin}, 1
s_cmp_gt_u32 s{sSpin}, {SPIN_MAX}
s_cbranch_scc1 {Lfail}
s_waitcnt vmcnt(0)
{Lw}_c:
v_and_b32 v13, {255 if a is None else f'v{a+3}'}, v{r}
v_cmp_gt_u32 vcc, {16 if a is None else f'v{a+1}'}, v13
s_cbranch_vccnz {Lw}
v_readlane_b32 s48, v{r}, s{sG}
s_bfe_u32 s49, s48, 0x80008
s_mul_i32 s49, s49, s49
s_lshr_b32 s48, s48, 16
s_lshl_b32 s48, s48, 4
s_sub_u32 s{sMode}, s48, s49""")
    nextrow = f"""s_add_u32 s54, s54, {16*8192}
s_bitcmp1_b32 s54, 19
s_cselect_b32 s55, {192*8192}, 0
s_add_u32 s54, s54, s55"""

    W1 = 64; G = 20; AC = 40
    e(f"""s_lshl_b32 s48, s{sG}, 2
s_lshr_b32 s49, s{sM}, 2
s_add_u32 s48, s48, s49
s_lshl_b32 s48, s48, 8
s_and_b32 s49, s{sM}, 3
s_lshl_b32 s49, s49, 6
s_add_u32 s48, s48, s49
s_lshl_b32 s49, s{sW}, 19
s_add_u32 s52, s48, s49
v_lshrrev_b32 v12, 2, v0
v_lshlrev_b32 v12, 13, v12
v_and_b32 v13, 3, v0
v_lshl_add_u32 v12, v13, 4, v12
s_lshl_b32 s53, s{sW}, 15""")
    e(f"""v_lshrrev_b32 v13, 5, v0
v_lshlrev_b32 v13, 6, v13
v_bfe_u32 v14, v0, 4, 1
v_lshl_add_u32 v13, v14, 3, v13
v_bfe_u32 v14, v0, 2, 2
v_add_u32 v13, v13, v14
v_lshlrev_b32 v13, 6, v13
v_and_b32 v14, 3, v0
v_lshl_add_u32 v13, v14, 3, v13
v_add_u32 v13, s53, v13""")
    def w1_dma(both, first=True, end=1024):
        L = e.label("Lw1")
        if first: e("s_mov_b32 m0, s53\ns_mov_b32 s54, 0")
        e(f"""{L}:
buffer_load_dwordx4 v12, s[{SRD_W}:{SRD_W+3}], s54 offen lds""")
        if both: e(f"s_add_u32 m0, m0, 16384\nbuffer_load_dwordx4 v12, s[{SRD_O}:{SRD_O+3}], s54 offen lds")
        e(f"""s_add_u32 m0, m0, {hex((1024 - 16384 * both) & 0xffffffff)}
{nextrow}
s_cmp_lt_u32 s54, {end*8192}
s_cbranch_scc1 {L}""")
    def w1_read(mat, half):
        for ch in range(2):
            for i in range(4):
                r = W1 + ((2 * mat + ch) * 4 + i) * 8
                for q in range(2):
                    for h in range(2):
                        e(f"ds_read_b64_tr_b16 v[{r+4*q+2*h}:{r+4*q+2*h+1}], v13 offset:{half*16384 + (128*q + 16*i + 4*h)*64 + 32*ch}")
    make_srd(e, SRD_W, P_BWQ, 52, 0, 8388608); make_srd(e, SRD_O, P_BWK, 52, 0, 8388608)
    stamp(e, 10, True)
    if G0FIX:
        w1_dma(1, True, 512); mem0_store(16); w1_dma(1, False)
    else: w1_dma(1)
    stamp(e, 13, True)
    arrive(32)
    make_srd(e, SRD_W, P_BWV, 52, 0, 8388608)
    e("s_waitcnt vmcnt(0)")
    stamp(e, 8, True)
    w1_read(0, 0)
    e("s_waitcnt lgkmcnt(0)")
    w1_dma(0)
    w1_read(1, 1)
    e("s_waitcnt vmcnt(0)")
    w1_read(2, 0)
    e(f"""v_lshrrev_b32 v1, 4, v0
v_lshl_add_u32 v1, v1, 2, s{sW}
v_mul_u32_u24 v1, {5*acc_piece()}, v1
v_and_b32 v14, 15, v0
v_lshl_add_u32 v1, v14, 4, v1
v_lshrrev_b32 v15, 5, v0
v_lshl_add_u32 v14, v15, 4, v14
v_lshrrev_b32 v15, 1, v14
v_mul_u32_u24 v15, 96, v15
v_and_b32 v14, 1, v14
v_lshl_add_u32 v15, v14, 5, v15
v_bfe_u32 v14, v0, 4, 1
v_lshl_add_u32 v15, v14, 4, v15
s_mul_i32 s48, s{sW}, 4608
s_add_u32 s48, s48, {R1}
v_add_u32 v3, s48, v15
s_waitcnt lgkmcnt(0)""")
    make_srd(e, SRD_X, P_WS, None, 0, WS_SIZE)
    e(f"""s_and_b32 s48, s{S_WAVE}, 1
s_mul_i32 s47, s48, 1536
s_add_u32 s54, s47, {PL}
s_mul_i32 s53, s{sW}, 3072
s_sub_u32 s52, s53, s47
s_add_u32 s53, s53, {PL}
s_mul_i32 s49, s{sG}, 12288
s_add_u32 s47, s47, s49
s_add_u32 s47, s47, {WS_PR}
s_lshl_b32 s48, s48, 11
s_lshl_b32 s43, s{S_WG}, 12
s_add_u32 s43, s43, s48
s_lshr_b32 s48, s{S_WAVE}, 1
s_mul_i32 s42, s48, 3072
s_add_u32 s42, s42, {YD}
s_lshl_b32 s48, s48, 10
s_add_u32 s43, s43, s48""")
    if PTOUCH:
        e(f"""v_lshlrev_b32 v14, 4, v0
s_and_b32 s48, s{sM}, 3
s_mul_i32 s48, s48, {PR_SLOT}
s_lshr_b32 s49, s{sM}, 2
s_min_u32 s49, s49, 2
s_lshl_b32 s49, s49, 10
s_add_u32 s48, s48, s49
s_add_u32 s55, s47, s52
s_add_u32 s55, s55, s48
buffer_load_dwordx4 v[{G}:{G+3}], v14, s[{SRD_X}:{SRD_X+3}], s55 offen sc1""")
    wait_start()
    e("s_barrier")
    e("s_barrier")
    e("s_setprio 3\ns_mov_b32 s67, 0x41000000")
    if common.DIAG: e("s_mov_b32 s85, 0\ns_mov_b32 s83, 0")
    stamp(e, 1, True)
    L1, LpA, L1x = e.label("L1"), e.label("LpA"), e.label("L1x")
    assert not SPREAD
    xstore = f"global_store_dwordx4 v15, v[16:19], s[{sKVM}:{sKVM+1}] {LF[XSF]}"
    a5 = "v_and_b32 v14, 15, v0\nv_mul_u32_u24 v14, 12, v14\nv_sub_u32 v14, v1, v14" if G5 else ""
    e("v_lshl_add_u32 v15, v0, 4, s43\n" + a5)
    aln(e, AL1)
    e(f"{L1}:")
    if not XT: tr(e, 7)
    e(f"{LpA}:")
    tr(e, 0)
    lda = lambda f: "\n".join(f"global_load_dword v{G+19}, v14, s[{sACC}:{sACC+1}] offset:1024 {f}" if i == 4 and G5 else
                              f"global_load_dwordx4 v[{G+4*i}:{G+4*i+3}], v1, s[{sACC}:{sACC+1}] offset:{256*i} {f}" for i in (4, 0, 1, 2, 3))
    e(lda(LF[AF]) + f"\n{LpA}_j:")
    if STL == 1: e(xstore)
    if VLATE: e(f"s_lshl_b32 s48, s{sW}, 2\nv_mov_b32 v12, s48\nv_mov_b32 v13, s{sStep}")
    flg = f"ds_write_b32 v12, v13 offset:{FL}" if VLATE else ""
    if VARR < 0: e(flg)
    e(f"s_add_u32 s{sSpin}, s{sSpin}, 1\ns_cmp_gt_u32 s{sSpin}, {SPIN_MAX}\ns_cbranch_scc1 {Lfail}")
    for r in range(0, 24, 2): e(f"v_mov_b64 v[{AC+r}:{AC+r+1}], 0")
    if G5:
        assert STL != 1 and VARR < 0 and not SPLIT
        e(f"""s_waitcnt vmcnt(4)
v_mov_b32_dpp v{G+16}, v{G+19} quad_perm:[0,0,0,0] row_mask:0xf bank_mask:0xf
v_mov_b32_dpp v{G+17}, v{G+19} quad_perm:[1,1,1,1] row_mask:0xf bank_mask:0xf
s_mov_b32 exec_lo, 0x88888888
s_mov_b32 exec_hi, 0x88888888""")
    def sm1(c, i):
        w = W1 + (c * 4 + i) * 8
        return f"v_smfmac_f32_16x16x64_bf16 v[{AC+4*c}:{AC+4*c+3}], v[{G+4*i}:{G+4*i+3}], v[{w}:{w+7}], v2"
    def arr(i):
        d3 = G + 4 * i + 3
        e(f"s_waitcnt vmcnt({3-i+(STL == 1)})")
        if i == 3: tr(e, 1)
        if i == VARR: e(flg)
        e(f"v_min_u32 v10, v{d3}, v{G+19 if i == 0 else 10}")
        e(f"v_perm_b32 v{d3}, v{G+16+i//2}, v{d3}, s{sSelO if i & 1 else sSelE}")
    def epi(p):
        a, b = AC + 8 * p, AC + 8 * p + 4
        return [f"v_permlane32_swap_b32 v{a+r}, v{b+r}" for r in range(4)] + ([f"v_pk_add_f32 v[{a+r}:{a+r+1}], v[{a+r}:{a+r+1}], v[{b+r}:{b+r+1}]" for r in (0, 2)] if PKA else [f"v_add_f32 v{a+r}, v{a+r}, v{b+r}" for r in range(4)]) + [f"ds_write_b128 v3, v[{a}:{a+3}] offset:{p*1536}"]
    chkA = f"v_cmp_gt_u32 vcc, s67, v10"
    if SPLIT:
        arr(0); e(sm1(0, 0)); e(sm1(1, 0)); e(sm1(2, 0))
        arr(1); e(sm1(3, 0)); e(sm1(0, 1))
        arr(2); e(sm1(1, 1)); e(sm1(0, 2))
        arr(3); e(sm1(1, 2))
        e(chkA); e(sm1(0, 3)); e(f"s_cbranch_vccnz {LpA}_retry"); e(sm1(1, 3))
        e(sm1(2, 1) + "\ns_nop 1"); e(sm1(3, 1) + "\ns_nop 1"); e(sm1(2, 2) + "\ns_nop 0")
        f = epi(0)
        for c, i in ((3, 2), (2, 3), (3, 3), (4, 0)):
            e(sm1(c, i)); e(f.pop(0)); e(f.pop(0))
        e(f.pop(0)); e(sm1(5, 0))
        for x in epi(1): e(x)
        e(f"s_setprio {P1B}")
        e(sm1(4, 1)); e(sm1(5, 1))
        tr(e, 2)
        e("s_waitcnt lgkmcnt(0)\ns_barrier")
        for c, i in ((4, 2), (5, 2), (4, 3), (5, 3)): e(sm1(c, i))
        for x in epi(2): e(x)
    else:
        f = epi(0) + epi(1) + epi(2)
        arr(0)
        for c in range(5): e(sm1(c, 0))
        arr(1); e(sm1(5, 0))
        for c in range(3): e(sm1(c, 1))
        arr(2); e(sm1(3, 1))
        e(sm1(0, 2)); arr(3); e(sm1(1, 2))
        e(chkA); e(sm1(0, 3))
        if G5: e("s_mov_b64 exec, -1")
        e(f"s_cbranch_vccnz {LpA}_retry"); e(sm1(1, 3))
        for c, i in ((2, 2), (3, 2), (2, 3), (3, 3)): e(sm1(c, i) + "\ns_nop 0")
        for c, i in ((4, 1), (5, 1), (4, 2), (5, 2), (4, 3), (5, 3)):
            e(sm1(c, i)); e(f.pop(0)); e(f.pop(0))
        for x in f: e(x)
        tr(e, 2)
    tail.append(f"{LpA}_retry:\ns_nop 7\ns_sleep {ASL}\n" + ("s_add_u32 s85, s85, 1\n" if common.DIAG else "") + lda(LF[ARF]) + f"\ns_branch {LpA}_j")
    e(f"s_setprio {P1B}\ns_waitcnt lgkmcnt(0)\ns_barrier")
    tr(e, 3)
    Lnp = e.label("Lnp")
    e(f"s_cmp_gt_u32 s{S_WAVE}, 1\ns_cbranch_scc1 {Lnp}_o")
    reduce4(e, 4, 5, 18, 24)
    publish_B(e, tail, 24)
    e(f"{'s_waitcnt vmcnt(0)' if ACK1 else ''}\n{Lnp}:")
    tail.append(f"""{Lnp}_o:
s_sleep {XW23}
s_lshl_b32 s48, s{S_WG}, 3
s_add_u32 s48, s48, s{S_WAVE}
s_cmp_lg_u32 s48, 2
s_cbranch_scc1 {Lnp}
v_mov_b32 v20, 0
v_mov_b32 v21, s{sStep}
s_mov_b64 exec, 1
global_store_dword v20, v21, s[{P_DBG}:{P_DBG+1}] offset:{DBG_PROG} sc1
""" + (f"""s_cmp_lg_u32 s{sStep}, 12
s_cbranch_scc1 {Lnp}_t12
s_memrealtime s[48:49]
s_waitcnt lgkmcnt(0)
s_add_u32 s48, s48, 750
v_mov_b32 v21, s48
global_store_dword v20, v21, s[{P_DBG}:{P_DBG+1}] offset:88 sc1
{Lnp}_t12:
""" if PER else "") + f"""s_mov_b64 exec, -1
s_branch {Lnp}""")
    PXr = [40 + 4 * h for h in range(4)]; PMr = [56 + 2 * h for h in range(4)]; XA = 12; YB = [32, 36, 24, 28]
    ldp = "v_lshlrev_b32 v18, 4, v0\nv_lshlrev_b32 v19, 3, v0\n" + "\n".join(
        f"buffer_load_dwordx4 v[{PXr[h]}:{PXr[h]+3}], v18, s[{SRD_X}:{SRD_X+3}], s{44+h//2} offen offset:{(h%2)*3072} sc1\n"
        f"buffer_load_dwordx2 v[{PMr[h]}:{PMr[h]+1}], v19, s[{SRD_X}:{SRD_X+3}], s{40+h//2} offen offset:{(h%2)*3072} sc1" for h in range(4))
    tr_out(e)
    if common.DIAG and not TRACE:
        e(f"s_cmp_lg_u32 s{sStep}, 16\ns_cbranch_scc1 {Lnp}_s16\ns_mov_b32 s85, 0"); stamp(e, 9, True); e(f"{Lnp}_s16:")
    if AL3 >= 0: e(".p2align 5" + "\ns_nop 0" * AL3)
    e(f"""{Lnp}_e:
s_xor_b32 s42, s42, {YD ^ YD2}
s_add_u32 s44, s{sStep}, 3
s_and_b32 s44, s44, 3
s_mul_i32 s44, s44, {PR_SLOT}
s_add_u32 s44, s44, s47
s_add_u32 s45, s44, 6144
s_add_u32 s40, s44, 1024
s_add_u32 s41, s45, 1024
v_lshl_add_u32 v20, v0, 4, s42
v_add_u32 v21, 8, v20""")
    e(rn_setup(23, 24))
    rd = [(h, k) for h in (0, 2) for k in range(6)]
    def rdy(i):
        h, k = rd[i]; b = YB[i % 4]
        if k < 4: return f"ds_read_b128 v[{b}:{b+3}], v20 offset:{(h + k//2)*6144 + (k%2)*1024}"
        return f"ds_read2st64_b64 v[{b}:{b+3}], v{20 + k - 4} offset0:{12*h + 4} offset1:{12*h + 16}"
    rdp = [f"ds_read_b128 v[{PXr[h]}:{PXr[h]+3}], v22 offset:{h*3072}" for h in range(4)] + [f"ds_read2st64_b64 v[{PMr[h]}:{PMr[h]+3}], v25 offset0:{6*h + 2} offset1:{6*h + 8}" for h in (0, 2)]
    e(f"""s_cmp_eq_u32 s{sStep}, 64
s_cbranch_scc1 {Lnp}_f
s_add_u32 s55, s44, s52
s_mov_b32 m0, s53
v_lshlrev_b32 v14, 4, v0
v_lshl_add_u32 v22, v0, 4, s54
v_lshl_add_u32 v25, v0, 3, s54
s_lshl_b32 s48, s{sW}, 2
s_add_u32 s49, s{sStep}, 1
v_mov_b32 v26, s48
v_mov_b32 v27, s49
v_and_b32 v12, {7 if PPRE else 3}, v0
v_lshlrev_b32 v12, 2, v12
s_sleep {XW}""")
    for x in range(3): e(f"buffer_load_dwordx4 v14, s[{SRD_X}:{SRD_X+3}], s55 offen offset:{x*1024} sc1 lds")
    if RLATE:
        e(f"s_cmp_gt_u32 s{S_WAVE}, 1\ns_cbranch_scc1 {Lnp}_rs"); reset_B(e, tail); e(f"{Lnp}_rs:")
    e(f"""s_waitcnt vmcnt(0)
ds_write_b32 v26, v27 offset:{FL3 + 16}
{Lnp}_w:
s_sleep {FSL}
ds_read_b32 v13, v12 offset:{FL3}
s_add_u32 s{sSpin}, s{sSpin}, 1
s_cmp_gt_u32 s{sSpin}, {SPIN_MAX}
s_cbranch_scc1 {Lfail}
s_waitcnt lgkmcnt(0)
v_cmp_ge_u32 vcc, s{sStep}, v13
s_cbranch_vccnz {Lnp}_w
{xstore}""")
    if PPRE:
        for x in rdp + [rdy(i) for i in range(PPRE - 1)]: e(x)
    e(f"{Lnp}_g:")
    tail.append(f"{Lnp}_f:\ns_barrier\ns_add_u32 s{sKVM}, s{sKVM}, 524288\ns_addc_u32 s{sKVM+1}, s{sKVM+1}, 0\n" + "\n".join(rdy(i) for i in range(4)) + f"\ns_branch {Lnp}_r")
    e(f"s_add_u32 s{sKVM}, s{sKVM}, 524288\ns_addc_u32 s{sKVM+1}, s{sKVM+1}, 0\ns_setprio 3")
    e("s_barrier")
    tr(e, 4)
    reduce4n(e, 23, 24, 12, 28)
    e(f"global_atomic_pk_add_bf16 v10, v9, v12, s[{sACCN}:{sACCN+1}] sc0")
    tr(e, 5)
    e(f"s_cmp_eq_u32 s{sStep}, 0\ns_cbranch_scc1 {Lnp}_q")
    if not PPRE:
        for x in rdp: e(x)
    for i in range(max(0, PPRE - 1), 4): e(rdy(i))
    e(f"""s_waitcnt lgkmcnt(4)
{Lnp}_c:
v_max3_u32 v13, v43, v47, v51
v_max3_u32 v14, v55, v57, v59
v_max3_u32 v13, v61, v63, v13
v_max_u32 v13, v13, v14
v_cmp_eq_u32 vcc, -1, v13
s_cbranch_vccnz {Lnp}_r""")
    tail.append(f"{Lnp}_r:\n{ldp}\ns_add_u32 s{sSpin}, s{sSpin}, 1\ns_cmp_gt_u32 s{sSpin}, {SPIN_MAX}\ns_cbranch_scc1 {Lfail}\n" + ("s_add_u32 s83, s83, 1\n" if common.DIAG else "") + f"s_waitcnt vmcnt(0)\ns_branch {Lnp}_c")
    nxt = 4
    for i, (h, k) in enumerate(rd):
        b = YB[i % 4]; a = XA + 4 * (k % 2); pr = PXr[h + k // 2] if k < 4 else PMr[h]
        e(f"s_waitcnt lgkmcnt({nxt - 1 - i})")
        e(f"v_mfma_f32_16x16x32_bf16 v[{a}:{a+3}], v[{b}:{b+3}], v[{pr}:{pr+3}], " + ("0" if h == 0 and k < 2 else f"v[{a}:{a+3}]"))
        if nxt < len(rd): e(rdy(nxt)); nxt += 1
    for x in (3, 2, 0, 1): e(f"v_cvt_pk_bf16_f32 v{16+x}, v{XA+2*x}, v{XA+2*x+1}")
    e(f"v_permlane16_swap_b32 v16, v18\nv_permlane16_swap_b32 v17, v19\nv_min_u32 v19, -2, v19\n{Lnp}_q:\nv_lshl_add_u32 v15, v0, 4, s43\n" + a5)
    if not STL: e(xstore)
    if XT: tr(e, 7)
    e(f"s_cmp_ge_u32 s{sStep}, 63\ns_cbranch_scc1 {L1x}")
    advance(e)
    if PER:
        Lt = e.label("Lt")
        e(f"""s_cmp_lt_u32 s{sStep}, 16
s_cbranch_scc1 {Lt}_r
s_cmp_lg_u32 s{sStep}, 16
s_cbranch_scc1 {Lt}_n
v_mov_b32 v12, 0
global_load_dword v13, v12, s[{P_DBG}:{P_DBG+1}] offset:88 sc1
s_waitcnt vmcnt(0)
v_readfirstlane_b32 s46, v13
{Lt}_n:
s_add_u32 s46, s46, {PER}
{f's_sub_u32 s46, s46, s{sStep}' if PSW else ''}
{'s_waitcnt vmcnt(0)' if PACK else ''}
{Lt}:
s_memrealtime s[48:49]
s_waitcnt lgkmcnt(0)
s_sub_u32 s48, s48, s46
s_cmp_lt_i32 s48, 0
s_cbranch_scc1 {Lt}
s_cmp_lt_i32 s48, {PSLIP}
s_cbranch_scc1 {L1}
{Lt}_r:""")
    e(f"s_waitcnt vmcnt({0 if STL else 1})")
    tr(e, 6)
    Lr = e.label("Lrank")
    e(f"""v_and_b32 v10, 0xffff0000, v10
v_cvt_u32_f32 v10, v10
v_readlane_b32 s48, v10, {15 if G5 else 3}
s_lshl_b32 s48, s48, 2
s_lshr_b32 s48, {hex(RTAB)}, s48
s_and_b32 s48, s48, 15
{Lr}:
s_cbranch_scc0 {L1}
s_sleep 1
s_sub_u32 s48, s48, 1
s_cmp_lg_u32 s48, 0
s_branch {Lr}
{L1x}:
{xstore if STL else ''}
s_setprio 0
s_add_u32 s{sStep}, s{sStep}, 1
s_cmp_eq_u32 s{sStep}, 64
s_cbranch_scc1 {Lnp}_e
s_branch {L_done}""")

    e(f"{LS2}:")
    T, VV, S0, S1_, SM, PX, PM, YM, O, LS, YX, KX, VX, WO = 28, 44, 52, 56, 60, 64, 68, 72, 88, 104, 108, 124, 156, 188
    ON16, ON32 = 22, 24
    DQ, NEG = 252, 253
    e(f"""s_lshl_b32 s48, s{sG}, 2
s_add_u32 s48, s48, s{sW}
s_lshl_b32 s55, s48, 13
s_lshl_b32 s48, s48, 18
s_lshl_b32 s49, s{sM}, 7
s_add_u32 s52, s48, s49
v_lshrrev_b32 v12, 3, v0
v_lshlrev_b32 v12, 11, v12
v_and_b32 v13, 7, v0
v_lshl_add_u32 v12, v13, 4, v12
s_lshl_b32 s53, s{sW}, 13
s_add_u32 s53, s53, 131072
v_lshrrev_b32 v13, 4, v0
v_lshlrev_b32 v13, 3, v13
v_bfe_u32 v14, v0, 2, 2
v_add_u32 v13, v13, v14
v_lshlrev_b32 v13, 7, v13
v_and_b32 v14, 3, v0
v_lshl_add_u32 v13, v14, 3, v13
v_add_u32 v13, s53, v13""")
    make_srd(e, SRD_W, P_BWO, 52, 0, 8388608)
    def vpf():
        e(f"""s_lshl_b32 s48, s{sG}, 2
s_lshr_b32 s49, s{sM}, 2
s_add_u32 s48, s48, s49
s_lshl_b32 s48, s48, 8
s_and_b32 s49, s{sM}, 3
s_lshl_b32 s49, s49, 6
s_add_u32 s48, s48, s49
s_lshl_b32 s49, s{sW}, 19
s_add_u32 s48, s48, s49
v_lshrrev_b32 v14, 2, v0
v_lshlrev_b32 v14, 13, v14
v_and_b32 v15, 3, v0
v_lshl_add_u32 v14, v15, 4, v14""")
        make_srd(e, SRD_X, P_BWV, 48, 0, 8388608)
        L = e.label("Lvpf")
        e(f"s_mov_b32 s54, 0\n{L}:\nbuffer_load_dwordx4 v[64:67], v14, s[{SRD_X}:{SRD_X+3}], s54 offen\n{nextrow.replace('s55', 's49')}\ns_cmp_lt_u32 s54, {1024*8192}\ns_cbranch_scc1 {L}")
    stamp(e, 10, True)
    if VPRI: e(f"s_setprio {VPRI}")
    vpf()
    if VPRI: e("s_setprio 0")
    if G0FIX: mem0_store(16)
    stamp(e, 13, True)
    for rnd in range(2):
        L = e.label("Lwo")
        e(f"""s_mov_b32 m0, s53
s_mov_b32 s54, {rnd*64*2048}
{L}:
buffer_load_dwordx4 v12, s[{SRD_W}:{SRD_W+3}], s54 offen lds
s_add_u32 s54, s54, {8*2048}
s_add_u32 m0, m0, 1024
s_cmp_lt_u32 s54, {(rnd+1)*64*2048}
s_cbranch_scc1 {L}""")
        if rnd == 0: arrive(24)
        if rnd == 1 and EKV: e(ws_addr(29))
        e("s_waitcnt vmcnt(0)")
        for ct in range(4):
            for jj in range(2):
                r = WO + (ct * 4 + rnd * 2 + jj) * 4
                for h in range(2):
                    e(f"ds_read_b64_tr_b16 v[{r+2*h}:{r+2*h+1}], v13 offset:{(32*jj + 4*h)*128 + 32*ct}")
        e("s_waitcnt lgkmcnt(0)")
    e(f"""s_mul_i32 s48, s{sW}, {HS}
v_lshlrev_b32 v14, 4, v0
v_add_u32 v1, s48, v14
v_add_u32 v20, s55, v14
s_lshl_b32 s49, s{sM}, 9
s_add_u32 s55, s55, s49
s_add_u32 s55, s55, {2*KVSTEP}
v_and_b32 v15, 15, v0
v_lshrrev_b32 v16, 2, v15
v_mul_u32_u24 v16, 160, v16
v_and_b32 v15, 3, v15
v_lshl_add_u32 v16, v15, 5, v16
v_bfe_u32 v15, v0, 4, 1
v_lshl_add_u32 v16, v15, 4, v16
s_mul_i32 s48, s{sW}, 2560
s_add_u32 s48, s48, {R2}
v_add_u32 v3, s48, v16
v_mov_b32 v{ON32}, 0x3f803f80
v_mov_b32 v{ON32+1}, 0x3f803f80
v_mov_b32 v{ON32+2}, 0x3f803f80
v_mov_b32 v{ON32+3}, 0x3f803f80
v_cmp_gt_u32 vcc, 32, v0
v_cndmask_b32 v{ON16}, 0, v{ON32}, vcc
v_cndmask_b32 v{ON16+1}, 0, v{ON32}, vcc""")
    e(f"""v_and_b32 v15, 15, v0
v_lshrrev_b32 v16, 4, v0
s_mul_i32 s48, s{sW}, 6144
s_add_u32 s48, s48, {YD}
v_lshl_add_u32 v21, v0, 4, s48
s_and_b32 s48, s{sM}, 3
s_lshl_b32 s49, s48, 3
v_lshlrev_b32 v16, 2, v16
v_sub_u32 v15, v15, v16
v_add_u32 v15, s49, v15
s_mov_b32 s40, 0xff00ff00
s_mov_b32 s41, 0xff00ff00
v_cndmask_b32 v{DQ}, v15, 64, s[40:41]
v_mov_b32 v{NEG}, 0xf149f2ca
s_lshr_b32 s49, s48, 1
s_and_b32 s48, s48, 1
s_lshl_b32 s48, s48, 7
s_lshl_b32 s{sQ}, s49, 12
s_add_u32 s{sQ}, s{sQ}, s48
s_sub_u32 s55, s55, s{sQ}
s_mul_i32 s42, s{sW}, 3072
s_mul_i32 s43, s{sG}, 12288
s_add_u32 s42, s42, s43
s_mul_i32 s43, s49, 1536
s_add_u32 s42, s42, s43
s_add_u32 s43, s42, s48
s_lshr_b32 s48, s48, 1
s_add_u32 s44, s42, s48
s_add_u32 s44, s44, 1024
s_lshr_b32 s45, s{sM}, 2""")
    make_srd(e, SRD_X, P_WS, None, WS_QB, WS_SIZE)
    e(rn_setup(254, 255, True))
    def kv_loads(reg, base):
        if NOKV & (1 if reg == KX else 2): return ["s_nop 0"] * 8
        return [f"global_load_dwordx4 v[{reg+4*x}:{reg+4*x+3}], v{20 if x < 4 else 19}, s[{base}:{base+1}] offset:{(x%4)*1024} {LF[KVF]}" for x in range(8)]
    def q_loads():
        L = [f"buffer_load_dwordx4 v[{O+4*x}:{O+4*x+3}], v20, s[{SRD_X}:{SRD_X+3}], s{sQ} offen offset:{x*1024} {LF[KVF]}" for x in range(4)]
        return ("s_mov_b64 exec, s[52:53]\n" if QONE else "s_not_b64 exec, s[40:41]\n") + "\n".join(L) + f"\ns_mov_b64 exec, -1\ns_add_u32 s{sQ}, s{sQ}, {KVSTEP}"
    def first_loads():
        for l in kv_loads(VX, sV): e(l)
        for l in kv_loads(KX, sK): e(l)
        e(q_loads())
    e(f"""v_add_u32 v19, 4096, v20
s_cmp_eq_u32 s45, s{sW}
s_cselect_b32 s52, 0x00ff00ff, 0
s_mov_b32 s53, s52""")
    wait_start(29 if EKV else None)
    e("s_barrier")
    if EKV: first_loads()
    e(f"""s_mul_i32 s48, s{sW}, 2560
s_add_u32 s48, s48, {R2+128}
v_mov_b32 v12, s48
v_mov_b32 v14, 0x3e800000
v_mov_b32 v15, 0
ds_write_b64 v12, v[14:15]""")
    if not EKV: kv_wait(e, Lfail, 0)
    e(f"""s_waitcnt lgkmcnt(0)
s_barrier
s_setprio 2
v_mov_b32 v14, s{sC}
v_cmp_gt_u32 vcc, 32, v0
v_cndmask_b32 v14, v14, 1.0, vcc
v_and_b32 v15, 15, v0
s_lshl_b32 s48, s{sW}, 2
s_add_u32 s48, s48, {RL}
v_lshl_add_u32 v15, v15, 4, s48
v_mov_b32 v16, 0
ds_write_b32 v15, v16 offset:256
ds_write_b32 v15, v16 offset:272
v_mov_b32 v16, 1
v_add_u32 v18, 4096, v1
s_or_b64 vcc, s[52:53], s[40:41]
v_mov_b32 v17, 0x3c000000
v_cndmask_b32 v17, -1, v17, vcc
s_mov_b32 s46, 0x21800000""")
    def yacc(ct, tt): return T + (ct * 2 + tt) * 4
    def yx_mf():
        return [f"v_mfma_f32_16x16x32_bf16 v[{yacc(ct,tt)}:{yacc(ct,tt)+3}], v[{VX+(tt*4+ks)*4}:{VX+(tt*4+ks)*4+3}], v[{WO+(ct*4+ks)*4}:{WO+(ct*4+ks)*4+3}], " + ("0" if ks == 0 else f"v[{yacc(ct,tt)}:{yacc(ct,tt)+3}]")
                for ks in range(4) for tt in range(2) for ct in range(4)]
    def yx_cvt():
        return [f"v_cvt_pk_bf16_f32 v{YX+ct*4+x}, v{yacc(ct,0)+2*x}, v{yacc(ct,0)+2*x+1}" for ct in range(4) for x in range(4)] + [f"v_mov_b64 v[{YM+r}:{YM+r+1}], 0" for r in range(0, 16, 2)]
    def mask_init():
        m = ["vcc", "s[48:49]", "s[50:51]", "s[54:55]"]
        return [x for h in range(2) for x in [f"v_cmp_gt_i32 {m[r]}, {r + 16*h}, v{DQ}" for r in range(4)] + [f"v_cndmask_b32 v{S0+4*h+r}, 0, v{NEG}, {m[r]}" for r in range(4)]]
    kvadv = f"""s_add_u32 s{sV}, s{sV}, {KVSTEP}
s_addc_u32 s{sV+1}, s{sV+1}, 0
s_add_u32 s{sK}, s{sK}, {KVSTEP}
s_addc_u32 s{sK+1}, s{sK+1}, 0"""
    E = T
    def xpart(ld):
        Lp, Lv = e.label("Lxp"), e.label("Lv")
        e(f"s_cmp_eq_u32 s45, s{sW}\ns_cbranch_scc1 {Lp}")
        def pst(f): return f"""buffer_store_dwordx4 v[{PX}:{PX+3}], v12, s[{SRD_X}:{SRD_X+3}], s48 offen {f}
buffer_store_dwordx2 v[{PM}:{PM+1}], v13, s[{SRD_X}:{SRD_X+3}], s48 offen {f}
buffer_store_dwordx4 v[{SM}:{SM+3}], v12, s[{SRD_X}:{SRD_X+3}], s49 offen {f}
buffer_store_dwordx2 v[{SM}:{SM+1}], v13, s[{SRD_X}:{SRD_X+3}], s49 offen {f}
s_mov_b64 exec, -1
{f's_cmp_lg_u32 s{sStep}, 63' if PBL else ''}
{f's_cbranch_scc1 {Lv}_t' if PBL else ''}
s_branch {Lv}"""
        tail.append(f"""{Lp}:
""" + "\n".join(f"v_mul_f32 v{r}, v{r}, v{LS+1}" for r in list(range(E + 8, E + 12)) + list(range(E, E + 8))) + f"""
v_cvt_pk_bf16_f32 v{PM}, v{E+8}, v{E+9}
v_cvt_pk_bf16_f32 v{PM+1}, v{E+10}, v{E+11}
v_cvt_pk_bf16_f32 v{PX}, v{E}, v{E+1}
v_mov_b32 v{PM+2}, v{PM}
v_mov_b32 v{PM+3}, v{PM+1}
v_cvt_pk_bf16_f32 v{PX+1}, v{E+2}, v{E+3}
v_cvt_pk_bf16_f32 v{PX+2}, v{E+4}, v{E+5}
v_permlane32_swap_b32 v{PM}, v{PM+2}
v_permlane32_swap_b32 v{PM+1}, v{PM+3}
v_cvt_pk_bf16_f32 v{PX+3}, v{E+6}, v{E+7}
{f's_cmp_lg_u32 s{sStep}, 63' if PBL else ''}
{f's_cbranch_scc1 {Lv}' if PBL else ''}
{Lp}_t:
v_lshl_add_u32 v12, v0, 4, s43
v_lshl_add_u32 v13, v0, 3, s44
s_and_b32 s48, s{sStep}, 3
s_mul_i32 s48, s48, {PR_SLOT}
s_add_u32 s48, s48, {WS_PR}
s_add_u32 s49, s{sStep}, 1
s_and_b32 s49, s49, 3
s_mul_i32 s49, s49, {PR_SLOT}
s_add_u32 s49, s49, {WS_PR}
v_mov_b64 v[{SM}:{SM+1}], -1
v_mov_b64 v[{SM+2}:{SM+3}], -1
s_not_b64 exec, s[40:41]
s_cmp_lg_u32 s{sMode}, 0
s_cbranch_scc1 {Lp}_s
{pst('')}
{Lp}_s:
{pst('sc1')}""")
        e(f"{Lv}:")
        if XT == 1: tr(e, 0)
        ld = list(ld)
        dump = [f"ds_write_b128 v21, v[{YX+4*x}:{YX+4*x+3}] offset:{(x//2)*3072 + (x%2)*1024}" for x in range(4)] + [f"ds_write_b128 v21, v[{YM+4*x}:{YM+4*x+3}] offset:{2048+3072*x}" for x in range(2)]
        e(f"s_cmp_eq_u32 s{sStep}, 63\ns_cbranch_scc1 {L2x}")
        tail.append(f"{L2x}:\n" + "\n".join(dump) + f"\ns_waitcnt lgkmcnt(0)\ns_barrier\ns_setprio 0\ns_branch {L_done}")
        if KVE == 1: kv_wait(e, Lfail, 1)
        v = kv_loads(VX, sV)
        vv = [(8 * ks + 4 * tt + 3, v[tt * 4 + ks]) for ks in range(4) for tt in range(2)]
        ld = [(0, l) for l in ld] + vv[:8 - VLATE]
        yc = yx_cvt()
        for i, m in enumerate(yx_mf() + yc[16:] + yc[:16] + mask_init()):
            e(m)
            if i >= KLATE and (i - KLATE) % (XLD if i < 32 else 3 * XLD) == 0 and ld and ld[0][0] <= i: e(ld.pop(0)[1])
            if i >= DUMP0 and (i - DUMP0) % DUMPS == 0 and dump: assert i < 32; e(dump.pop(0))
            if XT == 1 and i == 31: tr(e, 1)
            if KVE > 1 and i == KVE: assert not ld; kv_wait(e, Lfail, 1)
        for l in ld: e(l[1])
        if KVE == 0: kv_wait(e, Lfail, 1)
        kv_wait(e, Lfail, 2)
        if XT == 1: tr(e, 2)
        if not VLATE: e("s_waitcnt lgkmcnt(0)")
        if VLATE:
            Lf = e.label("Lfl")
            e(f"""v_and_b32 v12, 3, v0
v_lshlrev_b32 v12, 2, v12
{Lf}:
{f's_sleep {VSL}' if VSL else ''}
ds_read_b32 v13, v12 offset:{FL}
s_add_u32 s{sSpin}, s{sSpin}, 1
s_cmp_gt_u32 s{sSpin}, {SPIN_MAX}
s_cbranch_scc1 {Lfail}
s_waitcnt lgkmcnt(0)
v_cmp_eq_u32 vcc, s{sStep}, v13
s_cbranch_vccnz {Lf}""")
            if PBL: e(f"s_cmp_eq_u32 s45, s{sW}\ns_cbranch_scc1 {Lp}_t\n{Lv}_t:")
            if QL: e(q_loads())
            for l in vv[8 - VLATE:]: e(l[1])
        e("v_add_u32 v16, 1, v16")
        e(kvadv)
        e(f"v_xor_b32 v21, {YD ^ YD2}, v21")
    if common.DIAG: e("s_mov_b32 s83, 0")
    if not EKV: first_loads()
    e("s_waitcnt vmcnt(12) lgkmcnt(0)")
    for x in yx_mf() + yx_cvt() + mask_init(): e(x)
    e(kvadv)
    for l in kv_loads(VX, sV): e(l)
    e(f"s_add_u32 s{sV}, s{sV}, {KVSTEP}\ns_addc_u32 s{sV+1}, s{sV+1}, 0")
    stamp(e, 8, True)
    L2, LpB, L2x = e.label("L2"), e.label("LpB"), e.label("L2x")
    aln(e, AL2)
    e(f"{L2}:\ns_barrier")
    tr(e, 0)
    reduce4(e, 4, 5, 18, T, 14)
    publish_B(e, tail, T)
    tr(e, 1)
    if SPLIT: e("s_barrier")
    if DELAY_B >= 0:
        for _ in range(DELAY_B): e("s_nop 7")
    elif ACK_B:
        if AL4 >= 0: e(".p2align 5" + "\ns_nop 0" * AL4)
        e("s_waitcnt vmcnt(0)")
    tr(e, 2)
    e(f"{LpB}:")
    tr(e, 7)
    pieces = [(T + 4 * ks, 1, 1024 * ks) for ks in range(4)] + [(VV + 4 * u, 18, 1024 * u) for u in range(2)]
    ldB = [f"global_load_dwordx4 v[{r}:{r+3}], v{a}, s[{sB}:{sB+1}] offset:{o} sc1" for r, a, o in pieces]
    if LATE_V:
        for l in ldB[:4]: e(l)
        e("s_waitcnt vmcnt(3)" if LATE_V == 1 else f"s_sleep {LATE_V - 1}")
        for l in ldB[4:]: e(l)
    else:
        for l in ldB: e(l)
    if AL5 >= 0: e(".p2align 5" + "\ns_nop 0" * AL5)
    def chk(i, mid=""):
        e(f"{LpB}_c{i}:\ns_waitcnt vmcnt({5-i})\nv_cmp_eq_u32 vcc, -1, v{pieces[i][0]+3}\n{mid}\ns_cbranch_vccnz {LpB}_r{i}")
        if RSEL:
            rl = [f"s_mov_b64 exec, vcc\n{ldB[i]}\ns_waitcnt vmcnt(1)"] + [f"s_mov_b64 exec, -1\nv_cmpx_eq_u32 vcc, -1, v{pieces[j][0]+3}\n{ldB[j]}" for j in range(i + 1, 6)] + ["s_mov_b64 exec, -1"]
        else: rl = ldB[i:]
        tail.append((".p2align 5" + "\ns_nop 0" * ALR + "\n" if ALR >= 0 else "") + f"{LpB}_r{i}:\n" + "\n".join(rl) + f"\ns_add_u32 s{sSpin}, s{sSpin}, 1\ns_cmp_gt_u32 s{sSpin}, {SPIN_MAX}\ns_cbranch_scc1 {Lfail}\ns_branch {LpB}_c{i}")
    def sc(i):
        return [f"v_mfma_f32_16x16x32_bf16 v[{a}:{a+3}], v[{kreg}:{kreg+3}], v[{O+4*i}:{O+4*i+3}], " + ("0" if i == 0 and a == SM else f"v[{a}:{a+3}]")
                for (a, kreg) in ((S0, KX + i * 4), (S1_, KX + (4 + i) * 4), (SM, T + 4 * i))]
    cn = lambda i: [f"v_cndmask_b32 v{O+4*i+r}, v{O+4*i+r}, v{T+4*i+r}, s[40:41]" for r in range(4)]
    if BPIPE:
        chk(0, "\n".join(cn(0)))
        for i in range(4):
            m = sc(i)
            e(m[0])
            if i < 3:
                c = cn(i + 1)
                chk(i + 1, c[0]); e(m[1]); e(c[1]); e(c[2]); e(c[3]); e(m[2])
            else:
                e(m[1]); e(m[2])
    else:
        for i in range(4):
            chk(i, "\n".join(cn(i)))
            for m in sc(i): e(m)
    tr(e, 3)
    ym = [f"v_smfmac_f32_16x16x64_bf16 v[{YM+4*ct}:{YM+4*ct+3}], v[{VV+4*u}:{VV+4*u+3}], v[{WO+(ct*4+2*u)*4}:{WO+(ct*4+2*u)*4+7}], v2" for u in range(2) for ct in range(4)]
    vl = kv_loads(KX, sK)[:KEARLY]
    def V():
        if vl: e(vl.pop(0))
    ex = [f"v_exp_f32 v{E+i}, v{S0+i}" for i in range(12)]
    cp = [f"v_cvt_pk_bf16_f32 v{PX+x}, v{E+2*x}, v{E+2*x+1}" for x in range(6)]
    dup = [f"v_mov_b32 v{PM+2}, v{PM}", f"v_mov_b32 v{PM+3}, v{PM+1}", f"v_permlane32_swap_b32 v{PM}, v{PM+2}", f"v_permlane32_swap_b32 v{PM+1}, v{PM+3}"]
    cy = [f"v_cvt_pk_bf16_f32 v{YM+x}, v{YM+2*x}, v{YM+2*x+1}" for x in range(8)]
    ox = [f"v_mfma_f32_16x16x32_bf16 v[{O+4*ct}:{O+4*ct+3}], v[{PX}:{PX+3}], v[{YX+4*ct}:{YX+4*ct+3}], 0" for ct in range(4)]
    om = [f"v_mfma_f32_16x16x16_bf16 v[{O+4*ct}:{O+4*ct+3}], v[{PM}:{PM+1}], v[{YM+2*ct}:{YM+2*ct+1}], v[{O+4*ct}:{O+4*ct+3}]" for ct in range(4)]
    lx = f"v_mfma_f32_16x16x32_bf16 v[{LS}:{LS+3}], v[{ON32}:{ON32+3}], v[{PX}:{PX+3}], 0"
    lm = f"v_mfma_f32_16x16x16_bf16 v[{LS}:{LS+3}], v[{ON16}:{ON16+1}], v[{PM}:{PM+1}], v[{LS}:{LS+3}]"
    wr = [f"ds_write_b128 v3, v[{O+4*ct}:{O+4*ct+3}] offset:{ct*640}" for ct in range(4)]
    Lfb = e.label("Lfb")
    if VORD == 0:
        chk(4)
        e(ym[0]); e(ym[1]); e(ex[0]); e(ym[2]); e(ex[1]); e(ym[3]); e(ex[2])
        chk(5, ex[3])
        seq = [ym[4], ex[4], ym[5], ex[5], ym[6], ex[6], ym[7], ex[7], cp[0], cp[1], cp[2], cp[3], ex[8],
               ox[0], ex[9], ox[1], ex[10], ox[2], ex[11], ox[3], cp[4], cp[5],
               lx, dup[0], dup[1], cy[0], cy[1], dup[2], dup[3], cy[2], cy[3],
               om[0], cy[4], cy[5], lm, cy[6], cy[7], om[1], om[2], om[3]]
    else:
        for x in ex[:8] + cp[:4]: e(x)
        chk(4, ex[8])
        e(ym[0]); e(ex[9]); e(ym[1]); e(ex[10]); e(ym[2]); e(ex[11]); e(ym[3])
        chk(5, cp[4])
        seq = [ym[4], cp[5], ym[5], dup[0], dup[1], ym[6], ym[7], dup[2], dup[3], lx, ox[0], ox[1], cy[0], cy[1], ox[2], cy[2], cy[3], ox[3], cy[4], cy[5],
               lm, cy[6], cy[7], om[0], om[1], om[2], om[3]]
    for i, x in enumerate(seq):
        e(x)
        if KPOS >> i & 1: V()
        if SFLAG == i + 1: e("ds_write_b32 v15, v16 offset:256")
        if RLATE == i + 1: reset_B(e, tail)
    if True:
        e(f"v_rcp_f32 v{LS+1}, v{LS}\ns_mov_b32 exec_lo, 0")
        for x in wr: e(x)
        e(f"""s_mov_b32 exec_lo, -1
ds_write_b32 v15, v{LS+1}
v_subrev_u32 v10, s46, v{LS}
v_cmp_lt_u32 vcc, v17, v10""")
    while vl: V()
    e(f"s_cbranch_vccn{'z' if not FORCE_FB else 'z'} {Lfb}" if not FORCE_FB else f"s_branch {Lfb}")
    e(f"{Lfb}_b:")
    fb = [f"""{Lfb}:
v_max3_f32 v12, v{S0}, v{S0+1}, v{S0+2}
v_max3_f32 v13, v{S0+3}, v{S1_}, v{S1_+1}
v_max3_f32 v12, v{S1_+2}, v{S1_+3}, v12
v_max_f32 v12, v12, v13
s_mov_b32 exec_hi, 0
v_max3_f32 v12, v{SM}, v{SM+1}, v12
v_max3_f32 v12, v{SM+2}, v{SM+3}, v12
s_mov_b32 exec_hi, -1
v_mov_b32 v13, v12
v_permlane16_swap_b32 v12, v13
v_max_f32 v12, v12, v13
v_mov_b32 v13, v12
v_permlane32_swap_b32 v12, v13
v_max_f32 v12, v12, v13"""]
    fb += [f"v_sub_f32 v{S0+i}, v{S0+i}, v12" for i in range(12)] + ex + cp + dup + [lx] + ox + [lm] + om
    fb += [f"v_rcp_f32 v{LS+1}, v{LS}\ns_mov_b32 exec_lo, 0"] + wr + [f"s_mov_b32 exec_lo, -1\nds_write_b32 v15, v{LS+1}\ns_branch {Lfb}_b"]
    tail.append("\n".join(fb))
    tr(e, 4)
    e(f"s_waitcnt {f'vmcnt({KEARLY}) ' if RLATE else ''}lgkmcnt(0)\ns_barrier")
    tr(e, 5)
    Lna = e.label("Lna")
    e(f"s_cmp_lg_u32 s{S_WAVE}, 4\ns_cbranch_scc1 {Lna}")
    if G5: e("s_mov_b64 exec, 0xffff")
    reduce4n(e, 254, 255, VV, S0)
    e(f"global_atomic_pk_add_bf16 v9, v{VV}, s[{sACCN}:{sACCN+1}]\n{'s_mov_b64 exec, -1' if G5 else ''}\n{Lna}:")
    xpart(kv_loads(KX, sK)[KEARLY:] + ([] if QL else [q_loads()]))
    tr(e, 6)
    tr_out(e)
    advance(e)
    e(f"s_branch {L2}")
    aln(e, ALT)
    for t in tail: e(t)
    e(f"""{Lfail}:
s_mov_b64 exec, -1
v_mov_b32 v12, 0
v_mov_b32 v13, 1
global_store_dword v12, v13, s[{P_DBG}:{P_DBG+1}] offset:{DBG_FAIL}
s_endpgm""")

import struct
def f32bits(x): return struct.unpack("<I", struct.pack("<f", x))[0]
```

```python
import re

class Emit:
    def __init__(self):
        self.lines = []
        self.nlab = 0
    def __call__(self, s):
        for ln in s.split("\n"):
            ln = ln.strip()
            if ln:
                self.lines.append(ln)
    def label(self, base="L"):
        self.nlab += 1
        return f"{base}_{self.nlab}"
    def text(self):
        return "\n".join(self.lines) + "\n"

_REG = re.compile(r"^(-?)(?:abs\()?\|?([vas])(?:(\d+)|\[(\d+):(\d+)\])\|?\)?$")
def regs_of(tok):
    tok = tok.strip()
    if tok == "vcc": return {("s", 106), ("s", 107)}
    if tok == "vcc_lo": return {("s", 106)}
    if tok == "vcc_hi": return {("s", 107)}
    if tok == "exec": return {("s", 126), ("s", 127)}
    if tok == "m0": return {("s", 124)}
    m = _REG.match(tok)
    if not m: return set()
    k = m.group(2)
    if m.group(3) is not None: return {(k, int(m.group(3)))}
    return {(k, i) for i in range(int(m.group(4)), int(m.group(5)) + 1)}

TRANS = ("v_exp_f32", "v_log_f32", "v_rcp_f32", "v_rsq_f32", "v_sqrt_f32", "v_sin_f32", "v_cos_f32", "v_rcp_iflag_f32")

def split_ops(rest):
    ops = []; cur = ""; d = 0
    for ch in rest:
        if ch in "[(": d += 1
        if ch in "])": d -= 1
        if ch == "," and d == 0:
            ops.append(cur.strip()); cur = ""
        else: cur += ch
    if cur.strip(): ops.append(cur.strip())
    mods = []
    if ops:
        parts = ops[-1].split()
        ops[-1] = parts[0]; mods = parts[1:]
    return ops, mods

class Ins:
    __slots__ = ("op", "kind", "wr", "rd", "passes", "srcc", "srcab", "states", "stdata", "lds", "dpp", "text")

def mfma_passes(op):
    if "32x32x16" in op or "32x32x8" in op or "smfmac_f32_32x32x32" in op: return 8
    if "16x16x32" in op or "16x16x16" in op or "smfmac_f32_16x16x64" in op: return 4
    if "4x4x4" in op: return 2
    raise ValueError(op)

def parse(ln):
    i = Ins(); i.text = ln
    code = ln.split(";")[0].strip()
    i.states = 1; i.wr = set(); i.rd = set(); i.passes = 0; i.srcc = set(); i.srcab = set(); i.stdata = set(); i.lds = False; i.dpp = False
    if not code or code.endswith(":") or code.startswith("."):
        i.op = None; i.kind = "label" if code.endswith(":") else "dir"; i.states = 0
        return i
    parts = code.split(None, 1)
    op = parts[0]; rest = parts[1] if len(parts) > 1 else ""
    for suf in ("_e32", "_e64", "_dpp", "_sdwa"):
        if op.endswith(suf):
            if suf == "_dpp": i.dpp = True
            op = op[:-len(suf)]
    i.op = op
    ops, mods = split_ops(rest)
    if any(m.startswith(("row_", "quad_perm", "wave_")) for m in mods): i.dpp = True
    R = [regs_of(o) for o in ops]
    if op == "s_nop":
        i.kind = "salu"; i.states = int(ops[0], 0) + 1; return i
    if op.startswith("v_mfma") or op.startswith("v_smfmac"):
        i.kind = "mfma"; i.passes = mfma_passes(op)
        i.wr = set(R[0])
        if op.startswith("v_smfmac"):
            i.srcc = set(R[0]); i.srcab = R[1] | R[2] | R[3]
        else:
            i.srcc = set(R[3]); i.srcab = R[1] | R[2]
        i.rd = i.srcc | i.srcab
        return i
    if op.startswith("v_"):
        i.kind = "valu"
        if op.startswith("v_cmpx"):
            i.wr = R[0] | regs_of("exec"); i.rd = set().union(*R[1:])
        elif op.startswith("v_permlane") and "swap" in op:
            i.wr = R[0] | R[1]; i.rd = R[0] | R[1]
        elif op in ("v_add_co_u32", "v_sub_co_u32", "v_addc_co_u32", "v_subb_co_u32", "v_subrev_co_u32", "v_div_scale_f32", "v_mad_u64_u32"):
            i.wr = R[0] | R[1]; i.rd = set().union(*R[2:])
        elif op == "v_nop":
            pass
        else:
            i.wr = set(R[0]); i.rd = set().union(*R[1:]) if len(R) > 1 else set()
            if op in ("v_fmac_f32", "v_dot2c_f32_bf16", "v_writelane_b32") or i.dpp: i.rd |= R[0]
            if op == "v_cndmask_b32" and len(R) == 3: i.rd |= regs_of("vcc")
        return i
    if op.startswith(("buffer_", "global_", "flat_", "scratch_")):
        i.kind = "vmem"
        if op in ("buffer_inv", "buffer_wbl2"): return i
        islds = ("lds" in mods) or ("_lds_" in op)
        i.lds = islds
        if "load" in op and not islds:
            i.wr = set(R[0]); i.rd = set().union(*R[1:])
        elif islds:
            i.rd = set().union(*R) | regs_of("m0")
        elif "atomic" in op:
            ret = "sc0" in mods
            if op.startswith("global_") and ret:
                i.wr = set(R[0]); i.rd = set().union(*R[1:])
            else:
                i.rd = set().union(*R)
                if ret: i.wr = set(R[0])
        else:
            i.rd = set().union(*R)
            data = R[0] if op.startswith("buffer_") else R[1]
            if "x3" in op or "x4" in op: i.stdata = set(data)
        return i
    if op.startswith("ds_"):
        i.kind = "ds"
        if "read" in op or "permute" in op or "swizzle" in op or "_rtn" in op:
            i.wr = set(R[0]); i.rd = set().union(*R[1:])
        else:
            i.rd = set().union(*R)
        return i
    if op.startswith("s_"):
        i.kind = "salu"
        if op.startswith(("s_load", "s_buffer_load", "s_memtime", "s_memrealtime")):
            i.kind = "smem"; i.wr = set(R[0]); i.rd = set().union(*R[1:]) if len(R) > 1 else set()
        elif op.startswith(("s_cmp", "s_bitcmp", "s_cbranch", "s_branch", "s_waitcnt", "s_barrier", "s_endpgm", "s_sleep", "s_setprio", "s_setpc")):
            i.rd = set().union(*R) if R else set()
        else:
            i.wr = set(R[0]) if R else set(); i.rd = set().union(*R[1:]) if len(R) > 1 else set()
            if "saveexec" in op: i.wr |= regs_of("exec")
        return i
    raise ValueError("unknown instruction: " + ln)

D2AB = {2: 5, 4: 8, 8: 12, 16: 20}
D2C_OV = {2: 4, 4: 6, 8: 10, 16: 18}
C_WAR = {2: 1, 4: 3, 8: 7, 16: 15}
def isv(r): return r[0] in "va"
def need(p, c):
    n = 0
    if p.kind == "valu":
        vw = {r for r in p.wr if isv(r)}; sw = {r for r in p.wr if r[0] == "s"}
        if c.kind == "mfma" and vw & c.rd: n = max(n, 2)
        if c.kind == "valu":
            if c.op.startswith("v_permlane") and vw & c.rd: n = max(n, 2)
            if c.dpp and vw & c.rd: n = max(n, 2)
            if c.op in ("v_readlane_b32", "v_readfirstlane_b32") and vw & c.rd: n = max(n, 1)
            if p.op in TRANS and vw & c.rd and c.op not in TRANS: n = max(n, 1)
            if p.op in TRANS and vw & c.rd: n = max(n, 1)
            if sw & c.rd:
                n = max(n, 4 if c.op in ("v_readlane_b32", "v_writelane_b32") else 2)
            if ("s", 126) in sw:
                if c.dpp: n = max(n, 5)
                if c.op in ("v_readlane_b32", "v_readfirstlane_b32", "v_writelane_b32") or c.op.startswith("v_permlane"): n = max(n, 4)
        if c.kind == "mfma" and ("s", 126) in sw: n = max(n, 4)
        if c.kind == "vmem" and sw & c.rd: n = max(n, 5)
        if c.kind in ("salu",) and sw & c.rd: n = max(n, 1)
    if p.kind == "salu":
        if ("s", 124) in p.wr and c.kind == "vmem" and c.lds: n = max(n, 1)
    if p.kind == "vmem" and p.stdata:
        if c.kind in ("valu", "mfma") and p.stdata & c.wr: n = max(n, 2)
        elif p.stdata & c.wr: n = max(n, 1)
    if p.kind == "mfma":
        if c.kind == "mfma":
            if p.wr & c.srcab: n = max(n, D2AB[p.passes])
            if p.wr & c.srcc:
                if p.wr == c.srcc and p.op == c.op: n = max(n, 2 if p.passes == 2 else 0)
                else: n = max(n, D2C_OV[p.passes])
            elif p.wr & c.wr: n = max(n, D2C_OV[p.passes])
        elif c.kind in ("valu", "vmem", "ds"):
            if p.wr & (c.rd | c.wr): n = max(n, D2AB[p.passes])
            if c.kind == "valu" and p.srcc & c.wr: n = max(n, C_WAR[p.passes])
    return n

def fix_hazards(lines, window=24, verbose=False):
    ins = [parse(l) for l in lines]
    out = []
    added = 0
    def required(hist, c):
        req = 0; dist = 0
        for p in reversed(hist):
            if p.op is None: continue
            if dist >= window: break
            r = need(p, c) - dist
            if r > req: req = r
            dist += p.states
        return req
    for c in ins:
        if c.op is not None:
            hist = []
            for p in reversed(out):
                if p.op in ("s_branch", "s_endpgm", "s_setpc_b64"): break
                hist.append(p)
                if len(hist) > 64: break
            hist.reverse()
            r = required(hist, c)
            while r > 0:
                k = min(r, 16)
                out.append(parse(f"s_nop {k-1}")); added += 1; r -= k
        out.append(c)
    labels = {p.text.split(";")[0].strip()[:-1]: i for i, p in enumerate(out) if p.kind == "label"}
    problems = []
    for i, b in enumerate(out):
        if b.op and (b.op.startswith("s_cbranch") or b.op == "s_branch"):
            tgt = b.text.split(";")[0].split()[1]
            if tgt not in labels: continue
            hist = [p for p in out[max(0, i - 64):i + 1]]
            j = labels[tgt]; dist = 0
            while j < len(out) and dist < window:
                c = out[j]
                if c.op is not None:
                    r = required(hist, c)
                    if r > 0: problems.append((b.text, c.text, r))
                    hist = hist + [c]
                    dist += c.states
                    if c.op in ("s_branch", "s_endpgm"): break
                j += 1
    if problems:
        for p in problems: print("HAZARD across branch:", p)
        raise SystemExit("fix branch-edge hazards by hand")
    if verbose: print("inserted", added, "s_nop")
    return [p.text for p in out]

import subprocess, re, os
LLVM = "bin/"
def _sizes(lines, tag):
    src = ['.amdgcn_target "amdgcn-amd-amdhsa--gfx950"', ".text"]
    for i, l in enumerate(lines): src += [f"Q{i}:", l]
    src.append(f"Q{len(lines)}:")
    open(f"/tmp/{tag}.s", "w").write("\n".join(src) + "\n")
    r = subprocess.run([LLVM + "clang", "-x", "assembler", "-target", "amdgcn-amd-amdhsa", "-mcpu=gfx950", "-c", f"/tmp/{tag}.s", "-o", f"/tmp/{tag}.o"], capture_output=True, text=True)
    return r
def wide(l):
    m = l.split(None, 1)
    return m[0] + "_e64 " + m[1]
def align8(lines, nopmin=3, lo=None, hi=None):
    lines = [x.strip() for l in lines for x in l.split("\n") if x.strip()]
    r = _sizes(lines, "a8"); assert r.returncode == 0, r.stderr[:2000]
    ad = {}
    for x in subprocess.run([LLVM + "llvm-objdump", "-t", "a8.o"], capture_output=True, text=True).stdout.split("\n"):
        p = x.split()
        if len(p) > 3 and re.fullmatch(r"Q\d+", p[-1]): ad[int(p[-1][1:])] = int(p[0], 16)
    sz = [ad[i + 1] - ad[i] for i in range(len(lines))]
    cand = sorted({l for l, s in zip(lines, sz) if s == 4 and l.startswith("v_") and not l.startswith(("v_readfirstlane", "v_nop", "v_permlane", "v_accvgpr"))})
    r = _sizes([wide(l) for l in cand], "a8c")
    bad = {(int(m) - 4) // 2 for m in re.findall(r"a8c\.s:(\d+):\d+: error", r.stderr)}
    ok = {l for i, l in enumerate(cand) if i not in bad}
    out = []; pp = {}; par = 0; run = []; on = lo is None; nw = nn = nm = 0
    for i, l in enumerate(lines):
        if lo and l.startswith(lo): on = True
        if hi and l.startswith(hi): on = False
        if l.startswith(".p2align"): out.append(l); par = 0; run = []; continue
        s = sz[i]
        if s == 0: out.append(l); continue
        if l.startswith("."): out.append(l); par = (par + s) % 8; run = []; continue
        if s == 4: run.append(len(out)); pp[len(out)] = par; out.append(l); par ^= 4; continue
        assert s == 8, l
        if par and on:
            c = [j for j in run if out[j] in ok]
            c = [j for j in c if not pp[j]] or c
            if c: out[c[-1]] = wide(out[c[-1]]); par = 0; nw += 1
            else:
                n = 0
                for j in range(i, len(lines)):
                    if sz[j] == 4 or lines[j].startswith("."): break
                    n += sz[j] == 8
                if n >= nopmin and run:
                    w = [j for j in run if out[j].startswith(("s_waitcnt", "s_barrier"))]
                    out.insert(w[0] if w else len(out), "s_nop 0"); par = 0; nn += 1
                else: nm += 1
        out.append(l); run = []
    print(f"align8: widened {nw} padded {nn} left {nm}")
    return out
```

```python
import common
from common import *
from jobs import *
import chain as ch
from chain import chain

C_KV = 128
C_KVA = 68
C_FIN = 72
C_OA = 192
MAP = 1
FINE = 0
SPIN = 79

def signal(e, off, s_idx=None, val=1):
    L = e.label("Lsig")
    e(f"s_waitcnt vmcnt(0)\ns_barrier\ns_cmp_lg_u32 s{S_WAVE}, 0\ns_cbranch_scc1 {L}")
    if s_idx is None: e("v_mov_b32 v2, 0")
    else: e(f"s_lshl_b32 s48, s{s_idx}, 2\nv_mov_b32 v2, s48")
    e(f"""v_mov_b32 v3, {val}
s_mov_b64 exec, 1
global_atomic_add v2, v3, s[{P_DBG}:{P_DBG+1}] offset:{off}
s_mov_b64 exec, -1
{L}:""")

def poll(e, Lfail, off, s_idx, target, shift=0, mask=None, spin=SPIN, t=2, slp=8):
    L = e.label("Lpoll")
    if s_idx is None: e(f"v_mov_b32 v{t}, 0")
    else: e(f"s_lshl_b32 s48, s{s_idx}, 2\nv_mov_b32 v{t}, s48")
    e(f"""{L}:
global_load_dword v{t+1}, v{t}, s[{P_DBG}:{P_DBG+1}] offset:{off} sc1
s_add_u32 s{spin}, s{spin}, 1
s_cmp_gt_u32 s{spin}, {ch.SPIN_MAX}
s_cbranch_scc1 {Lfail}
s_waitcnt vmcnt(0)
v_readfirstlane_b32 s48, v{t+1}""")
    if shift: e(f"s_lshr_b32 s48, s48, {shift}")
    if mask: e(f"s_and_b32 s48, s48, {mask}")
    Lok = e.label("Lok")
    e(f"s_cmp_ge_u32 s48, {target}\ns_cbranch_scc1 {Lok}\ns_sleep {slp}\ns_branch {L}\n{Lok}:")

def wait(e, Lfail, conds):
    L = e.label("Lwt")
    e(f"s_cmp_lg_u32 s{S_WAVE}, 0\ns_cbranch_scc1 {L}")
    for c in conds: poll(e, Lfail, *c)
    e(f"{L}:\ns_barrier")

KSL = 1
OUT128 = 1
AFIRST = 1
XPF = 2
AKVL = 0
USEFREE = 0
OLDC = 0
WPF = 3
EXP = 0
PSL = 20
def kv_wait(e, Lfail, phase):
    L = e.label("Lkvw")
    if phase == 0:
        e(f"s_cmp_lg_u32 s{S_WAVE}, 4\ns_cbranch_scc1 {L}\ns_mov_b32 s49, 0")
        poll(e, Lfail, C_KV, 49, 96, spin=ch.sSpin, t=12, slp=KSL)
    elif phase == 1:
        e(f"""s_add_u32 s63, s{ch.sStep}, {2 if ch.VLATE == 8 else 3}
s_and_b32 s63, s63, 63
s_and_b32 s48, s63, 3
s_cbranch_scc1 {L}
v_mov_b32 v10, s63
global_load_dword v10, v10, s[{P_DBG}:{P_DBG+1}] offset:{C_KV} sc1""")
    else:
        e(f"""s_and_b32 s48, s63, 3
s_cbranch_scc1 {L}
s_waitcnt vmcnt({20 - ch.KEARLY - ch.VLATE if ch.KVE == 1 else 0})
v_readfirstlane_b32 s48, v10
s_cmp_ge_u32 s48, 96
s_cbranch_scc1 {L}
s_lshr_b32 s49, s63, 2""")
        if common.DIAG: e("s_bitset1_b32 s83, s49")
        poll(e, Lfail, C_KV, 49, 96, spin=ch.sSpin, t=12, slp=4)
    e(f"{L}:")

def sig_hook(off, s_idx, val, n=1):
    def h(e):
        L = e.label("Lsig")
        e(f"""s_cmp_lg_u32 s{S_WAVE}, 0
s_cbranch_scc1 {L}
s_lshl_b32 s58, s{s_idx}, {1 + n}
v_lshl_add_u32 v{EA}, v0, 2, s58
v_mov_b32 v{EA+1}, {val}
s_mov_b64 exec, {2*n - 1}
global_atomic_add v{EA}, v{EA+1}, s[{P_DBG}:{P_DBG+1}] offset:{off}
s_mov_b64 exec, -1
{L}:""")
    return h

CODE_KB = 40
SCHED = 4
J_END, J_G128, J_G256, J_AKV, J_ATT, J_AOUT, J_G64, J_SENT, J_PF = range(9)
PFJ = 0
PF0 = 8
H2G = 8
def schedule():
    T = [[] for _ in range(128)]
    def g256(blocks):
        return [[(J_G256, b, 2 * (12 * xq + c)) for b in blocks for c in range(12)] for xq in range(4)]
    for xq in range(4):
        W = lambda j: T[xq * 32 + j]
        c0 = 24 * xq
        H1, H2 = list(range(16)), list(range(16, 32))
        ng = H2G
        if SCHED == 4:
            P1, P2, Ha, Hb = H1[:8], H1[8:], H2[:8], H2[8:]
            for r in range(2):
                for j in range(24): W(8 + j).append((J_G64, r, c0 + j))
            for j in H2: W(j).append((J_G64, 2 + (j & 1), c0 + 16 + (j - 16) // 2))
            for i, j in enumerate(P2 + Hb): W(j).append((J_SENT, 16 * xq + i, 0))
            for i in range(8):
                W(P1[i]).append((J_G256, 1, c0 + 2 * i)); W(P2[i]).append((J_G256, 2, c0 + 2 * i)); W(P1[i]).append((J_G256, 3, c0 + 2 * i))
                W(Hb[i]).append((J_G128, 2, c0 + 16 + i)); W(Hb[i]).append((J_G128, 3, c0 + 16 + i))
                W(Ha[i]).append((J_AKV, 16 * xq + i, 0)); W(Ha[i]).append((J_AKV, 16 * xq + 8 + i, 0))
            for k, t in enumerate(g256(range(4, 8))[xq]): W((P2 + P1)[k % 16]).append(t)
            for j, u in zip(H2 + H2, [(J_ATT, 4 * xq + m, n) for m in range(4) for n in range(8)]): W(j).append(u)
            if OUT128:
                for i in range(8):
                    for j, m in ((P2[i], 0), (P1[i], 1)): W(j).extend([(J_AOUT, 4 * xq + m, i), (J_END, 0, 1), (J_AOUT, 4 * xq + 3 - m, i), (J_END, 0, 2)])
            else:
                for j, u in zip(P2 + P1, [(J_AOUT, 4 * xq + m, n) for m in range(4) for n in range(4)]): W(j).append(u)
            continue
        if SCHED == 2:
            for r in range(2):
                for j in range(24): W(8 + j).append((J_G64, r, c0 + j))
            for j in range(8): W(j).append((J_G256, 1, c0 + 2 * j))
            for j in H2: W(j).append((J_G64, 2 + (j & 1), c0 + 16 + (j - 16) // 2))
            H1 = H1[8:] + H1[:8]
            sent = H1[:8] + H2[8:]
            rest = g256(range(2, 8))[xq]
        else:
            H1 = list(range(8)) + list(range(16, 24)); H2 = list(range(8, 16)) + list(range(24, 32))
            cols = [c for c in range(24) if c % 4 == 1] + [0, 23]
            for i, j in enumerate(H1): W(j).append((J_G64, i // 8, c0 + cols[i % 8]))
            for j, c in zip(H2, [c for c in range(24) if c not in cols]): W(j).append((J_G128, 0, c0 + c))
            sent = H1
            rest = g256(range(1, 8))[xq]
        if not AKVL:
            for i, j in enumerate(H2): W(j).append((J_AKV, 16 * xq + i, 0))
        for i, j in enumerate(sent): W(j).append((J_SENT, 16 * xq + i, 0))
        for j in H1 + H2[16 - ng:]: W(j).append(rest.pop(0))
        if AKVL:
            for i in range(16): W(H2[i % (16 - ng)]).append((J_AKV, 16 * xq + i, 0))
        k = 0
        while rest:
            W(H1[k % 16]).append(rest.pop(0)); k += 1
        free = H1[k % 16:] if k % 16 and USEFREE else []
        units = [(J_ATT, 4 * xq + m, n) for m in range(4) for n in range(8)]
        order = H2 + H2[:16 - len(free)] + free
        for j, u in zip(order, units): W(j).append(u)
        outs = [(J_AOUT, 4 * xq + m, n) for m in range(4) for n in range(4)]
        order = H2[16 - len(free):] + H1[::-1][len(free):]
        for j, u in zip(order, outs): W(j).append(u)
    if EXP == 3: T = [[x for x in jl if x[0] not in (J_ATT, J_AOUT)] for jl in T]
    return T

def k_fused(e):
    e("s_cmp_ge_u32 s2, 256\ns_cbranch_scc1 Lend")
    if AFIRST: ask_args(e)
    e("s_getpc_b64 s[48:49]\nLpc:")
    if CODE_KB:
        e("""v_lshlrev_b32 v2, 7, v0
v_min_u32 v2, Lend-Lpc, v2
global_load_dword v91, v2, s[48:49]""")
    e("""s_and_b32 s50, s2, 3
s_lshl_b32 s50, s50, 5
s_lshr_b32 s51, s2, 3
s_add_u32 s70, s50, s51
s_lshl_b32 s50, s70, 6
s_add_u32 s50, s50, Ltab-Lpc
v_and_b32 v2, 15, v0
v_lshl_add_u32 v2, v2, 2, s50
global_load_dword v90, v2, s[48:49]""")
    if not AFIRST: ask_args(e)
    load_args(e)
    e("""s_and_b32 s48, s2, 3
s_lshl_b32 s48, s48, 1
s_lshr_b32 s49, s2, 7
s_add_u32 s48, s48, s49
s_bfe_u32 s49, s2, 0x40003
s_lshl_b32 s49, s49, 3
s_add_u32 s35, s48, s49""")
    stamp(e, 0, True); stamp(e, 14)
    F = "Lwfail"
    e("s_bitcmp1_b32 s2, 2\ns_cbranch_scc1 Lworker")
    if EXP == 1: e("s_sleep 127\n" * 5)
    if OLDC:
        import chain4; chain4.chain(e, "Lchain_done", kv_wait, None)
    else: chain(e, "Lchain_done", kv_wait, None)
    e("Lchain_done:")
    e("s_waitcnt vmcnt(0)")
    stamp(e, 2, True); stamp(e, 15)
    if common.DIAG: e("s_mov_b32 s84, s65")
    stamps_out(e, 16)
    e("s_endpgm")
    W, J, TY = 70, 71, 76
    M = [72, 74]; N = [73, 75]
    def fetch(e):
        e(f"""v_readlane_b32 s{N[0]}, v1, s{J}
s_add_u32 s{J}, s{J}, 1
s_lshr_b32 s{TY}, s{N[0]}, 16
s_bfe_u32 s{M[0]}, s{N[0]}, 0x80008
s_and_b32 s{N[0]}, s{N[0]}, 255""")
    def jstamp(e, d=0):
        if common.DIAG: e(f"s_memrealtime s[98:99]\ns_add_u32 m0, s{J}, {16+d}\ns_waitcnt lgkmcnt(0)\nv_writelane_b32 v1, s98, m0")
    e(f"Lworker:\ns_add_u32 s35, s{W}, 128\ns_mov_b32 s{SPIN}, 0\ns_mov_b32 s{J}, 0\ns_waitcnt vmcnt(0)\nv_mov_b32 v1, v90")
    if XPF:
        e(f"s_and_b32 s48, s{W}, 31\ns_lshl_b32 s48, s48, 3\ns_add_u32 s48, s48, s{S_WAVE}\ns_lshl_b32 s48, s48, 10\nv_lshl_add_u32 v2, v0, 4, s48")
        for t in range(XPF): e(f"global_load_dwordx4 v[88:91], v2, s[{P_BX}:{P_BX+1}]\nv_add_u32 v2, 0x40000, v2")
    if WPF:
        e(f"""s_and_b32 s48, s{W}, 31
s_lshl_b32 s48, s48, 2
s_lshr_b32 s49, s{S_WAVE}, 1
s_add_u32 s48, s48, s49
s_lshl_b32 s48, s48, 16
v_lshrrev_b32 v2, 3, v0
v_lshlrev_b32 v2, 13, v2
v_and_b32 v3, 7, v0
v_lshl_add_u32 v2, v3, 4, v2
v_add_u32 v2, s48, v2
s_lshr_b32 s50, s{W}, 5
s_mul_i32 s50, s50, 6
s_and_b32 s49, s{S_WAVE}, 1
s_add_u32 s50, s50, s49""")
        for t in range(3):
            e(f"""s_lshr_b32 s53, s50, 3
s_and_b32 s54, s50, 7
s_lshl_b32 s54, s54, 10
s_cmp_eq_u32 s53, 1
s_cselect_b32 s56, s{P_BWK}, s{P_BWQ}
s_cselect_b32 s57, s{P_BWK+1}, s{P_BWQ+1}
s_cmp_eq_u32 s53, 2
s_cselect_b32 s56, s{P_BWV}, s56
s_cselect_b32 s57, s{P_BWV+1}, s57
s_add_u32 s56, s56, s54
s_addc_u32 s57, s57, 0
global_load_dwordx4 v[88:91], v2, s[56:57] offset:384""")
            if WPF == 2: e("global_load_dwordx4 v[88:91], v2, s[56:57] offset:896")
            if WPF == 3: e(f"s_cmp_lg_u32 s54, 7168\ns_cbranch_scc1 Lwpf{t}\nglobal_load_dwordx4 v[88:91], v2, s[56:57] offset:896\nLwpf{t}:")
            e("s_add_u32 s50, s50, 2")
    if EXP == 2: e("s_sleep 127\n" * 5)
    e("Lnext:")
    jstamp(e)
    fetch(e)
    e("Ldisp:")
    for t in (J_G128, J_G256, J_AKV, J_ATT, J_AOUT, J_SENT, J_END): e(f"s_cmp_eq_u32 s{TY}, {t}\ns_cbranch_scc1 Ljob{t}")
    for t, G, val, nc in ((J_G64, G64, 1, 1), (J_G128, G128, 1, 2), (J_G256, G256, 2, 2)):
        e(f"Ljob{t}:")
        js = QKV(G(), M[0], N[0])
        js.pre(e)
        def switch(e):
            L = e.label("Lsw")
            e(f"s_mov_b32 s{M[1]}, s{M[0]}\ns_mov_b32 s{N[1]}, s{N[0]}")
            fetch(e); js.srds(e)
            e(f"s_cmp_eq_u32 s{TY}, {t}\ns_cbranch_scc1 {L}\ns_mov_b32 s{SRD_X+2}, 0\ns_mov_b32 s{SRD_W+2}, 0\n{L}:")
        def tile_end(e, Ln):
            js.post(e, M[1], N[1])
            jstamp(e, -1)
            js.g.zero_acc(e)
            e(f"""s_mov_b32 s61, s{M[1]}
s_mov_b32 s{js.g.sPh}, {js.g.sigj}
s_cmp_eq_u32 s{TY}, {t}
s_cbranch_scc1 {Ln}""")
        js.g.run(e, js.nstores(), sig_hook(C_KV, 61, val, nc), switch, tile_end)
        e("s_barrier")
        sig_hook(C_KV, 61, val, nc)(e)
        e("s_branch Ldisp")
    e(f"""Ljob{J_SENT}:
s_add_u32 s52, s{M[0]}, 960
s_lshl_b32 s52, s52, 3
s_add_u32 s52, s52, s{S_WAVE}
s_lshl_b32 s52, s52, 12
v_lshlrev_b32 v2, 4, v0
v_mov_b64 v[4:5], -1
v_mov_b64 v[6:7], -1""")
    make_srd(e, SRD_O, P_WS, 52, WS_OP, WS_SIZE)
    for x in range(4): e(f"buffer_store_dwordx4 v[4:7], v2, s[{SRD_O}:{SRD_O+3}], 0 offen offset:{1024*x} sc1")
    e("s_nop 1\ns_branch Lnext")
    e(f"Ljob{J_AKV}:")
    job_a_kv(e, M[0], "sc1")
    signal(e, C_KVA)
    e(f"s_branch Lnext\nLjob{J_ATT}:")
    j5 = AAttn(M[0], N[0], lambda e: wait(e, F, [(C_KVA, None, 64)]))
    j5.pre(e); j5.main(e); j5.post(e)
    signal(e, C_OA, M[0], 1)
    e(f"s_branch Lnext\nLjob{J_AOUT}:")
    wait(e, F, [(C_OA, M[0], 8)])
    j6 = Out("A", M[0], N[0], 128 if OUT128 else 256); j6.pre(e); j6.main(e); j6.post(e)
    e(f"s_barrier\ns_branch Lnext\nLjob{J_END}:")
    U, PC, PE = 72, 73, 74
    e(f"""v_lshlrev_b32 v2, 4, v0
v_and_b32 v3, 15, v0
v_lshlrev_b32 v3, 12, v3
v_bfe_u32 v4, v0, 4, 1
v_lshl_add_u32 v3, v4, 5, v3
v_lshrrev_b32 v4, 5, v0
v_lshl_add_u32 v3, v4, 4, v3
s_mov_b32 s54, 0xffff0000
s_mov_b32 s75, s{N[0]}
s_cmp_eq_u32 s75, 2
s_cbranch_scc1 Lrlast
s_cmp_gt_u32 s{S_WAVE}, 5
s_cbranch_scc1 Lrmid
s_lshl_b32 s{U}, s{S_WAVE}, 7
s_add_u32 s{U}, s{U}, s{W}
s_mov_b32 s{PC}, 0
s_mov_b32 s{PE}, 4
Lrunit:
s_lshr_b32 s76, s{U}, 4
s_lshl_b32 s53, s76, 17
s_add_u32 s76, s76, 4
s_min_u32 s76, s76, 63""")
    poll(e, F, ch.DBG_PROG, None, "s76", t=4, slp=PSL)
    stamp(e, 10, True)
    e(f"""s_and_b32 s52, s{U}, 15
s_lshl_b32 s52, s52, 7
s_add_u32 s53, s53, s52
s_lshl_b32 s52, s{U}, 15""")
    make_srd(e, SRD_X, P_WS, 52, WS_OP, WS_SIZE)
    make_srd(e, SRD_O, P_OUT, 53, 2048, 8388608)
    e(f"Lrpiece:\ns_lshl_b32 s55, s{PC}, 10")
    for g in range(8): e(f"buffer_load_dwordx4 v[{16+4*g}:{19+4*g}], v2, s[{SRD_X}:{SRD_X+3}], s55 offen sc1\ns_add_u32 s55, s55, 4096")
    e(f"""s_add_u32 s{SPIN}, s{SPIN}, 1
s_cmp_gt_u32 s{SPIN}, {ch.SPIN_MAX}
s_cbranch_scc1 {F}
s_lshr_b32 s55, s{PC}, 1
s_lshl_b32 s55, s55, 16
s_and_b32 s56, s{PC}, 1
s_lshl_b32 s56, s56, 6
s_add_u32 s55, s55, s56
s_waitcnt vmcnt(0)
v_max3_u32 v4, v19, v23, v27
v_max3_u32 v5, v31, v35, v39
v_max3_u32 v4, v43, v47, v4
v_max_u32 v4, v4, v5
v_cmp_eq_u32 vcc, -1, v4
s_cbranch_vccnz Lrpiece""")
    A = 48
    for g in range(8):
        for r in range(4):
            d = 16 + 4 * g + r
            if g == 0: e(f"v_lshlrev_b32 v{A+2*r}, 16, v{d}\nv_and_b32 v{A+2*r+1}, s54, v{d}")
            else: e(f"v_lshlrev_b32 v{8+2*r}, 16, v{d}\nv_and_b32 v{9+2*r}, s54, v{d}\nv_pk_add_f32 v[{A+2*r}:{A+2*r+1}], v[{A+2*r}:{A+2*r+1}], v[{8+2*r}:{9+2*r}]")
    for r in range(4): e(f"v_cvt_pk_bf16_f32 v{56+r}, v{A+2*r}, v{A+2*r+1}")
    e(f"""buffer_store_dwordx4 v[56:59], v3, s[{SRD_O}:{SRD_O+3}], s55 offen
s_add_u32 s{PC}, s{PC}, 1
s_cmp_lt_u32 s{PC}, s{PE}
s_cbranch_scc1 Lrpiece
s_cmp_ge_u32 s{U}, 768
s_cbranch_scc1 Lrdone
Lrmid:
s_cmp_eq_u32 s75, 1
s_cbranch_scc1 Lnext
Lrlast:
{'s_sleep 127' if EXP == 4 else ''}
{'s_sleep 127' if EXP == 4 else ''}
{'s_sleep 127' if EXP == 4 else ''}
s_lshr_b32 s{U}, s{S_WAVE}, 2
s_lshl_b32 s{U}, s{U}, 7
s_sub_u32 s{U}, 896, s{U}
s_add_u32 s{U}, s{U}, s{W}
s_and_b32 s{PC}, s{S_WAVE}, 3
s_add_u32 s{PE}, s{PC}, 1
s_branch Lrunit
Lrdone:""")
    stamp(e, 11, True); stamp(e, 15)
    if common.DIAG:
        for i in range(1, 10): e(f"v_readlane_b32 s{80+i}, v1, {16+i}")
    stamps_out(e, 16)
    e(f"""Lend:
s_endpgm
{F}:
v_mov_b32 v2, 0
v_mov_b32 v3, 2
global_store_dword v2, v3, s[{P_DBG}:{P_DBG+1}] offset:{ch.DBG_FAIL - 4}
s_endpgm
.p2align 6
Ltab:""")
    for jl in schedule():
        assert len(jl) < 16
        e(".long " + ", ".join(str(t << 16 | m << 8 | n) for t, m, n in jl + [(0, 0, 0)] * (16 - len(jl))))
```

```python
import common
from common import *
import math

SPREAD = 0
def acc_step(): return 256 if SPREAD else 20480
def acc_piece(): return 65 * 256 if SPREAD else 256
KLATE = 8
DELAY_B = -1
CANARY = 1
CGAP = 2
CTHR = 8
FIX_A = -1
WS_CAN = WS_ACC + 0x180000
BR_G = 24576
WS_PR = WS_BR + 0x80000
PR_SLOT = 98304
BR_SLOT = 8 * 32768
HS = 6144
GS = 24576
R1 = 0
R2 = 18432
RL = 28672
YD2 = 65536
YD = 32768
SPIN_MAX = 400000
ACK_B = 1
KVSTEP = 262144
NOKV = 0
LATE_V = 0
XT = 0
XW = 3
STL = 2
PDMA = 1
QL = 0
PPRE = 1
PER = 0
VE0 = 0
RTAB0 = 0
RT0N = 17
NORST = 0
S0X = 0
FKV = 29208
VP128 = 0
WOPF = 0
G5 = 1
PKA = 0
A8 = 0
A8N = 3
VPRI = 0
G0FIX = 1
AL1 = 4
AL2 = 6
AL4 = -1
AL5 = -1
ALR = -1
ALT = 0
AL3 = 0
WSL = 3
EKV = 0
PTOUCH = 1
C_KV0 = 128
PSW = 0
PACK = 0
PSLIP = 20
SPLIT = 0
VORD = 0
ACK1 = 1
RLATE = 0
ASL = 0
ARF = 1
VPF = 1
DUMP0 = 6
DUMPS = 4
SFLAG = 1
XS2 = 10
PBL = 0
KPOS = 0xe000001000
PL = 98304
VSL = 1
QONE = 1
KVE = 1
VARR = -1
VPOST = 0
AF = 1
KVF = 1
LF = ['', 'sc1', 'nt', 'sc0', 'sc1 nt', 'sc0 sc1']
XSF = 1
RTAB = 0x023579bd
FL2 = 29440
FSL = 2
KPRE = 6
FPOS = 1
OOB = 131072
P1B = 1
BPIPE = 1
FINR = 0
VLATE = 8
FL3 = RL + 256 + 240
FL = 29248
XW23 = 9
RSEL = 0
FORCE_FB = 0
VEARLY = 8
EARLY = -1
EGAP = 2
EADD = 0
EW0 = 1
EPRE = 2
EDLY = 0
XST = 0
XSL = 8
XLD = 2
KEARLY = 8
PLATE = 24
NOQ = 0
PREF = 0
RANK_A = 2
PACE_A = 0
DBG_ARRIVE = 0
DBG_XCC = 4
DBG_PROG = 64
DBG_FAIL = 252 - 172

sStep, sSpin, sMode = 64, 65, 66
sACC, sACCN, sB, sBO, sK, sV, sKVM = 68, 70, 72, 74, 76, 78, 60
sSelE, sSelO, sC, sG, sM, sW = 62, 63, 59, 56, 57, 58
sQ, sQL = 60, 61

TRACE = False
WS_TRACE = WS_DIAG + (1 << 20)
def tr(e, i):
    if TRACE: e(f"s_memrealtime s[{86+2*i}:{87+2*i}]")
def tr_out(e):
    if not TRACE: return
    e(f"""s_waitcnt lgkmcnt(0)
s_lshl_b32 s48, s{S_WG}, 3
s_add_u32 s48, s48, s{S_WAVE}
s_lshl_b32 s48, s48, 6
s_add_u32 s48, s48, s{sStep}
s_lshl_b32 s48, s48, 5
s_add_u32 s48, s48, {WS_TRACE}
v_lshlrev_b32 v13, 2, v0
v_add_u32 v13, s48, v13""")
    for i in range(8): e(f"v_writelane_b32 v12, s{86+2*i}, {i}")
    e(f"s_mov_b64 exec, 0xff\nglobal_store_dword v13, v12, s[{P_WS}:{P_WS+1}]\ns_mov_b64 exec, -1")

def reduce4(e, alo, ahi, st, t=12, scale=None):
    e(f"""ds_read2st64_b32 v[{t}:{t+1}], v{alo} offset0:0 offset1:{st}
ds_read2st64_b32 v[{t+2}:{t+3}], v{ahi} offset0:0 offset1:{st}
ds_read2st64_b32 v[{t+4}:{t+5}], v{alo} offset0:{2*st} offset1:{3*st}
ds_read2st64_b32 v[{t+6}:{t+7}], v{ahi} offset0:{2*st} offset1:{3*st}
s_cmp_lg_u32 s{sMode}, 0
s_waitcnt lgkmcnt(2)
v_add_f32 v{t}, v{t}, v{t+1}
v_add_f32 v{t+2}, v{t+2}, v{t+3}""")
    if scale: e(f"v_mul_f32 v{t}, v{t}, v{scale}\nv_mul_f32 v{t+2}, v{t+2}, v{scale}")
    e(f"""s_waitcnt lgkmcnt(0)
v_add_f32 v{t+4}, v{t+4}, v{t+5}
v_add_f32 v{t+6}, v{t+6}, v{t+7}""")
    if scale: e(f"v_fmac_f32 v{t}, v{t+4}, v{scale}\nv_fmac_f32 v{t+2}, v{t+6}, v{scale}")
    else: e(f"v_add_f32 v{t}, v{t}, v{t+4}\nv_add_f32 v{t+2}, v{t+2}, v{t+6}")
    e(f"v_cvt_pk_bf16_f32 v{t}, v{t}, v{t+2}")

def reduce4n(e, ar, one, t, r):
    e(f"""ds_read_b128 v[{r}:{r+3}], v{ar}
ds_read2st64_b32 v[{t}:{t+1}], v7 offset0:0 offset1:10
ds_read2st64_b32 v[{t+2}:{t+3}], v8 offset0:0 offset1:10
ds_read2st64_b32 v[{t+4}:{t+5}], v7 offset0:20 offset1:30
ds_read2st64_b32 v[{t+6}:{t+7}], v8 offset0:20 offset1:30
s_waitcnt lgkmcnt(2)
v_mul_f32 v{t}, v{t}, v{r}
v_fma_f32 v{t+2}, v{t+2}, v{r}, v{one}
v_fmac_f32 v{t}, v{t+1}, v{r+1}
v_fmac_f32 v{t+2}, v{t+3}, v{r+1}
s_waitcnt lgkmcnt(0)
v_fmac_f32 v{t}, v{t+4}, v{r+2}
v_fmac_f32 v{t+2}, v{t+6}, v{r+2}
v_fmac_f32 v{t}, v{t+5}, v{r+3}
v_fmac_f32 v{t+2}, v{t+7}, v{r+3}
v_cvt_pk_bf16_f32 v{t}, v{t}, v{t+2}""")
def aln(e, k):
    if k >= 0: e(".p2align 6" + "\ns_nop 0" * k)
def rn_setup(ar, one, w4=False):
    g4 = G5 and w4; k = 15 if G5 and not w4 else 3
    return f"""v_bfe_u32 v{ar}, v0, 2, {1 if g4 else 3}
v_lshlrev_b32 v{ar}, {6 if g4 else 4}, v{ar}
v_add_u32 v{ar}, {RL + 128 + (48 if g4 else 0)}, v{ar}
v_and_b32 v{one}, {k}, v0
v_cmp_eq_u32 vcc, {k}, v{one}
v_cndmask_b32 v{one}, 0, 1.0, vcc"""

def publish_B(e, tail, d=12):
    ls, lb = e.label("Lslow"), e.label("Lback")
    rs = lambda f: "" if RLATE else f"global_store_dword v6, v11, s[{sBO}:{sBO+1}] {f}"
    e(f"""v_min_u32 v{d}, -2, v{d}
s_cbranch_scc1 {ls}
global_store_dword v6, v{d}, s[{sB}:{sB+1}]
{rs('')}
{lb}:""")
    tail.append(f"""{ls}:
global_store_dword v6, v{d}, s[{sB}:{sB+1}] sc1
{rs('sc1')}
s_branch {lb}""")
def reset_B(e, tail):
    if not RLATE: return
    ls, lb = e.label("Lslow"), e.label("Lback")
    e(f"s_cmp_lg_u32 s{sMode}, 0\ns_cbranch_scc1 {ls}\nglobal_store_dword v6, v11, s[{sBO}:{sBO+1}]\n{lb}:")
    tail.append(f"{ls}:\nglobal_store_dword v6, v11, s[{sBO}:{sBO+1}] sc1\ns_branch {lb}")

def advance(e):
    e(f"""s_add_u32 s{sStep}, s{sStep}, 1
s_mov_b64 s[{sACC}:{sACC+1}], s[{sACCN}:{sACCN+1}]
s_add_u32 s{sACCN}, s{sACCN}, {acc_step()}
s_addc_u32 s{sACCN+1}, s{sACCN+1}, 0
s_mov_b64 s[50:51], s[{sB}:{sB+1}]
s_mov_b64 s[{sB}:{sB+1}], s[{sBO}:{sBO+1}]
s_mov_b64 s[{sBO}:{sBO+1}], s[50:51]""")

def chain(e, L_done, kv_wait=None, arrive_hook=None):
    tail = []
    Lfail = e.label("Lcfail")
    e(f"""s_and_b32 s{sG}, s{S_WG}, 7
s_lshr_b32 s{sM}, s{S_WG}, 3
s_and_b32 s{sW}, s{S_WAVE}, 3
s_mov_b32 s{sStep}, 0
s_mov_b32 s{sSpin}, 0
s_mov_b32 s{sSelE}, 0x05040100
s_mov_b32 s{sSelO}, 0x07060100
s_mov_b32 s{sC}, {hex(f32bits(128 ** -0.5 * math.log2(math.e)))}
s_add_u32 s{sACC}, s{P_WS}, {WS_ACC}
s_addc_u32 s{sACC+1}, s{P_WS+1}, 0
s_add_u32 s{sACCN}, s{sACC}, {acc_step()}
s_addc_u32 s{sACCN+1}, s{sACC+1}, 0
s_mul_i32 s48, s{sG}, {GS}
s_add_u32 s48, s48, {WS_BR}
s_add_u32 s{sB}, s{P_WS}, s48
s_addc_u32 s{sB+1}, s{P_WS+1}, 0
s_add_u32 s{sBO}, s{sB}, {BR_SLOT}
s_addc_u32 s{sBO+1}, s{sB+1}, 0
s_add_u32 s{sK}, s{P_WS}, {WS_KB}
s_addc_u32 s{sK+1}, s{P_WS+1}, 0
s_add_u32 s{sV}, s{P_WS}, {WS_VB}
s_addc_u32 s{sV+1}, s{P_WS+1}, 0
s_add_u32 s{sKVM}, s{P_WS}, {WS_OP - 2*524288}
s_addc_u32 s{sKVM+1}, s{P_WS+1}, 0
v_mov_b32 v11, -1""")
    e("""v_and_b32 v12, 3, v0
v_bfe_u32 v13, v0, 2, 3
v_lshrrev_b32 v14, 5, v0""")
    e("""v_mov_b32 v2, 0x4444
v_mov_b32 v15, 0xeeee
v_and_b32 v16, 8, v0
v_cmp_ne_u32 vcc, 0, v16
v_cndmask_b32 v2, v2, v15, vcc""")
    e(f"""s_lshl_b32 s48, s{S_WAVE}, 4
v_lshlrev_b32 v15, 2, v12
v_lshlrev_b32 v16, 1, v14
v_add3_u32 v15, v15, v16, s48
v_add_u32 v16, 1, v15
v_lshlrev_b32 v17, 5, v12
v_bfe_u32 v22, v0, {3 if G5 else 5}, 1
v_lshl_add_u32 v17, v22, 1, v17
v_add_u32 v17, 13, v17
v_add_u32 v18, 16, v17
s_cmp_eq_u32 s{S_WAVE}, 4
s_cselect_b64 s[48:49], -1, 0
v_cndmask_b32 v15, v15, v17, s[48:49]
v_cndmask_b32 v16, v16, v18, s[48:49]""")
    e("""v_cmp_le_u32 s[50:51], 2, v12
s_and_b64 s[50:51], s[50:51], s[48:49]
v_cmp_eq_u32 s[52:53], 2, v12
s_and_b64 s[52:53], s[52:53], s[48:49]
v_cmp_eq_u32 s[54:55], 3, v12
v_mov_b32 v21, v13""")
    if G5: e("""v_and_b32 v17, 4, v0
v_or_b32 v17, 3, v17
v_cndmask_b32 v21, v13, v17, s[48:49]
s_or_b32 s48, s48, 0x80008000
s_or_b32 s49, s49, 0x80008000
s_and_b64 s[54:55], s[54:55], s[48:49]""")
    for col, dst in ((15, 7), (16, 8)):
        e(f"""v_lshrrev_b32 v17, 2, v{col}
v_mul_u32_u24 v17, 160, v17
v_and_b32 v18, 3, v{col}
v_lshlrev_b32 v18, 5, v18
v_add_u32 v17, v17, v18
v_lshl_add_u32 v17, v21, 2, v17
v_add_u32 v{dst}, {R2}, v17""")
    e(f"""v_mov_b32 v17, {R2+132}
v_mov_b32 v18, {R2+132}
v_cndmask_b32 v7, v7, v18, s[50:51]
v_cndmask_b32 v8, v8, v18, s[52:53]
v_cndmask_b32 v8, v8, v17, s[54:55]""")
    e(f"""s_mul_i32 s67, s{sM}, 5
s_add_u32 s67, s67, s{S_WAVE}
s_mul_i32 s67, s67, {acc_piece()}
v_lshlrev_b32 v9, 2, v0
v_add_u32 v9, s67, v9""")
    Ln0 = e.label("Lnomem0")
    e(f"""s_cmp_lg_u32 s{sG}, 0
s_cbranch_scc1 {Ln0}
s_cmp_gt_u32 s{S_WAVE}, 4
s_cbranch_scc1 {Ln0}
s_lshl_b32 s48, s{sM}, 7
v_lshlrev_b32 v17, 11, v21
v_add_u32 v17, s48, v17
v_and_b32 v15, 63, v15
v_and_b32 v16, 63, v16
v_lshl_add_u32 v15, v15, 1, v17
v_lshl_add_u32 v16, v16, 1, v17
global_load_ushort v24, v15, s[{P_MEM0}:{P_MEM0+1}]
global_load_ushort v25, v16, s[{P_MEM0}:{P_MEM0+1}]
v_cndmask_b32 v26, -1, 0, s[50:51]
s_or_b64 s[52:53], s[52:53], s[54:55]
v_cndmask_b32 v27, -1, 0, s[52:53]
v_mov_b32 v17, 0x41000000
v_cndmask_b32 v28, 0, v17, s[54:55]
{Ln0}:""")
    Lz = e.label("Lz")
    e(f"""s_mul_i32 s48, s{S_WG}, 640
s_lshl_b32 s49, s{S_WAVE}, 6
s_add_u32 s48, s48, s49
v_mov_b64 v[16:17], 0
v_mov_b64 v[18:19], 0""")
    for rep in range(2):
        if rep: e(f"s_cmp_gt_u32 s{S_WAVE}, 1\ns_cbranch_scc1 {Lz}\ns_add_u32 s48, s48, 512")
        e("v_add_u32 v15, s48, v0")
        if SPREAD: e("v_lshrrev_b32 v20, 10, v15\nv_lshlrev_b32 v15, 4, v15\nv_lshl_add_u32 v15, v20, 8, v15")
        else: e("v_lshlrev_b32 v15, 4, v15")
        e(f"global_store_dwordx4 v15, v[16:19], s[{sACCN}:{sACCN+1}] sc1")
    e(f"{Lz}:")
    LS2i, Lji = e.label("LS2i"), e.label("Lji")
    e(f"""s_lshr_b32 s48, s{sM}, 2
s_mul_i32 s48, s48, {HS}
s_and_b32 s49, s{sM}, 3
s_cmp_ge_u32 s{S_WAVE}, 4
s_cbranch_scc1 {LS2i}""")
    e(f"""s_and_b32 s50, s{S_WAVE}, 1
s_lshl_b32 s51, s50, 3
v_lshl_add_u32 v15, v12, 1, v14
v_add_u32 v15, s51, v15
v_mul_u32_u24 v15, 96, v15
v_lshl_add_u32 v15, v13, 2, v15
v_add_u32 v4, {R1 + 2*1536}, v15
v_add_u32 v5, 32, v4
s_lshl_b32 s49, s49, 9
s_lshl_b32 s50, s50, 8
s_add_u32 s48, s48, s49
s_add_u32 s48, s48, s50
s_add_u32 s48, s48, 4096
s_branch {Lji}
{LS2i}:""")
    e(f"""s_lshl_b32 s51, s{sW}, 2
v_add_u32 v15, s51, v12
v_mul_u32_u24 v15, 96, v15
v_lshl_add_u32 v15, v13, 2, v15
v_xor_b32 v16, 1, v14
v_mul_u32_u24 v16, 1536, v16
v_add3_u32 v4, v15, v16, {R1}
v_add_u32 v5, 32, v4
s_lshl_b32 s49, s49, 10
s_lshl_b32 s50, s{sW}, 8
s_add_u32 s48, s48, s49
s_add_u32 s48, s48, s50
{Lji}:
v_lshlrev_b32 v6, 2, v0
v_add_u32 v6, s48, v6""")
    e(f"""global_store_dword v6, v11, s[{sB}:{sB+1}] sc1
global_store_dword v6, v11, s[{sBO}:{sBO+1}] sc1
s_min_u32 s48, s{S_WAVE}, 2
s_mul_i32 s49, s{S_WG}, 3
s_add_u32 s48, s48, s49
s_lshl_b32 s48, s48, 8
s_add_u32 s48, s48, {WS_PR}
v_lshl_add_u32 v15, v0, 2, s48
global_store_dword v15, v11, s[{P_WS}:{P_WS+1}] sc1
""")
    def mem0_store(n, post=""):
        La = e.label("Lm0")
        e(f"""s_waitcnt vmcnt({n})
s_cmp_lg_u32 s{sG}, 0
s_cbranch_scc1 {La}_n
s_cmp_gt_u32 s{S_WAVE}, 4
s_cbranch_scc1 {La}_n
v_and_b32 v24, v24, v26
v_and_b32 v25, v25, v27
v_lshl_or_b32 v24, v25, 16, v24
v_or_b32 v24, v24, v28
global_store_dword v9, v24, s[{sACC}:{sACC+1}] sc1
{post}
{La}_n:""")
    def arrive(n):
        La = e.label("La")
        if G0FIX: e(f"s_waitcnt vmcnt({16 if n == 32 else 8})")
        else: mem0_store(n, "s_waitcnt vmcnt(0)")
        e("s_barrier")
        stamp(e, 6, True)
        e(f"""s_cmp_lg_u32 s{S_WAVE}, 7
s_cbranch_scc1 {La}
s_getreg_b32 s48, hwreg(HW_REG_XCC_ID)
s_and_b32 s48, s48, 15
s_mul_i32 s49, s48, s48
s_lshl_b32 s49, s49, 8
s_add_u32 s48, s48, s49
s_lshl_b32 s48, s48, 8
s_add_u32 s48, s48, 1
s_lshl_b32 s49, s{sG}, 2
s_mov_b64 exec, 1
v_mov_b32 v15, s49
v_mov_b32 v16, s48
global_atomic_add v15, v16, s[{P_DBG}:{P_DBG+1}] offset:{DBG_XCC}
s_mov_b64 exec, -1
{La}:""")
    LS2 = e.label("LS2")
    e(f"s_cmp_ge_u32 s{S_WAVE}, 4\ns_cbranch_scc1 {LS2}")

    def ws_addr(a):
        return f"""v_and_b32 v{a}, 7, v0
v_lshlrev_b32 v{a}, 2, v{a}
s_cmp_eq_u32 s{S_WAVE}, 4
s_cselect_b32 s48, 0xff00, 0
s_mov_b32 s49, 0
v_mov_b32 v{a+1}, {C_KV0 - DBG_XCC}
v_cndmask_b32 v{a}, v{a}, v{a+1}, s[48:49]
v_mov_b32 v{a+1}, 96
v_cndmask_b32 v{a+1}, 16, v{a+1}, s[48:49]
v_mov_b32 v{a+3}, 255
v_cndmask_b32 v{a+3}, v{a+3}, -1, s[48:49]
global_load_dword v{a+2}, v{a}, s[{P_DBG}:{P_DBG+1}] offset:{DBG_XCC} sc1"""
    def wait_start(a=None):
        stamp(e, 7, True)
        Lw = e.label("Lws")
        if a is None: e("v_and_b32 v12, 7, v0\nv_lshlrev_b32 v12, 2, v12")
        else: e(f"s_branch {Lw}_c")
        ad, r = (12, 14) if a is None else (a, a + 2)
        e(f"""{Lw}:
s_sleep {4 if a is None else WSL}
global_load_dword v{r}, v{ad}, s[{P_DBG}:{P_DBG+1}] offset:{DBG_XCC} sc1
s_add_u32 s{sSpin}, s{sSpin}, 1
s_cmp_gt_u32 s{sSpin}, {SPIN_MAX}
s_cbranch_scc1 {Lfail}
s_waitcnt vmcnt(0)
{Lw}_c:
v_and_b32 v13, {255 if a is None else f'v{a+3}'}, v{r}
v_cmp_gt_u32 vcc, {16 if a is None else f'v{a+1}'}, v13
s_cbranch_vccnz {Lw}
v_readlane_b32 s48, v{r}, s{sG}
s_bfe_u32 s49, s48, 0x80008
s_mul_i32 s49, s49, s49
s_lshr_b32 s48, s48, 16
s_lshl_b32 s48, s48, 4
s_sub_u32 s{sMode}, s48, s49""")
    nextrow = f"""s_add_u32 s54, s54, {16*8192}
s_bitcmp1_b32 s54, 19
s_cselect_b32 s55, {192*8192}, 0
s_add_u32 s54, s54, s55"""

    W1 = 64; G = 20; AC = 40
    e(f"""s_lshl_b32 s48, s{sG}, 2
s_lshr_b32 s49, s{sM}, 2
s_add_u32 s48, s48, s49
s_lshl_b32 s48, s48, 8
s_and_b32 s49, s{sM}, 3
s_lshl_b32 s49, s49, 6
s_add_u32 s48, s48, s49
s_lshl_b32 s49, s{sW}, 19
s_add_u32 s52, s48, s49
v_lshrrev_b32 v12, 2, v0
v_lshlrev_b32 v12, 13, v12
v_and_b32 v13, 3, v0
v_lshl_add_u32 v12, v13, 4, v12
s_lshl_b32 s53, s{sW}, 15""")
    e(f"""v_lshrrev_b32 v13, 5, v0
v_lshlrev_b32 v13, 6, v13
v_bfe_u32 v14, v0, 4, 1
v_lshl_add_u32 v13, v14, 3, v13
v_bfe_u32 v14, v0, 2, 2
v_add_u32 v13, v13, v14
v_lshlrev_b32 v13, 6, v13
v_and_b32 v14, 3, v0
v_lshl_add_u32 v13, v14, 3, v13
v_add_u32 v13, s53, v13""")
    def w1_dma(both, first=True, end=1024):
        L = e.label("Lw1")
        if first: e("s_mov_b32 m0, s53\ns_mov_b32 s54, 0")
        e(f"""{L}:
buffer_load_dwordx4 v12, s[{SRD_W}:{SRD_W+3}], s54 offen lds""")
        if both: e(f"s_add_u32 m0, m0, 16384\nbuffer_load_dwordx4 v12, s[{SRD_O}:{SRD_O+3}], s54 offen lds")
        e(f"""s_add_u32 m0, m0, {hex((1024 - 16384 * both) & 0xffffffff)}
{nextrow}
s_cmp_lt_u32 s54, {end*8192}
s_cbranch_scc1 {L}""")
    def w1_read(mat, half):
        for ch in range(2):
            for i in range(4):
                r = W1 + ((2 * mat + ch) * 4 + i) * 8
                for q in range(2):
                    for h in range(2):
                        e(f"ds_read_b64_tr_b16 v[{r+4*q+2*h}:{r+4*q+2*h+1}], v13 offset:{half*16384 + (128*q + 16*i + 4*h)*64 + 32*ch}")
    make_srd(e, SRD_W, P_BWQ, 52, 0, 8388608); make_srd(e, SRD_O, P_BWK, 52, 0, 8388608)
    stamp(e, 10, True)
    if G0FIX:
        w1_dma(1, True, 512); mem0_store(16); w1_dma(1, False)
    else: w1_dma(1)
    stamp(e, 13, True)
    arrive(32)
    make_srd(e, SRD_W, P_BWV, 52, 0, 8388608)
    e("s_waitcnt vmcnt(0)")
    stamp(e, 8, True)
    w1_read(0, 0)
    e("s_waitcnt lgkmcnt(0)")
    w1_dma(0)
    w1_read(1, 1)
    e("s_waitcnt vmcnt(0)")
    w1_read(2, 0)
    e(f"""v_lshrrev_b32 v1, 4, v0
v_lshl_add_u32 v1, v1, 2, s{sW}
v_mul_u32_u24 v1, {5*acc_piece()}, v1
v_and_b32 v14, 15, v0
v_lshl_add_u32 v1, v14, 4, v1
v_lshrrev_b32 v15, 5, v0
v_lshl_add_u32 v14, v15, 4, v14
v_lshrrev_b32 v15, 1, v14
v_mul_u32_u24 v15, 96, v15
v_and_b32 v14, 1, v14
v_lshl_add_u32 v15, v14, 5, v15
v_bfe_u32 v14, v0, 4, 1
v_lshl_add_u32 v15, v14, 4, v15
s_mul_i32 s48, s{sW}, 4608
s_add_u32 s48, s48, {R1}
v_add_u32 v3, s48, v15
s_waitcnt lgkmcnt(0)""")
    make_srd(e, SRD_X, P_WS, None, 0, WS_SIZE)
    e(f"""s_and_b32 s48, s{S_WAVE}, 1
s_mul_i32 s47, s48, 1536
s_add_u32 s54, s47, {PL}
s_mul_i32 s53, s{sW}, 3072
s_sub_u32 s52, s53, s47
s_add_u32 s53, s53, {PL}
s_mul_i32 s49, s{sG}, 12288
s_add_u32 s47, s47, s49
s_add_u32 s47, s47, {WS_PR}
s_lshl_b32 s48, s48, 11
s_lshl_b32 s43, s{S_WG}, 12
s_add_u32 s43, s43, s48
s_lshr_b32 s48, s{S_WAVE}, 1
s_mul_i32 s42, s48, 3072
s_add_u32 s42, s42, {YD}
s_lshl_b32 s48, s48, 10
s_add_u32 s43, s43, s48""")
    if PTOUCH:
        e(f"""v_lshlrev_b32 v14, 4, v0
s_and_b32 s48, s{sM}, 3
s_mul_i32 s48, s48, {PR_SLOT}
s_lshr_b32 s49, s{sM}, 2
s_min_u32 s49, s49, 2
s_lshl_b32 s49, s49, 10
s_add_u32 s48, s48, s49
s_add_u32 s55, s47, s52
s_add_u32 s55, s55, s48
buffer_load_dwordx4 v[{G}:{G+3}], v14, s[{SRD_X}:{SRD_X+3}], s55 offen sc1""")
    wait_start()
    e("s_barrier")
    e("s_barrier")
    e("s_setprio 3\ns_mov_b32 s67, 0x41000000")
    if common.DIAG: e("s_mov_b32 s85, 0\ns_mov_b32 s83, 0")
    stamp(e, 1, True)
    L1, LpA, L1x = e.label("L1"), e.label("LpA"), e.label("L1x")
    assert not SPREAD
    xstore = f"global_store_dwordx4 v15, v[16:19], s[{sKVM}:{sKVM+1}] {LF[XSF]}"
    a5 = "v_and_b32 v14, 15, v0\nv_mul_u32_u24 v14, 12, v14\nv_sub_u32 v14, v1, v14" if G5 else ""
    e("v_lshl_add_u32 v15, v0, 4, s43\n" + a5)
    aln(e, AL1)
    e(f"{L1}:")
    if not XT: tr(e, 7)
    e(f"{LpA}:")
    tr(e, 0)
    lda = lambda f: "\n".join(f"global_load_dword v{G+19}, v14, s[{sACC}:{sACC+1}] offset:1024 {f}" if i == 4 and G5 else
                              f"global_load_dwordx4 v[{G+4*i}:{G+4*i+3}], v1, s[{sACC}:{sACC+1}] offset:{256*i} {f}" for i in (4, 0, 1, 2, 3))
    e(lda(LF[AF]) + f"\n{LpA}_j:")
    if STL == 1: e(xstore)
    if VLATE: e(f"s_lshl_b32 s48, s{sW}, 2\nv_mov_b32 v12, s48\nv_mov_b32 v13, s{sStep}")
    flg = f"ds_write_b32 v12, v13 offset:{FL}" if VLATE else ""
    if VARR < 0: e(flg)
    e(f"s_add_u32 s{sSpin}, s{sSpin}, 1\ns_cmp_gt_u32 s{sSpin}, {SPIN_MAX}\ns_cbranch_scc1 {Lfail}")
    for r in range(0, 24, 2): e(f"v_mov_b64 v[{AC+r}:{AC+r+1}], 0")
    if G5:
        assert STL != 1 and VARR < 0 and not SPLIT
        e(f"""s_waitcnt vmcnt(4)
v_mov_b32_dpp v{G+16}, v{G+19} quad_perm:[0,0,0,0] row_mask:0xf bank_mask:0xf
v_mov_b32_dpp v{G+17}, v{G+19} quad_perm:[1,1,1,1] row_mask:0xf bank_mask:0xf
s_mov_b32 exec_lo, 0x88888888
s_mov_b32 exec_hi, 0x88888888""")
    def sm1(c, i):
        w = W1 + (c * 4 + i) * 8
        return f"v_smfmac_f32_16x16x64_bf16 v[{AC+4*c}:{AC+4*c+3}], v[{G+4*i}:{G+4*i+3}], v[{w}:{w+7}], v2"
    def arr(i):
        d3 = G + 4 * i + 3
        e(f"s_waitcnt vmcnt({3-i+(STL == 1)})")
        if i == 3: tr(e, 1)
        if i == VARR: e(flg)
        e(f"v_min_u32 v10, v{d3}, v{G+19 if i == 0 else 10}")
        e(f"v_perm_b32 v{d3}, v{G+16+i//2}, v{d3}, s{sSelO if i & 1 else sSelE}")
    def epi(p):
        a, b = AC + 8 * p, AC + 8 * p + 4
        return [f"v_permlane32_swap_b32 v{a+r}, v{b+r}" for r in range(4)] + ([f"v_pk_add_f32 v[{a+r}:{a+r+1}], v[{a+r}:{a+r+1}], v[{b+r}:{b+r+1}]" for r in (0, 2)] if PKA else [f"v_add_f32 v{a+r}, v{a+r}, v{b+r}" for r in range(4)]) + [f"ds_write_b128 v3, v[{a}:{a+3}] offset:{p*1536}"]
    chkA = f"v_cmp_gt_u32 vcc, s67, v10"
    if SPLIT:
        arr(0); e(sm1(0, 0)); e(sm1(1, 0)); e(sm1(2, 0))
        arr(1); e(sm1(3, 0)); e(sm1(0, 1))
        arr(2); e(sm1(1, 1)); e(sm1(0, 2))
        arr(3); e(sm1(1, 2))
        e(chkA); e(sm1(0, 3)); e(f"s_cbranch_vccnz {LpA}_retry"); e(sm1(1, 3))
        e(sm1(2, 1) + "\ns_nop 1"); e(sm1(3, 1) + "\ns_nop 1"); e(sm1(2, 2) + "\ns_nop 0")
        f = epi(0)
        for c, i in ((3, 2), (2, 3), (3, 3), (4, 0)):
            e(sm1(c, i)); e(f.pop(0)); e(f.pop(0))
        e(f.pop(0)); e(sm1(5, 0))
        for x in epi(1): e(x)
        e(f"s_setprio {P1B}")
        e(sm1(4, 1)); e(sm1(5, 1))
        tr(e, 2)
        e("s_waitcnt lgkmcnt(0)\ns_barrier")
        for c, i in ((4, 2), (5, 2), (4, 3), (5, 3)): e(sm1(c, i))
        for x in epi(2): e(x)
    else:
        f = epi(0) + epi(1) + epi(2)
        arr(0)
        for c in range(5): e(sm1(c, 0))
        arr(1); e(sm1(5, 0))
        for c in range(3): e(sm1(c, 1))
        arr(2); e(sm1(3, 1))
        e(sm1(0, 2)); arr(3); e(sm1(1, 2))
        e(chkA); e(sm1(0, 3))
        if G5: e("s_mov_b64 exec, -1")
        e(f"s_cbranch_vccnz {LpA}_retry"); e(sm1(1, 3))
        for c, i in ((2, 2), (3, 2), (2, 3), (3, 3)): e(sm1(c, i) + "\ns_nop 0")
        for c, i in ((4, 1), (5, 1), (4, 2), (5, 2), (4, 3), (5, 3)):
            e(sm1(c, i)); e(f.pop(0)); e(f.pop(0))
        for x in f: e(x)
        tr(e, 2)
    tail.append(f"{LpA}_retry:\ns_nop 7\ns_sleep {ASL}\n" + ("s_add_u32 s85, s85, 1\n" if common.DIAG else "") + lda(LF[ARF]) + f"\ns_branch {LpA}_j")
    e(f"s_setprio {P1B}\ns_waitcnt lgkmcnt(0)\ns_barrier")
    tr(e, 3)
    Lnp = e.label("Lnp")
    e(f"s_cmp_gt_u32 s{S_WAVE}, 1\ns_cbranch_scc1 {Lnp}_o")
    reduce4(e, 4, 5, 18, 24)
    publish_B(e, tail, 24)
    e(f"{'s_waitcnt vmcnt(0)' if ACK1 else ''}\n{Lnp}:")
    tail.append(f"""{Lnp}_o:
s_sleep {XW23}
s_lshl_b32 s48, s{S_WG}, 3
s_add_u32 s48, s48, s{S_WAVE}
s_cmp_lg_u32 s48, 2
s_cbranch_scc1 {Lnp}
v_mov_b32 v20, 0
v_mov_b32 v21, s{sStep}
s_mov_b64 exec, 1
global_store_dword v20, v21, s[{P_DBG}:{P_DBG+1}] offset:{DBG_PROG} sc1
""" + (f"""s_cmp_lg_u32 s{sStep}, 12
s_cbranch_scc1 {Lnp}_t12
s_memrealtime s[48:49]
s_waitcnt lgkmcnt(0)
s_add_u32 s48, s48, 750
v_mov_b32 v21, s48
global_store_dword v20, v21, s[{P_DBG}:{P_DBG+1}] offset:88 sc1
{Lnp}_t12:
""" if PER else "") + f"""s_mov_b64 exec, -1
s_branch {Lnp}""")
    PXr = [40 + 4 * h for h in range(4)]; PMr = [56 + 2 * h for h in range(4)]; XA = 12; YB = [32, 36, 24, 28]
    ldp = "v_lshlrev_b32 v18, 4, v0\nv_lshlrev_b32 v19, 3, v0\n" + "\n".join(
        f"buffer_load_dwordx4 v[{PXr[h]}:{PXr[h]+3}], v18, s[{SRD_X}:{SRD_X+3}], s{44+h//2} offen offset:{(h%2)*3072} sc1\n"
        f"buffer_load_dwordx2 v[{PMr[h]}:{PMr[h]+1}], v19, s[{SRD_X}:{SRD_X+3}], s{40+h//2} offen offset:{(h%2)*3072} sc1" for h in range(4))
    tr_out(e)
    if common.DIAG and not TRACE:
        e(f"s_cmp_lg_u32 s{sStep}, 16\ns_cbranch_scc1 {Lnp}_s16\ns_mov_b32 s85, {'s85' if NORST else 0}"); stamp(e, 9, True); e(f"{Lnp}_s16:")
    if AL3 >= 0: e(".p2align 5" + "\ns_nop 0" * AL3)
    e(f"""{Lnp}_e:
s_xor_b32 s42, s42, {YD ^ YD2}
s_add_u32 s44, s{sStep}, 3
s_and_b32 s44, s44, 3
s_mul_i32 s44, s44, {PR_SLOT}
s_add_u32 s44, s44, s47
s_add_u32 s45, s44, 6144
s_add_u32 s40, s44, 1024
s_add_u32 s41, s45, 1024
v_lshl_add_u32 v20, v0, 4, s42
v_add_u32 v21, 8, v20""")
    e(rn_setup(23, 24))
    rd = [(h, k) for h in (0, 2) for k in range(6)]
    def rdy(i):
        h, k = rd[i]; b = YB[i % 4]
        if k < 4: return f"ds_read_b128 v[{b}:{b+3}], v20 offset:{(h + k//2)*6144 + (k%2)*1024}"
        return f"ds_read2st64_b64 v[{b}:{b+3}], v{20 + k - 4} offset0:{12*h + 4} offset1:{12*h + 16}"
    rdp = [f"ds_read_b128 v[{PXr[h]}:{PXr[h]+3}], v22 offset:{h*3072}" for h in range(4)] + [f"ds_read2st64_b64 v[{PMr[h]}:{PMr[h]+3}], v25 offset0:{6*h + 2} offset1:{6*h + 8}" for h in (0, 2)]
    e(f"""s_cmp_eq_u32 s{sStep}, 64
s_cbranch_scc1 {Lnp}_f
s_add_u32 s55, s44, s52
s_mov_b32 m0, s53
v_lshlrev_b32 v14, 4, v0
v_lshl_add_u32 v22, v0, 4, s54
v_lshl_add_u32 v25, v0, 3, s54
s_lshl_b32 s48, s{sW}, 2
s_add_u32 s49, s{sStep}, 1
v_mov_b32 v26, s48
v_mov_b32 v27, s49
v_and_b32 v12, {7 if PPRE else 3}, v0
v_lshlrev_b32 v12, 2, v12
s_sleep {XW}""")
    for x in range(3): e(f"buffer_load_dwordx4 v14, s[{SRD_X}:{SRD_X+3}], s55 offen offset:{x*1024} sc1 lds")
    if RLATE:
        e(f"s_cmp_gt_u32 s{S_WAVE}, 1\ns_cbranch_scc1 {Lnp}_rs"); reset_B(e, tail); e(f"{Lnp}_rs:")
    e(f"""s_waitcnt vmcnt(0)
ds_write_b32 v26, v27 offset:{FL3 + 16}
{Lnp}_w:
s_sleep {FSL}
ds_read_b32 v13, v12 offset:{FL3}
s_add_u32 s{sSpin}, s{sSpin}, 1
s_cmp_gt_u32 s{sSpin}, {SPIN_MAX}
s_cbranch_scc1 {Lfail}
s_waitcnt lgkmcnt(0)
v_cmp_ge_u32 vcc, s{sStep}, v13
s_cbranch_vccnz {Lnp}_w
{xstore}""")
    if PPRE:
        for x in rdp + [rdy(i) for i in range(PPRE - 1)]: e(x)
    e(f"{Lnp}_g:")
    tail.append(f"{Lnp}_f:\ns_barrier\ns_add_u32 s{sKVM}, s{sKVM}, 524288\ns_addc_u32 s{sKVM+1}, s{sKVM+1}, 0\n" + "\n".join(rdy(i) for i in range(4)) + f"\ns_branch {Lnp}_r")
    e(f"s_add_u32 s{sKVM}, s{sKVM}, 524288\ns_addc_u32 s{sKVM+1}, s{sKVM+1}, 0\ns_setprio 3")
    e("s_barrier")
    tr(e, 4)
    reduce4n(e, 23, 24, 12, 28)
    e(f"global_atomic_pk_add_bf16 v10, v9, v12, s[{sACCN}:{sACCN+1}] sc0")
    tr(e, 5)
    e(f"s_cmp_eq_u32 s{sStep}, 0\ns_cbranch_scc1 {Lnp}_q")
    if not PPRE:
        for x in rdp: e(x)
    for i in range(max(0, PPRE - 1), 4): e(rdy(i))
    e(f"""s_waitcnt lgkmcnt(4)
{Lnp}_c:
v_max3_u32 v13, v43, v47, v51
v_max3_u32 v14, v55, v57, v59
v_max3_u32 v13, v61, v63, v13
v_max_u32 v13, v13, v14
v_cmp_eq_u32 vcc, -1, v13
s_cbranch_vccnz {Lnp}_r""")
    tail.append(f"{Lnp}_r:\n{ldp}\ns_add_u32 s{sSpin}, s{sSpin}, 1\ns_cmp_gt_u32 s{sSpin}, {SPIN_MAX}\ns_cbranch_scc1 {Lfail}\n" + ("s_add_u32 s83, s83, 1\n" if common.DIAG else "") + f"s_waitcnt vmcnt(0)\ns_branch {Lnp}_c")
    nxt = 4
    for i, (h, k) in enumerate(rd):
        b = YB[i % 4]; a = XA + 4 * (k % 2); pr = PXr[h + k // 2] if k < 4 else PMr[h]
        e(f"s_waitcnt lgkmcnt({nxt - 1 - i})")
        e(f"v_mfma_f32_16x16x32_bf16 v[{a}:{a+3}], v[{b}:{b+3}], v[{pr}:{pr+3}], " + ("0" if h == 0 and k < 2 else f"v[{a}:{a+3}]"))
        if nxt < len(rd): e(rdy(nxt)); nxt += 1
    for x in (3, 2, 0, 1): e(f"v_cvt_pk_bf16_f32 v{16+x}, v{XA+2*x}, v{XA+2*x+1}")
    e(f"v_permlane16_swap_b32 v16, v18\nv_permlane16_swap_b32 v17, v19\nv_min_u32 v19, -2, v19\n{Lnp}_q:\nv_lshl_add_u32 v15, v0, 4, s43\n" + a5)
    if not STL: e(xstore)
    if XT: tr(e, 7)
    e(f"s_cmp_ge_u32 s{sStep}, 63\ns_cbranch_scc1 {L1x}")
    advance(e)
    if PER:
        Lt = e.label("Lt")
        e(f"""s_cmp_lt_u32 s{sStep}, 16
s_cbranch_scc1 {Lt}_r
s_cmp_lg_u32 s{sStep}, 16
s_cbranch_scc1 {Lt}_n
v_mov_b32 v12, 0
global_load_dword v13, v12, s[{P_DBG}:{P_DBG+1}] offset:88 sc1
s_waitcnt vmcnt(0)
v_readfirstlane_b32 s46, v13
{Lt}_n:
s_add_u32 s46, s46, {PER}
{f's_sub_u32 s46, s46, s{sStep}' if PSW else ''}
{'s_waitcnt vmcnt(0)' if PACK else ''}
{Lt}:
s_memrealtime s[48:49]
s_waitcnt lgkmcnt(0)
s_sub_u32 s48, s48, s46
s_cmp_lt_i32 s48, 0
s_cbranch_scc1 {Lt}
s_cmp_lt_i32 s48, {PSLIP}
s_cbranch_scc1 {L1}
{Lt}_r:""")
    if RTAB0: e(f"s_mov_b32 s46, {hex(RTAB)}\ns_cmp_lt_u32 s{sStep}, {RT0N}\ns_cmov_b32 s46, {hex(RTAB0)}")
    e(f"s_waitcnt vmcnt({0 if STL else 1})")
    tr(e, 6)
    Lr = e.label("Lrank")
    e(f"""v_and_b32 v10, 0xffff0000, v10
v_cvt_u32_f32 v10, v10
v_readlane_b32 s48, v10, {15 if G5 else 3}
s_lshl_b32 s48, s48, 2
s_lshr_b32 s48, {'s46' if RTAB0 else hex(RTAB)}, s48
s_and_b32 s48, s48, 15
{Lr}:
s_cbranch_scc0 {L1}
s_sleep 1
s_sub_u32 s48, s48, 1
s_cmp_lg_u32 s48, 0
s_branch {Lr}
{L1x}:
{xstore if STL else ''}
s_setprio 0
s_add_u32 s{sStep}, s{sStep}, 1
s_cmp_eq_u32 s{sStep}, 64
s_cbranch_scc1 {Lnp}_e
s_branch {L_done}""")

    e(f"{LS2}:")
    T, VV, S0, S1_, SM, PX, PM, YM, O, LS, YX, KX, VX, WO = 28, 44, 52, 56, 60, 64, 68, 72, 88, 104, 108, 124, 156, 188
    ON16, ON32 = 22, 24
    DQ, NEG = 252, 253
    e(f"""s_lshl_b32 s48, s{sG}, 2
s_add_u32 s48, s48, s{sW}
s_lshl_b32 s55, s48, 13
s_lshl_b32 s48, s48, 18
s_lshl_b32 s49, s{sM}, 7
s_add_u32 s52, s48, s49
v_lshrrev_b32 v12, 3, v0
v_lshlrev_b32 v12, 11, v12
v_and_b32 v13, 7, v0
v_lshl_add_u32 v12, v13, 4, v12
s_lshl_b32 s53, s{sW}, 13
s_add_u32 s53, s53, 131072
v_lshrrev_b32 v13, 4, v0
v_lshlrev_b32 v13, 3, v13
v_bfe_u32 v14, v0, 2, 2
v_add_u32 v13, v13, v14
v_lshlrev_b32 v13, 7, v13
v_and_b32 v14, 3, v0
v_lshl_add_u32 v13, v14, 3, v13
v_add_u32 v13, s53, v13""")
    make_srd(e, SRD_W, P_BWO, 52, 0, 8388608)
    def vpf():
        e(f"""s_lshl_b32 s48, s{sG}, 2
s_lshr_b32 s49, s{sM}, 2
s_add_u32 s48, s48, s49
s_lshl_b32 s48, s48, 8
s_and_b32 s49, s{sM}, {2 if VP128 else 3}
s_lshl_b32 s49, s49, 6
s_add_u32 s48, s48, s49
s_lshl_b32 s49, s{sW}, 19
s_add_u32 s48, s48, s49
s_and_b32 s49, s{sM}, {1 if VP128 else 0}
s_lshl_b32 s49, s49, 16
s_add_u32 s48, s48, s49
v_lshrrev_b32 v14, {3 if VP128 else 2}, v0
v_lshlrev_b32 v14, 13, v14
v_and_b32 v15, {7 if VP128 else 3}, v0
v_lshl_add_u32 v14, v15, 4, v14""")
        make_srd(e, SRD_X, P_BWV, 48, 0, 8388608)
        L = e.label("Lvpf")
        e(f"s_mov_b32 s54, 0\n{L}:\nbuffer_load_dwordx4 v[64:67], v14, s[{SRD_X}:{SRD_X+3}], s54 offen\n{nextrow.replace('s55', 's49')}\ns_cmp_lt_u32 s54, {1024*8192}\ns_cbranch_scc1 {L}")
    stamp(e, 10, True)
    if VPRI: e(f"s_setprio {VPRI}")
    vpf()
    if VPRI: e("s_setprio 0")
    if G0FIX: mem0_store(16)
    stamp(e, 13, True)
    for rnd in range(2):
        L = e.label("Lwo")
        e(f"""s_mov_b32 m0, s53
s_mov_b32 s54, {rnd*64*2048}
{L}:
buffer_load_dwordx4 v12, s[{SRD_W}:{SRD_W+3}], s54 offen lds
s_add_u32 s54, s54, {8*2048}
s_add_u32 m0, m0, 1024
s_cmp_lt_u32 s54, {(rnd+1)*64*2048}
s_cbranch_scc1 {L}""")
        if rnd == 0 and WOPF:
            for x in range(8): e(f"buffer_load_dwordx4 v[64:67], v12, s[{SRD_W}:{SRD_W+3}], s54 offen\ns_add_u32 s54, s54, {8*2048}")
        if rnd == 0: arrive(32 if WOPF else 24)
        if rnd == 1 and EKV: e(ws_addr(29))
        e("s_waitcnt vmcnt(0)")
        for ct in range(4):
            for jj in range(2):
                r = WO + (ct * 4 + rnd * 2 + jj) * 4
                for h in range(2):
                    e(f"ds_read_b64_tr_b16 v[{r+2*h}:{r+2*h+1}], v13 offset:{(32*jj + 4*h)*128 + 32*ct}")
        e("s_waitcnt lgkmcnt(0)")
    e(f"""s_mul_i32 s48, s{sW}, {HS}
v_lshlrev_b32 v14, 4, v0
v_add_u32 v1, s48, v14
v_add_u32 v20, s55, v14
s_lshl_b32 s49, s{sM}, 9
s_add_u32 s55, s55, s49
s_add_u32 s55, s55, {2*KVSTEP}
v_and_b32 v15, 15, v0
v_lshrrev_b32 v16, 2, v15
v_mul_u32_u24 v16, 160, v16
v_and_b32 v15, 3, v15
v_lshl_add_u32 v16, v15, 5, v16
v_bfe_u32 v15, v0, 4, 1
v_lshl_add_u32 v16, v15, 4, v16
s_mul_i32 s48, s{sW}, 2560
s_add_u32 s48, s48, {R2}
v_add_u32 v3, s48, v16
v_mov_b32 v{ON32}, 0x3f803f80
v_mov_b32 v{ON32+1}, 0x3f803f80
v_mov_b32 v{ON32+2}, 0x3f803f80
v_mov_b32 v{ON32+3}, 0x3f803f80
v_cmp_gt_u32 vcc, 32, v0
v_cndmask_b32 v{ON16}, 0, v{ON32}, vcc
v_cndmask_b32 v{ON16+1}, 0, v{ON32}, vcc""")
    e(f"""v_and_b32 v15, 15, v0
v_lshrrev_b32 v16, 4, v0
s_mul_i32 s48, s{sW}, 6144
s_add_u32 s48, s48, {YD}
v_lshl_add_u32 v21, v0, 4, s48
s_and_b32 s48, s{sM}, 3
s_lshl_b32 s49, s48, 3
v_lshlrev_b32 v16, 2, v16
v_sub_u32 v15, v15, v16
v_add_u32 v15, s49, v15
s_mov_b32 s40, 0xff00ff00
s_mov_b32 s41, 0xff00ff00
v_cndmask_b32 v{DQ}, v15, 64, s[40:41]
v_mov_b32 v{NEG}, 0xf149f2ca
s_lshr_b32 s49, s48, 1
s_and_b32 s48, s48, 1
s_lshl_b32 s48, s48, 7
s_lshl_b32 s{sQ}, s49, 12
s_add_u32 s{sQ}, s{sQ}, s48
s_sub_u32 s55, s55, s{sQ}
s_mul_i32 s42, s{sW}, 3072
s_mul_i32 s43, s{sG}, 12288
s_add_u32 s42, s42, s43
s_mul_i32 s43, s49, 1536
s_add_u32 s42, s42, s43
s_add_u32 s43, s42, s48
s_lshr_b32 s48, s48, 1
s_add_u32 s44, s42, s48
s_add_u32 s44, s44, 1024
s_lshr_b32 s45, s{sM}, 2""")
    make_srd(e, SRD_X, P_WS, None, WS_QB, WS_SIZE)
    e(rn_setup(254, 255, True))
    def kv_loads(reg, base):
        if NOKV & (1 if reg == KX else 2): return ["s_nop 0"] * 8
        return [f"global_load_dwordx4 v[{reg+4*x}:{reg+4*x+3}], v{20 if x < 4 else 19}, s[{base}:{base+1}] offset:{(x%4)*1024} {LF[KVF]}" for x in range(8)]
    def q_loads():
        L = [f"buffer_load_dwordx4 v[{O+4*x}:{O+4*x+3}], v20, s[{SRD_X}:{SRD_X+3}], s{sQ} offen offset:{x*1024} {LF[KVF]}" for x in range(4)]
        return ("s_mov_b64 exec, s[52:53]\n" if QONE else "s_not_b64 exec, s[40:41]\n") + "\n".join(L) + f"\ns_mov_b64 exec, -1\ns_add_u32 s{sQ}, s{sQ}, {KVSTEP}"
    def first_loads():
        for l in kv_loads(VX, sV): e(l)
        for l in kv_loads(KX, sK): e(l)
        e(q_loads())
    e(f"""v_add_u32 v19, 4096, v20
s_cmp_eq_u32 s45, s{sW}
s_cselect_b32 s52, 0x00ff00ff, 0
s_mov_b32 s53, s52""")
    wait_start(29 if EKV else None)
    e("s_barrier")
    if EKV: first_loads()
    e(f"""s_mul_i32 s48, s{sW}, 2560
s_add_u32 s48, s48, {R2+128}
v_mov_b32 v12, s48
v_mov_b32 v14, 0x3e800000
v_mov_b32 v15, 0
ds_write_b64 v12, v[14:15]""")
    if S0X: e(f"ds_write_b32 v15, v15 offset:{FKV}")
    elif not EKV: kv_wait(e, Lfail, 0)
    e(f"""s_waitcnt lgkmcnt(0)
s_barrier
s_setprio 2
v_mov_b32 v14, s{sC}
v_cmp_gt_u32 vcc, 32, v0
v_cndmask_b32 v14, v14, 1.0, vcc
v_and_b32 v15, 15, v0
s_lshl_b32 s48, s{sW}, 2
s_add_u32 s48, s48, {RL}
v_lshl_add_u32 v15, v15, 4, s48
v_mov_b32 v16, 0
ds_write_b32 v15, v16 offset:256
ds_write_b32 v15, v16 offset:272
v_mov_b32 v16, 1
v_add_u32 v18, 4096, v1
s_or_b64 vcc, s[52:53], s[40:41]
v_mov_b32 v17, 0x3c000000
v_cndmask_b32 v17, -1, v17, vcc
s_mov_b32 s46, 0x21800000""")
    def yacc(ct, tt): return T + (ct * 2 + tt) * 4
    def yx_mf():
        return [f"v_mfma_f32_16x16x32_bf16 v[{yacc(ct,tt)}:{yacc(ct,tt)+3}], v[{VX+(tt*4+ks)*4}:{VX+(tt*4+ks)*4+3}], v[{WO+(ct*4+ks)*4}:{WO+(ct*4+ks)*4+3}], " + ("0" if ks == 0 else f"v[{yacc(ct,tt)}:{yacc(ct,tt)+3}]")
                for ks in range(4) for tt in range(2) for ct in range(4)]
    def yx_cvt():
        return [f"v_cvt_pk_bf16_f32 v{YX+ct*4+x}, v{yacc(ct,0)+2*x}, v{yacc(ct,0)+2*x+1}" for ct in range(4) for x in range(4)] + [f"v_mov_b64 v[{YM+r}:{YM+r+1}], 0" for r in range(0, 16, 2)]
    def mask_init():
        m = ["vcc", "s[48:49]", "s[50:51]", "s[54:55]"]
        return [x for h in range(2) for x in [f"v_cmp_gt_i32 {m[r]}, {r + 16*h}, v{DQ}" for r in range(4)] + [f"v_cndmask_b32 v{S0+4*h+r}, 0, v{NEG}, {m[r]}" for r in range(4)]]
    kvadv = f"""s_add_u32 s{sV}, s{sV}, {KVSTEP}
s_addc_u32 s{sV+1}, s{sV+1}, 0
s_add_u32 s{sK}, s{sK}, {KVSTEP}
s_addc_u32 s{sK+1}, s{sK+1}, 0"""
    E = T
    def xpart(ld):
        Lp, Lv = e.label("Lxp"), e.label("Lv")
        e(f"s_cmp_eq_u32 s45, s{sW}\ns_cbranch_scc1 {Lp}")
        def pst(f): return f"""buffer_store_dwordx4 v[{PX}:{PX+3}], v12, s[{SRD_X}:{SRD_X+3}], s48 offen {f}
buffer_store_dwordx2 v[{PM}:{PM+1}], v13, s[{SRD_X}:{SRD_X+3}], s48 offen {f}
buffer_store_dwordx4 v[{SM}:{SM+3}], v12, s[{SRD_X}:{SRD_X+3}], s49 offen {f}
buffer_store_dwordx2 v[{SM}:{SM+1}], v13, s[{SRD_X}:{SRD_X+3}], s49 offen {f}
s_mov_b64 exec, -1
{f's_cmp_lg_u32 s{sStep}, 63' if PBL else ''}
{f's_cbranch_scc1 {Lv}_t' if PBL else ''}
s_branch {Lv}"""
        tail.append(f"""{Lp}:
""" + "\n".join(f"v_mul_f32 v{r}, v{r}, v{LS+1}" for r in list(range(E + 8, E + 12)) + list(range(E, E + 8))) + f"""
v_cvt_pk_bf16_f32 v{PM}, v{E+8}, v{E+9}
v_cvt_pk_bf16_f32 v{PM+1}, v{E+10}, v{E+11}
v_cvt_pk_bf16_f32 v{PX}, v{E}, v{E+1}
v_mov_b32 v{PM+2}, v{PM}
v_mov_b32 v{PM+3}, v{PM+1}
v_cvt_pk_bf16_f32 v{PX+1}, v{E+2}, v{E+3}
v_cvt_pk_bf16_f32 v{PX+2}, v{E+4}, v{E+5}
v_permlane32_swap_b32 v{PM}, v{PM+2}
v_permlane32_swap_b32 v{PM+1}, v{PM+3}
v_cvt_pk_bf16_f32 v{PX+3}, v{E+6}, v{E+7}
{f's_cmp_lg_u32 s{sStep}, 63' if PBL else ''}
{f's_cbranch_scc1 {Lv}' if PBL else ''}
{Lp}_t:
v_lshl_add_u32 v12, v0, 4, s43
v_lshl_add_u32 v13, v0, 3, s44
s_and_b32 s48, s{sStep}, 3
s_mul_i32 s48, s48, {PR_SLOT}
s_add_u32 s48, s48, {WS_PR}
s_add_u32 s49, s{sStep}, 1
s_and_b32 s49, s49, 3
s_mul_i32 s49, s49, {PR_SLOT}
s_add_u32 s49, s49, {WS_PR}
v_mov_b64 v[{SM}:{SM+1}], -1
v_mov_b64 v[{SM+2}:{SM+3}], -1
s_not_b64 exec, s[40:41]
s_cmp_lg_u32 s{sMode}, 0
s_cbranch_scc1 {Lp}_s
{pst('')}
{Lp}_s:
{pst('sc1')}""")
        e(f"{Lv}:")
        if XT == 1: tr(e, 0)
        ld = list(ld)
        dump = [f"ds_write_b128 v21, v[{YX+4*x}:{YX+4*x+3}] offset:{(x//2)*3072 + (x%2)*1024}" for x in range(4)] + [f"ds_write_b128 v21, v[{YM+4*x}:{YM+4*x+3}] offset:{2048+3072*x}" for x in range(2)]
        e(f"s_cmp_eq_u32 s{sStep}, 63\ns_cbranch_scc1 {L2x}")
        tail.append(f"{L2x}:\n" + "\n".join(dump) + f"\ns_waitcnt lgkmcnt(0)\ns_barrier\ns_setprio 0\ns_branch {L_done}")
        if KVE == 1: kv_wait(e, Lfail, 1)
        v = kv_loads(VX, sV)
        vv = [(8 * ks + 4 * tt + 3, v[tt * 4 + ks]) for ks in range(4) for tt in range(2)]
        ld = [(0, l) for l in ld] + vv[:8 - VLATE]
        yc = yx_cvt()
        for i, m in enumerate(yx_mf() + yc[16:] + yc[:16] + mask_init()):
            e(m)
            if i >= KLATE and (i - KLATE) % (XLD if i < 32 else 3 * XLD) == 0 and ld and ld[0][0] <= i: e(ld.pop(0)[1])
            if i >= DUMP0 and (i - DUMP0) % DUMPS == 0 and dump: assert i < 32; e(dump.pop(0))
            if XT == 1 and i == 31: tr(e, 1)
            if KVE > 1 and i == KVE: assert not ld; kv_wait(e, Lfail, 1)
        for l in ld: e(l[1])
        if KVE == 0: kv_wait(e, Lfail, 1)
        kv_wait(e, Lfail, 2)
        if XT == 1: tr(e, 2)
        if not VLATE: e("s_waitcnt lgkmcnt(0)")
        if VLATE:
            Lf = e.label("Lfl")
            if VE0: e(f"s_cmp_lt_u32 s{sStep}, {VE0}\ns_cbranch_scc1 {Lf}_x")
            e(f"""v_and_b32 v12, 3, v0
v_lshlrev_b32 v12, 2, v12
{Lf}:
{f's_sleep {VSL}' if VSL else ''}
ds_read_b32 v13, v12 offset:{FL}
s_add_u32 s{sSpin}, s{sSpin}, 1
s_cmp_gt_u32 s{sSpin}, {SPIN_MAX}
s_cbranch_scc1 {Lfail}
s_waitcnt lgkmcnt(0)
v_cmp_eq_u32 vcc, s{sStep}, v13
s_cbranch_vccnz {Lf}""")
            if VE0: e(f"{Lf}_x:\ns_waitcnt lgkmcnt(0)")
            if PBL: e(f"s_cmp_eq_u32 s45, s{sW}\ns_cbranch_scc1 {Lp}_t\n{Lv}_t:")
            if QL: e(q_loads())
            for l in vv[8 - VLATE:]: e(l[1])
        e("v_add_u32 v16, 1, v16")
        e(kvadv)
        e(f"v_xor_b32 v21, {YD ^ YD2}, v21")
    if common.DIAG: e("s_mov_b32 s83, 0")
    vadv = f"s_add_u32 s{sV}, s{sV}, {KVSTEP}\ns_addc_u32 s{sV+1}, s{sV+1}, 0"
    def first_step():
        kv_wait(e, Lfail, 0)
        e(f"""v_mov_b32 v12, 0
s_cmp_lg_u32 s{S_WAVE}, 4
s_cbranch_scc1 Lfirst_w
ds_write_b32 v12, v16 offset:{FKV}
Lfirst_w:
s_sleep 1
ds_read_b32 v13, v12 offset:{FKV}
s_add_u32 s{sSpin}, s{sSpin}, 1
s_cmp_gt_u32 s{sSpin}, {SPIN_MAX}
s_cbranch_scc1 {Lfail}
s_waitcnt lgkmcnt(0)
v_cmp_eq_u32 vcc, 0, v13
s_cbranch_vccnz Lfirst_w""")
        first_loads()
        e(kvadv)
        e(f"s_lshl_b32 s48, s{sW}, 13\ns_add_u32 s48, s48, 131072\ns_mov_b32 m0, s48\nv_lshl_add_u32 v12, v0, 4, s48")
        for x in range(8):
            if x == 4: e("s_add_u32 m0, m0, 4096")
            e(f"global_load_lds_dwordx4 v{20 if x < 4 else 19}, s[{sV}:{sV+1}] offset:{(x%4)*1024} {LF[KVF]}")
        e(vadv + "\ns_waitcnt vmcnt(16)")
        for x in yx_mf() + yx_cvt() + mask_init(): e(x)
        e("s_waitcnt vmcnt(0)")
        for x in range(8): e(f"ds_read_b128 v[{VX+4*x}:{VX+4*x+3}], v12 offset:{x*1024}")
        stamp(e, 8, True)
        e("s_branch Lfirst_b")
    if S0X: e("s_waitcnt lgkmcnt(0)")
    else:
        if not EKV: first_loads()
        e("s_waitcnt vmcnt(12) lgkmcnt(0)")
        for x in yx_mf() + yx_cvt() + mask_init(): e(x)
        e(kvadv)
        for l in kv_loads(VX, sV): e(l)
        e(vadv)
        stamp(e, 8, True)
    L2, LpB, L2x = e.label("L2"), e.label("LpB"), e.label("L2x")
    aln(e, AL2 - 2 * S0X)
    e(f"{L2}:\ns_barrier")
    tr(e, 0)
    reduce4(e, 4, 5, 18, T, 14)
    publish_B(e, tail, T)
    tr(e, 1)
    if SPLIT: e("s_barrier")
    if DELAY_B >= 0:
        for _ in range(DELAY_B): e("s_nop 7")
    elif ACK_B:
        if AL4 >= 0: e(".p2align 5" + "\ns_nop 0" * AL4)
        if S0X: e(f"s_cmp_eq_u32 s{sStep}, 0\ns_cbranch_scc1 Lfirst")
        e("s_waitcnt vmcnt(0)")
        if S0X: e("Lfirst_b:")
    tr(e, 2)
    e(f"{LpB}:")
    tr(e, 7)
    pieces = [(T + 4 * ks, 1, 1024 * ks) for ks in range(4)] + [(VV + 4 * u, 18, 1024 * u) for u in range(2)]
    ldB = [f"global_load_dwordx4 v[{r}:{r+3}], v{a}, s[{sB}:{sB+1}] offset:{o} sc1" for r, a, o in pieces]
    if LATE_V:
        for l in ldB[:4]: e(l)
        e("s_waitcnt vmcnt(3)" if LATE_V == 1 else f"s_sleep {LATE_V - 1}")
        for l in ldB[4:]: e(l)
    else:
        for l in ldB: e(l)
    if AL5 >= 0: e(".p2align 5" + "\ns_nop 0" * AL5)
    def chk(i, mid=""):
        e(f"{LpB}_c{i}:\ns_waitcnt vmcnt({5-i})\nv_cmp_eq_u32 vcc, -1, v{pieces[i][0]+3}\n{mid}\ns_cbranch_vccnz {LpB}_r{i}")
        if RSEL:
            rl = [f"s_mov_b64 exec, vcc\n{ldB[i]}\ns_waitcnt vmcnt(1)"] + [f"s_mov_b64 exec, -1\nv_cmpx_eq_u32 vcc, -1, v{pieces[j][0]+3}\n{ldB[j]}" for j in range(i + 1, 6)] + ["s_mov_b64 exec, -1"]
        else: rl = ldB[i:]
        tail.append((".p2align 5" + "\ns_nop 0" * ALR + "\n" if ALR >= 0 else "") + f"{LpB}_r{i}:\n" + "\n".join(rl) + f"\ns_add_u32 s{sSpin}, s{sSpin}, 1\ns_cmp_gt_u32 s{sSpin}, {SPIN_MAX}\ns_cbranch_scc1 {Lfail}\ns_branch {LpB}_c{i}")
    def sc(i):
        return [f"v_mfma_f32_16x16x32_bf16 v[{a}:{a+3}], v[{kreg}:{kreg+3}], v[{O+4*i}:{O+4*i+3}], " + ("0" if i == 0 and a == SM else f"v[{a}:{a+3}]")
                for (a, kreg) in ((S0, KX + i * 4), (S1_, KX + (4 + i) * 4), (SM, T + 4 * i))]
    cn = lambda i: [f"v_cndmask_b32 v{O+4*i+r}, v{O+4*i+r}, v{T+4*i+r}, s[40:41]" for r in range(4)]
    if BPIPE:
        chk(0, "\n".join(cn(0)))
        for i in range(4):
            m = sc(i)
            e(m[0])
            if i < 3:
                c = cn(i + 1)
                chk(i + 1, c[0]); e(m[1]); e(c[1]); e(c[2]); e(c[3]); e(m[2])
            else:
                e(m[1]); e(m[2])
    else:
        for i in range(4):
            chk(i, "\n".join(cn(i)))
            for m in sc(i): e(m)
    tr(e, 3)
    ym = [f"v_smfmac_f32_16x16x64_bf16 v[{YM+4*ct}:{YM+4*ct+3}], v[{VV+4*u}:{VV+4*u+3}], v[{WO+(ct*4+2*u)*4}:{WO+(ct*4+2*u)*4+7}], v2" for u in range(2) for ct in range(4)]
    vl = kv_loads(KX, sK)[:KEARLY]
    def V():
        if vl: e(vl.pop(0))
    ex = [f"v_exp_f32 v{E+i}, v{S0+i}" for i in range(12)]
    cp = [f"v_cvt_pk_bf16_f32 v{PX+x}, v{E+2*x}, v{E+2*x+1}" for x in range(6)]
    dup = [f"v_mov_b32 v{PM+2}, v{PM}", f"v_mov_b32 v{PM+3}, v{PM+1}", f"v_permlane32_swap_b32 v{PM}, v{PM+2}", f"v_permlane32_swap_b32 v{PM+1}, v{PM+3}"]
    cy = [f"v_cvt_pk_bf16_f32 v{YM+x}, v{YM+2*x}, v{YM+2*x+1}" for x in range(8)]
    ox = [f"v_mfma_f32_16x16x32_bf16 v[{O+4*ct}:{O+4*ct+3}], v[{PX}:{PX+3}], v[{YX+4*ct}:{YX+4*ct+3}], 0" for ct in range(4)]
    om = [f"v_mfma_f32_16x16x16_bf16 v[{O+4*ct}:{O+4*ct+3}], v[{PM}:{PM+1}], v[{YM+2*ct}:{YM+2*ct+1}], v[{O+4*ct}:{O+4*ct+3}]" for ct in range(4)]
    lx = f"v_mfma_f32_16x16x32_bf16 v[{LS}:{LS+3}], v[{ON32}:{ON32+3}], v[{PX}:{PX+3}], 0"
    lm = f"v_mfma_f32_16x16x16_bf16 v[{LS}:{LS+3}], v[{ON16}:{ON16+1}], v[{PM}:{PM+1}], v[{LS}:{LS+3}]"
    wr = [f"ds_write_b128 v3, v[{O+4*ct}:{O+4*ct+3}] offset:{ct*640}" for ct in range(4)]
    Lfb = e.label("Lfb")
    if VORD == 0:
        chk(4)
        e(ym[0]); e(ym[1]); e(ex[0]); e(ym[2]); e(ex[1]); e(ym[3]); e(ex[2])
        chk(5, ex[3])
        seq = [ym[4], ex[4], ym[5], ex[5], ym[6], ex[6], ym[7], ex[7], cp[0], cp[1], cp[2], cp[3], ex[8],
               ox[0], ex[9], ox[1], ex[10], ox[2], ex[11], ox[3], cp[4], cp[5],
               lx, dup[0], dup[1], cy[0], cy[1], dup[2], dup[3], cy[2], cy[3],
               om[0], cy[4], cy[5], lm, cy[6], cy[7], om[1], om[2], om[3]]
    else:
        for x in ex[:8] + cp[:4]: e(x)
        chk(4, ex[8])
        e(ym[0]); e(ex[9]); e(ym[1]); e(ex[10]); e(ym[2]); e(ex[11]); e(ym[3])
        chk(5, cp[4])
        seq = [ym[4], cp[5], ym[5], dup[0], dup[1], ym[6], ym[7], dup[2], dup[3], lx, ox[0], ox[1], cy[0], cy[1], ox[2], cy[2], cy[3], ox[3], cy[4], cy[5],
               lm, cy[6], cy[7], om[0], om[1], om[2], om[3]]
    for i, x in enumerate(seq):
        e(x)
        if KPOS >> i & 1: V()
        if SFLAG == i + 1: e("ds_write_b32 v15, v16 offset:256")
        if RLATE == i + 1: reset_B(e, tail)
    if True:
        e(f"v_rcp_f32 v{LS+1}, v{LS}\ns_mov_b32 exec_lo, 0")
        for x in wr: e(x)
        e(f"""s_mov_b32 exec_lo, -1
ds_write_b32 v15, v{LS+1}
v_subrev_u32 v10, s46, v{LS}
v_cmp_lt_u32 vcc, v17, v10""")
    while vl: V()
    e(f"s_cbranch_vccn{'z' if not FORCE_FB else 'z'} {Lfb}" if not FORCE_FB else f"s_branch {Lfb}")
    e(f"{Lfb}_b:")
    fb = [f"""{Lfb}:
v_max3_f32 v12, v{S0}, v{S0+1}, v{S0+2}
v_max3_f32 v13, v{S0+3}, v{S1_}, v{S1_+1}
v_max3_f32 v12, v{S1_+2}, v{S1_+3}, v12
v_max_f32 v12, v12, v13
s_mov_b32 exec_hi, 0
v_max3_f32 v12, v{SM}, v{SM+1}, v12
v_max3_f32 v12, v{SM+2}, v{SM+3}, v12
s_mov_b32 exec_hi, -1
v_mov_b32 v13, v12
v_permlane16_swap_b32 v12, v13
v_max_f32 v12, v12, v13
v_mov_b32 v13, v12
v_permlane32_swap_b32 v12, v13
v_max_f32 v12, v12, v13"""]
    fb += [f"v_sub_f32 v{S0+i}, v{S0+i}, v12" for i in range(12)] + ex + cp + dup + [lx] + ox + [lm] + om
    fb += [f"v_rcp_f32 v{LS+1}, v{LS}\ns_mov_b32 exec_lo, 0"] + wr + [f"s_mov_b32 exec_lo, -1\nds_write_b32 v15, v{LS+1}\ns_branch {Lfb}_b"]
    tail.append("\n".join(fb))
    tr(e, 4)
    e(f"s_waitcnt {f'vmcnt({KEARLY}) ' if RLATE else ''}lgkmcnt(0)\ns_barrier")
    tr(e, 5)
    Lna = e.label("Lna")
    e(f"s_cmp_lg_u32 s{S_WAVE}, 4\ns_cbranch_scc1 {Lna}")
    if G5: e("s_mov_b64 exec, 0xffff")
    reduce4n(e, 254, 255, VV, S0)
    e(f"global_atomic_pk_add_bf16 v9, v{VV}, s[{sACCN}:{sACCN+1}]\n{'s_mov_b64 exec, -1' if G5 else ''}\n{Lna}:")
    xpart(kv_loads(KX, sK)[KEARLY:] + ([] if QL else [q_loads()]))
    tr(e, 6)
    tr_out(e)
    advance(e)
    e(f"s_branch {L2}")
    aln(e, ALT)
    for t in tail: e(t)
    if S0X:
        assert not EKV
        e("Lfirst:"); first_step()
    e(f"""{Lfail}:
s_mov_b64 exec, -1
v_mov_b32 v12, 0
v_mov_b32 v13, 1
global_store_dword v12, v13, s[{P_DBG}:{P_DBG+1}] offset:{DBG_FAIL}
s_endpgm""")

import struct
def f32bits(x): return struct.unpack("<I", struct.pack("<f", x))[0]
```
